```python
import torch

def _softmax(x, axis=-1):
    return torch.softmax(x, dim=axis)
def _gelu(x):
    return torch.nn.functional.gelu(x, approximate="tanh")
def _silu(x):
    return torch.nn.functional.silu(x)
def _sigmoid(x):
    return torch.sigmoid(x)
def _layernorm(x, axis=-1, eps=1e-5):
    m = x.mean(dim=axis, keepdim=True)
    v = x.var(dim=axis, keepdim=True, unbiased=False)
    return (x - m) / torch.sqrt(v + eps)
def _scatter_add(tgt, idx, src, axis=0):
    return tgt.clone().index_add_(axis, idx, src)
def _segment_sum(src, seg, n):
    out = torch.zeros((n,) + src.shape[1:], dtype=src.dtype)
    return out.index_add_(0, seg, src)
def _pad(x, pw):
    flat = tuple(v for pair in reversed(pw) for v in pair)
    return torch.nn.functional.pad(x, flat)

kernel_name = 'gated_mix__ssm_conv_s4__linear_attn_block__prompt'

def setup_inputs():

    _w = (lambda a: (lambda t: t.to(torch.bfloat16) if t.is_floating_point() else t)(torch.as_tensor(a)))
    def _A_setup():
        B, L, D, N = 1, 2048, 640, 192
        A_re = -(lambda _x: torch.exp(torch.as_tensor(_x)))((lambda *s: torch.randn(*s, dtype=torch.bfloat16) * 6.4)(D, N))
        A_im = torch.pi * (lambda *s: torch.randn(*s, dtype=torch.bfloat16) * 0.05)(D, N)
        B_re = (lambda *s: torch.randn(*s, dtype=torch.bfloat16) * 0.1)(D, N)
        B_im = (lambda *s: torch.randn(*s, dtype=torch.bfloat16) * 0.1)(D, N)
        C_re = (lambda *s: torch.randn(*s, dtype=torch.bfloat16) * 0.1)(D, N)
        C_im = (lambda *s: torch.randn(*s, dtype=torch.bfloat16) * 0.1)(D, N)
        log_dt = (lambda *s: torch.randn(*s, dtype=torch.bfloat16) * 0.05)(D) * 0.5 - 4.0
        Dskip = (lambda *s: torch.randn(*s, dtype=torch.bfloat16) * 0.05)(D)
        return {
            "u": _w((lambda *s: torch.randn(*s, dtype=torch.bfloat16) * 0.05)(B, L, D)),
            "A_re": _w(A_re),
            "A_im": _w(A_im),
            "B_re": _w(B_re),
            "B_im": _w(B_im),
            "C_re": _w(C_re),
            "C_im": _w(C_im),
            "log_dt": _w(log_dt),
            "Dskip": _w(Dskip),
        }
    _A_in = _A_setup()

    def _B_setup():
        B, S, D = 1, 2048, 640
        return {
            "x": _w((lambda *s: torch.randn(*s, dtype=torch.bfloat16) * 0.05)(B, S, D)),
            "wqkv": _w((lambda *s: torch.randn(*s, dtype=torch.bfloat16) * 0.4)(D, 3 * D)),
            "wo": _w((lambda *s: torch.randn(*s, dtype=torch.bfloat16) * 0.05)(D, D)),
        }
    _B_in = _B_setup()

    return {
        "A_u": _A_in["u"],
        "A_A_re": _A_in["A_re"],
        "A_A_im": _A_in["A_im"],
        "A_B_re": _A_in["B_re"],
        "A_B_im": _A_in["B_im"],
        "A_C_re": _A_in["C_re"],
        "A_C_im": _A_in["C_im"],
        "A_log_dt": _A_in["log_dt"],
        "A_Dskip": _A_in["Dskip"],
        "B_x": _B_in["x"],
        "B_wqkv": _B_in["wqkv"],
        "B_wo": _B_in["wo"],
        "gate_w": _w((lambda *s: torch.randn(*s, dtype=torch.bfloat16) * 0.05)(640) * 16.0),
    }

def reference(A_u, A_A_re, A_A_im, A_B_re, A_B_im, A_C_re, A_C_im, A_log_dt, A_Dskip, B_x, B_wqkv, B_wo, gate_w):
    def _A_ref(u, A_re, A_im, B_re, B_im, C_re, C_im, log_dt, Dskip):
        Bsz, L, D = u.shape
        dt = torch.exp(log_dt)[:, None]
        A = A_re + 1j * A_im
        Bc = B_re + 1j * B_im
        Cc = C_re + 1j * C_im
        logdA = dt * A
        dB = dt * Bc
        l = (lambda x, dt: x.to(dt))(torch.arange(L), A_re.dtype)
        P = torch.exp(logdA[:, :, None] * l[None, None, :])
        K = torch.einsum("dn,dnl,dn->dl", Cc, P, dB).real
        L2 = 2 * L
        Kp = _pad(K, ((0, 0), (0, L)))
        up = (lambda x, *d: x.permute(*d))(u, 0, 2, 1)
        up = _pad(up, ((0, 0), (0, 0), (0, L)))
        Kf = (lambda x, axes=(-2,-1): torch.fft.rfft2(x.float(), dim=axes))(Kp[:, None, :], axes=(-2, -1))
        Uf = (lambda x, axes=(-2,-1): torch.fft.rfft2(x.float(), dim=axes))(up[:, :, None, :], axes=(-2, -1))
        Yf = Uf * Kf[None, :, :, :]
        y = (lambda x, s, axes=(-2,-1): torch.fft.irfft2(x, s=s, dim=axes).to(torch.bfloat16))(Yf, (1, L2), axes=(-2, -1))[:, :, 0, :L]
        y = (lambda x, *d: x.permute(*d))(y, 0, 2, 1) + u * Dskip[None, None, :]
        return y

    def _B_ref(x, wqkv, wo):
        B, S, D = x.shape
        H = 32; Dh = D // H
        qkv = (lambda x, *d: x.permute(*d))((x @ wqkv).reshape(B, S, 3, H, Dh), 2, 0, 3, 1, 4)
        q, k, v = qkv[0], qkv[1], qkv[2]
        phi = lambda t: torch.where(t > 0, t + 1, torch.exp(t)) + 1e-6
        pq, pk = phi(q), phi(k)
        kv = torch.einsum("bhsd,bhse->bhde", pk, v)
        z = torch.einsum("bhsd->bhd", pk)
        num = torch.einsum("bhqd,bhde->bhqe", pq, kv)
        den = torch.einsum("bhqd,bhd->bhq", pq, z)[..., None] + 1e-6
        o = num / den
        return (lambda x, *d: x.permute(*d))(o, 0, 2, 1, 3).reshape(B, S, D) @ wo

    x = A_u
    g = _sigmoid((x * gate_w).sum(-1, keepdims=True))
    a = _A_ref(x, A_A_re, A_A_im, A_B_re, A_B_im, A_C_re, A_C_im, A_log_dt, A_Dskip)
    b = _B_ref(x, B_wqkv, B_wo)
    return g * a + (1 - g) * b
```

```python
import re

def V(i, n=1):
    return f"v{i}" if n == 1 else f"v[{i}:{i+n-1}]"
def S(i, n=1):
    return f"s{i}" if n == 1 else f"s[{i}:{i+n-1}]"

class Asm:
    def __init__(self):
        self.lines = []
        self.uid = 0
    def __call__(self, text):
        for ln in text.split("\n"):
            ln = ln.strip()
            if ln:
                self.lines.append(ln)
    def label(self, name):
        self.lines.append(name + ":")
    def newlabel(self, base="L"):
        self.uid += 1
        return f"{base}_{self.uid}"
    def comment(self, t):
        self.lines.append("; " + t)

TRANS = ("v_exp_", "v_log_", "v_rcp_", "v_rsq_", "v_sqrt_", "v_sin_", "v_cos_")
_REG = re.compile(r"^-?\|?(?:abs\()?([vsa])(?:(\d+)|\[(\d+):(\d+)\])\)?\|?$")

def regs_of(tok):
    tok = tok.strip()
    if tok in ("vcc",): return {("s", 106), ("s", 107)}
    if tok == "vcc_lo": return {("s", 106)}
    if tok == "vcc_hi": return {("s", 107)}
    if tok == "exec": return {("s", 126), ("s", 127)}
    if tok == "m0": return {("s", 124)}
    m = _REG.match(tok)
    if not m: return set()
    f = m.group(1)
    if m.group(2) is not None:
        return {(f, int(m.group(2)))}
    return {(f, i) for i in range(int(m.group(3)), int(m.group(4)) + 1)}

def split_ops(s):
    out, depth, cur = [], 0, ""
    for ch in s:
        if ch in "[(": depth += 1
        if ch in "])": depth -= 1
        if ch == "," and depth == 0:
            out.append(cur.strip()); cur = ""
        else:
            cur += ch
    if cur.strip(): out.append(cur.strip())
    return out

class Ins:
    def __init__(self, line):
        self.line = line
        body = line.split(";")[0].strip()
        parts = body.split(None, 1)
        self.op = parts[0]
        ops = split_ops(parts[1]) if len(parts) > 1 else []
        if ops:
            last = ops[-1].split()
            self.mods = " ".join(last[1:])
            ops[-1] = last[0]
        else:
            self.mods = ""
        self.ops = ops
        op = self.op
        self.kind = "other"
        self.w = set(); self.r = set(); self.srcc = set(); self.ab = set(); self.passes = 0
        self.states = 1
        self.storedata = set()
        R = [regs_of(o) for o in ops]
        allr = set().union(*R) if R else set()
        if op == "s_nop":
            self.states = int(ops[0], 0) + 1; self.kind = "salu"
        elif op.startswith("v_mfma"):
            self.kind = "mfma"
            self.passes = 8 if "32x32" in op else 4
            self.w = R[0]; self.ab = R[1] | R[2]; self.srcc = R[3]; self.r = self.ab | self.srcc
        elif op.startswith("v_"):
            self.kind = "valu"
            if op.startswith("v_cmp"):
                self.w = set(R[0]); self.r = set().union(*R[1:])
                if op.startswith("v_cmpx"): self.w |= regs_of("exec")
            elif op.startswith(("v_readfirstlane", "v_readlane")):
                self.w = R[0]; self.r = set().union(*R[1:])
            elif op.startswith(("v_permlane", "v_swap")):
                self.w = R[0] | R[1]; self.r = R[0] | R[1]
            elif op.startswith(("v_add_co", "v_sub_co", "v_addc_co", "v_subb_co", "v_mad_u64", "v_div_scale")):
                self.w = R[0] | R[1]; self.r = set().union(*R[2:])
            else:
                self.w = R[0]; self.r = set().union(*R[1:]) if len(R) > 1 else set()
                if op.startswith(("v_fmac", "v_dot2c", "v_writelane", "v_fma_mix")) or "sdwa" in op or "dpp" in op:
                    self.r = self.r | R[0]
        elif op.startswith("ds_"):
            self.kind = "ds"
            if op.startswith(("ds_read", "ds_bpermute", "ds_permute", "ds_swizzle")) or "_rtn" in op:
                self.w = R[0]; self.r = set().union(*R[1:]) if len(R) > 1 else set()
            else:
                self.r = allr
            if "addtid" in op: self.r = self.r | regs_of("m0")
        elif op.startswith(("buffer_", "global_", "flat_")):
            self.kind = "vmem"
            lds = " lds" in (" " + self.mods) or "load_lds" in op
            if "load" in op and not lds:
                self.w = R[0]; self.r = set().union(*R[1:])
            elif lds:
                self.r = allr | regs_of("m0")
            else:
                self.r = allr
                if "atomic" in op and "sc0" in self.mods:
                    self.w = R[0]
                if "store" in op and op.endswith(("x3", "x4")):
                    self.storedata = R[0] if op.startswith("buffer_") else R[1]
        elif op.startswith("s_"):
            self.kind = "salu"
            if op.startswith(("s_cmp", "s_cbranch", "s_branch", "s_waitcnt", "s_barrier", "s_endpgm", "s_sleep", "s_setprio", "s_bitcmp")):
                self.r = allr
            else:
                self.w = set(R[0]) if R else set(); self.r = set().union(*R[1:]) if len(R) > 1 else set()
                if "saveexec" in op: self.w |= regs_of("exec")
        self.trans = op.startswith(TRANS)
        self.dpp = "dpp" in op or "row_" in self.mods or "quad_perm" in self.mods or "wave_" in self.mods

def isv(rs): return {r for r in rs if r[0] in "va"}
def iss(rs): return {r for r in rs if r[0] == "s"}

def required(p, c):
    n = 0
    if p.kind == "valu":
        vw, sw = isv(p.w), iss(p.w)
        if c.kind == "mfma" and vw & c.r: n = max(n, 2)
        if c.kind == "mfma" and sw & regs_of("exec"): n = max(n, 4)
        if c.kind == "valu":
            if p.trans and not c.trans and vw & (c.r): n = max(n, 1)
            if p.trans and c.trans and vw & c.r: n = max(n, 1)
            if c.op.startswith(("v_readfirstlane", "v_readlane")) and vw & c.r: n = max(n, 1)
            if c.op.startswith("v_permlane") and vw & c.r: n = max(n, 2)
            if c.dpp and vw & c.r: n = max(n, 2)
            if sw & c.r: n = max(n, 2)
            if c.op.startswith(("v_readlane", "v_writelane")) and sw & c.r: n = max(n, 4)
            if sw & regs_of("exec") and (c.dpp or c.op.startswith(("v_read", "v_writelane", "v_permlane"))): n = max(n, 5)
            if ("sdwa" in p.op or "mix" in p.op) and vw & (c.r | c.w): n = max(n, 1)
        if p.trans and c.kind in ("ds", "vmem") and vw & c.r: n = max(n, 1)
        if c.kind == "vmem" and sw & c.r: n = max(n, 5)
        if c.kind == "salu" and sw & c.r: n = max(n, 1)
    if p.kind == "salu":
        if ("s", 124) in p.w and c.kind in ("ds", "vmem") and ("s", 124) in c.r: n = max(n, 1)
    if p.kind == "vmem" and p.storedata & c.w:
        n = max(n, 2)
    if p.kind == "mfma":
        P = p.passes
        if c.kind == "mfma":
            if p.w & c.srcc:
                if not (p.w == c.srcc and p.passes == c.passes): n = max(n, P + 2)
            if p.w & c.ab: n = max(n, P + 4)
            if p.w & c.w and not (p.w == c.w and p.passes == c.passes): n = max(n, P + 2)
        elif c.kind in ("valu", "ds", "vmem"):
            if p.w & (c.r | c.w): n = max(n, P + 4)
            if c.kind == "valu" and p.srcc & c.w: n = max(n, P - 1)
    return n

def fix_hazards(lines):
    W = 14
    snaps = {}
    out = None
    for it in range(6):
        out = []
        state = []
        newsnaps = {}
        dead = False
        for ln in lines:
            s = ln.strip()
            if not s or s.startswith((";", ".", "//")) and not s.endswith(":"):
                out.append(ln); continue
            if s.endswith(":"):
                lab = s[:-1]
                if dead: state = []
                dead = False
                state = state + list(newsnaps.get(lab, [])) + list(snaps.get(lab, []))
                out.append(ln); continue
            c = Ins(s)
            need = 0
            for p, d in state:
                need = max(need, required(p, c) - d)
            if need > 0:
                out.append(f"s_nop {need-1}")
                state = [(p, d + need) for p, d in state]
            out.append(ln)
            state = [(p, d + c.states) for p, d in state if d + c.states < W]
            state.append((c, 0))
            if c.op.startswith(("s_cbranch", "s_branch")):
                newsnaps.setdefault(c.ops[0], []).extend(state)
                if c.op == "s_branch": dead = True
            if c.op == "s_endpgm": dead = True
        snaps = newsnaps
    return out

def kernel_text(name, asm, vgpr, sgpr=96, accum=None):
    body = "\n".join(("" if l.endswith(":") else "    ") + l for l in fix_hazards(asm.lines))
    return f".globl {name}\n.p2align 8\n.type {name},@function\n{name}:\n{body}\n"

def descriptor(name, vgpr, sgpr=96, accum=None):
    if accum is None: accum = min(256, (vgpr + 3)//4*4)
    return f""".p2align 6
.amdhsa_kernel {name}
  .amdhsa_next_free_vgpr {vgpr}
  .amdhsa_next_free_sgpr {sgpr}
  .amdhsa_accum_offset {accum}
  .amdhsa_group_segment_fixed_size 0
  .amdhsa_kernarg_size 128
  .amdhsa_user_sgpr_count 2
  .amdhsa_user_sgpr_kernarg_segment_ptr 1
  .amdhsa_system_sgpr_workgroup_id_x 1
.end_amdhsa_kernel
"""
```

```python
from asmlib import *
P_U, P_ARE, P_AIM, P_BRE, P_BIM, P_CRE, P_CIM, P_LDT = 16, 18, 20, 22, 24, 26, 28, 30
P_DSK, P_BX, P_WQKV, P_WO, P_GATE, P_OUT, P_DBG, P_WS = 32, 34, 36, 38, 40, 42, 44, 46
WS_KV = 0
WS_G = 65536
WS_PQ = 1 << 20
WS_YT = 4 << 20
WS_STAMP = 8 << 20
LOG2E = "0x3fb8aa3b"
INV2PI = "0.15915494"

def load_kernargs(a):
    a("s_load_dwordx16 s[16:31], s[0:1], 0")
    a("s_load_dwordx16 s[32:47], s[0:1], 64")

def srd(a, d, base, nbytes, off=0):
    if off:
        a(f"s_add_u32 s{d}, s{base}, {off}")
        a(f"s_addc_u32 s{d+1}, s{base+1}, 0")
    else:
        a(f"s_mov_b32 s{d}, s{base}")
        a(f"s_mov_b32 s{d+1}, s{base+1}")
    a(f"s_mov_b32 s{d+2}, {nbytes}")
    a(f"s_mov_b32 s{d+3}, 0x20000")

class Stamps:
    def __init__(self, on, first=70):
        self.on = on; self.first = first; self.n = 0; self.names = []; self.skip = set()
    def stamp(self, a, name):
        if not self.on or name in self.skip: return
        assert self.n < 13
        a(f"s_memtime s[{self.first+2*self.n}:{self.first+2*self.n+1}]")
        self.names.append(name); self.n += 1
    def flush(self, a, slot_sreg, wave_sreg, vt=2):
        if not self.on: return
        a("s_waitcnt vmcnt(0) lgkmcnt(0)")
        a(f"s_memtime s[{self.first+2*self.n}:{self.first+2*self.n+1}]")
        a("s_memrealtime s[64:65]")
        a("s_waitcnt lgkmcnt(0)")
        self.names.append("end"); self.n += 1
        a(f"s_lshl_b32 s66, s{slot_sreg}, 3")
        a(f"s_add_u32 s66, s66, s{wave_sreg}")
        a("s_lshl_b32 s66, s66, 6")
        a(f"s_add_u32 s66, s66, {WS_STAMP}")
        a(f"v_mov_b32 v{vt}, s66")
        a("s_mov_b64 exec, 1")
        for i in range(self.n):
            a(f"v_mov_b32 v{vt+1}, s{self.first+2*i}")
            a(f"global_store_dword v{vt}, v{vt+1}, s[{P_WS}:{P_WS+1}] offset:{4*i}")
        a(f"v_mov_b32 v{vt+1}, s68")
        a(f"global_store_dword v{vt}, v{vt+1}, s[{P_WS}:{P_WS+1}] offset:56")
        a(f"v_mov_b32 v{vt+1}, s64")
        a(f"global_store_dword v{vt}, v{vt+1}, s[{P_WS}:{P_WS+1}] offset:60")
        a("s_waitcnt vmcnt(0)")
    def start(self, a):
        if not self.on: return
        a("s_memrealtime s[68:69]")
        self.stamp(a, "start")
```

```python
from common import *
XSZ = 16384
SEGK = 10240; SEGV = 20480 + 16
STG = XSZ + 30720 + 32
RED = 0
RSTR = 6912
DUMP = 2 * RSTR

def interleave(a, main, fill, start=0, every=1):
    fi = 0
    for i, m in enumerate(main):
        a(m)
        if i >= start and (i - start) % every == 0 and fi < len(fill):
            a(fill[fi]); fi += 1
    for f in fill[fi:]: a(f)

def phi4(a, base, n, vL, tmp):
    for i in range(0, n, 2):
        a(f"v_pk_fma_f32 {V(tmp+i,2)}, {V(base+i,2)}, {V(vL,2)}, {V(vL,2)} op_sel_hi:[1,0,0] neg_lo:[0,0,1] neg_hi:[0,0,1]")
    for i in range(n):
        a(f"v_exp_f32_e64 v{tmp+i}, v{tmp+i} clamp")
    for i in range(n):
        a(f"v_max_f32 v{tmp+i}, v{tmp+i}, v{base+i}")
    for i in range(0, n, 2):
        a(f"v_pk_add_f32 {V(tmp+i,2)}, {V(tmp+i,2)}, {V(vL,2)} op_sel:[0,1] op_sel_hi:[1,1]")

def role_g(a, st, sRB, sG, sW, zero_wait=None):
    vT, vL = 0, 1
    LQ = a.newlabel("Lg_q"); LJ = a.newlabel("Lg_join")
    a(f"v_and_b32 v{vL}, 63, v{vT}")
    a(f"v_and_b32 v2, 15, v{vL}")
    a(f"v_lshrrev_b32 v3, 4, v{vL}")
    a("v_lshrrev_b32 v4, 1, v2")
    a("v_xor_b32 v4, v4, v3")
    a("v_lshlrev_b32 v4, 4, v4")
    a("v_lshl_add_u32 v4, v2, 7, v4")
    a("v_lshrrev_b32 v5, 1, v3")
    a("v_lshlrev_b32 v5, 4, v5")
    a("v_and_b32 v6, 1, v3")
    a("v_lshl_add_u32 v5, v6, 2, v5")
    a("v_lshrrev_b32 v6, 2, v2")
    a("v_add_u32 v5, v5, v6")
    a("v_mul_u32_u24 v5, 160, v5")
    a("v_and_b32 v6, 3, v2")
    a("v_lshl_add_u32 v5, v6, 3, v5")
    a(f"v_add_u32 v5, {XSZ}, v5")
    a(f"v_mov_b32 v8, {LOG2E}")
    a("v_mov_b32 v9, 0x358637bd")
    a(f"s_mul_i32 s4, s{sRB}, {128*1280}")
    a(f"s_cmp_ge_u32 s{sW}, 4")
    a(f"s_cbranch_scc1 {LQ}")

    ACC = 32; F = [112, 148]
    cA0, cA1, cB, cM = 10, 11, 12, 13
    aA0, aA1, aB, aM = 14, 15, 16, 17
    SC = 18
    a(f"s_and_b32 s5, s{sW}, 1")
    a(f"s_lshr_b32 s6, s{sW}, 1")
    a(f"s_lshl_b32 s7, s{sG}, 4")
    a(f"s_lshl_b32 s8, s{sW}, 2")
    a("s_add_u32 s7, s7, s8")
    a("s_mul_i32 s8, s7, 1280")
    a("s_add_u32 s8, s8, s4")
    a("v_mul_u32_u24 v28, 1280, v3")
    a("v_lshlrev_b32 v29, 4, v2")
    a("v_add3_u32 v28, v28, v29, s8")
    a("s_waitcnt lgkmcnt(0)")
    st.stamp(a, "karg")
    GX, GW = 184, 204
    for i in range(5):
        a(f"global_load_dwordx4 {V(GX+4*i,4)}, v28, s[{P_U}:{P_U+1}] offset:{256*i}")
        a(f"global_load_dwordx4 {V(GW+4*i,4)}, v29, s[{P_GATE}:{P_GATE+1}] offset:{256*i}")
    a("s_lshl_b32 s8, s6, 13")
    a(f"v_add_u32 v{cA0}, s8, v4")
    a(f"v_xor_b32 v{cA1}, 64, v{cA0}")
    a("s_mul_i32 s8, s5, 80")
    a(f"s_add_u32 s8, s8, {SEGK}")
    a(f"v_add_u32 v{cB}, s8, v5")
    a("v_cmp_lt_u32 vcc, 1, v6")
    a(f"v_mov_b32 v30, 64")
    a(f"v_mov_b32 v31, {SEGV-SEGK-16}")
    a("v_cndmask_b32 v30, v30, v31, vcc")
    a(f"v_add_u32 v{cM}, v{cB}, v30")
    a("v_cmp_gt_u32 s[10:11], 8, v2")
    a("v_cndmask_b32 v30, 0, 1.0, s[10:11]")
    for rt in range(4):
        for ct in range(5):
            for j in range(4):
                src = "1.0" if ct < 2 else ("v30" if ct == 2 else "0")
                a(f"v_mov_b32 v{ACC+20*rt+4*ct+j}, {src}")
    pairs = [(0,2),(0,3),(1,2),(1,3),(1,4),(2,3),(2,4)]
    a(f"s_mul_i32 s8, s6, {RSTR}")
    a("s_mul_i32 s9, s5, 3360")
    a("s_add_u32 s8, s8, s9")
    a(f"v_lshlrev_b32 v31, 2, v{vL}")
    a(f"v_add_u32 v31, {DUMP}, v31")
    T = 112
    for kt in range(3):
        a(f"v_add_u32 v30, {16*kt}, v2")
        a(f"v_mul_u32_u24 v{T+kt}, 13, v30")
        a(f"v_lshrrev_b32 v{T+kt}, 8, v{T+kt}")
        a(f"v_mul_u32_u24 v{T+4+kt}, 1600, v{T+kt}")
        a(f"v_lshl_add_u32 v{T+4+kt}, v30, 2, v{T+4+kt}")
        a(f"v_add_u32 v{T+4+kt}, s8, v{T+4+kt}")
    for vt in range(2, 5):
        a(f"v_lshl_add_u32 v30, v3, 2, {16*vt-20}")
        a(f"v_mul_u32_u24 v{T+8+vt}, 13, v30")
        a(f"v_lshrrev_b32 v{T+8+vt}, 8, v{T+8+vt}")
        a(f"v_mul_u32_u24 v{T+16+vt}, 20, v{T+8+vt}")
        a(f"v_sub_u32 v{T+16+vt}, v30, v{T+16+vt}")
        a(f"v_mul_u32_u24 v{T+16+vt}, 80, v{T+16+vt}")
        a(f"v_add_u32 v{T+8+vt}, -1, v{T+8+vt}")
    for i, (kt, vt) in enumerate(pairs):
        a(f"v_cmp_eq_u32 vcc, v{T+kt}, v{T+8+vt}")
        a(f"v_add_u32 v30, v{T+4+kt}, v{T+16+vt}")
        a(f"v_cndmask_b32 v{SC+i}, v31, v30, vcc")
    for kt in range(3):
        a(f"v_lshl_add_u32 v30, v3, 2, v{T+kt}")
        a("v_cmp_gt_u32 vcc, 2, v30")
        a(f"v_add_u32 v30, 1600, v{T+4+kt}")
        a(f"v_cndmask_b32 v{SC+7+kt}, v31, v30, vcc")
    a("s_waitcnt vmcnt(0)")
    a("v_mov_b32 v30, 0"); a("v_mov_b32 v31, 0")
    for i in range(20):
        a(f"v_dot2_f32_bf16 v{30+(i&1)}, v{GX+i}, v{GW+i}, v{30+(i&1)}")
    a("s_nop 2")
    a("v_add_f32 v30, v30, v31")
    for sh in (1, 2, 4, 8):
        a(f"v_add_f32_dpp v30, v30, v30 row_shr:{sh} row_mask:0xf bank_mask:0xf")
    a(f"v_mul_f32 v30, 0xbfb8aa3b, v30")
    a("v_exp_f32 v30, v30")
    a("v_add_f32 v30, 1.0, v30")
    a("v_rcp_f32 v30, v30")
    a(f"s_lshl_b32 s8, s{sRB}, 7")
    a("s_add_u32 s8, s8, s7")
    a("s_lshl_b32 s8, s8, 2")
    a(f"s_add_u32 s8, s8, {WS_G}")
    a("v_lshl_add_u32 v31, v3, 2, s8")
    a("s_mov_b32 exec_lo, 0x80008000"); a("s_mov_b32 exec_hi, 0x80008000")
    a(f"global_store_dword v31, v30, s[{P_WS}:{P_WS+1}]")
    a("s_mov_b64 exec, -1")
    def kv_reads(f, ks):
        L = []
        aa = aA1 if ks else aA0
        o = ks*32*160
        bo = [(aB, 0), (aB, 32), (aM, 0), (aB, SEGV-SEGK+16), (aB, SEGV-SEGK+48)]
        L.append(f"ds_read_b128 {V(f,4)}, v{aa}")
        for ct in range(5):
            for h in range(2):
                L.append(f"ds_read_b64_tr_b16 {V(f+16+4*ct+2*h,2)}, v{bo[ct][0]} offset:{o+bo[ct][1]+h*1280}")
        for rt in range(1, 4):
            L.append(f"ds_read_b128 {V(f+4*rt,4)}, v{aa} offset:{2048*rt}")
        return L
    def kv_mfma(f):
        return [f"v_mfma_f32_16x16x32_bf16 {V(ACC+20*rt+4*ct,4)}, {V(f+4*rt,4)}, {V(f+16+4*ct,4)}, {V(ACC+20*rt+4*ct,4)}" for rt in range(4) for ct in range(5)]
    def kv_addr(): return [f"v_add_u32 v{d}, s12, v{c}" for d, c in ((aA0,cA0),(aB,cB),(aM,cM),(aA1,cA1))]
    def advance():
        a(f"s_add_u32 s12, s12, {STG}")
        a(f"s_cmp_eq_u32 s12, {3*STG}")
        a("s_cselect_b32 s12, 0, s12")
    a("s_mov_b32 s12, 0"); a("s_mov_b32 s13, 9")
    for x in kv_addr(): a(x)
    st.stamp(a, "pre")
    a("s_barrier")
    st.stamp(a, "B0")
    for x in kv_reads(F[0], 0): a(x)
    LL = a.newlabel("Lg_kvl")
    a.label(LL)
    a("s_waitcnt lgkmcnt(0)")
    interleave(a, kv_mfma(F[0]), kv_reads(F[1], 1))
    advance()
    for x in kv_addr(): a(x)
    a("s_waitcnt lgkmcnt(0)")
    a("s_barrier")
    interleave(a, kv_mfma(F[1]), kv_reads(F[0], 0))
    a("s_sub_u32 s13, s13, 1")
    a("s_cmp_lg_u32 s13, 0")
    a(f"s_cbranch_scc1 {LL}")
    a("s_waitcnt lgkmcnt(0)")
    interleave(a, kv_mfma(F[0]), kv_reads(F[1], 1))
    a("s_waitcnt lgkmcnt(0)")
    a("s_barrier")
    for x in kv_mfma(F[1]): a(x)
    st.stamp(a, "loop")
    P = 112
    TM = 160
    for rt in range(4):
        b = ACC + 20*rt
        phi4(a, b, 12, 8, TM)
        for j in range(4):
            a(f"v_cndmask_b32 v{TM+8+j}, v{b+8+j}, v{TM+8+j}, s[10:11]")
        for ct in range(5):
            s = TM + 4*ct if ct < 3 else b + 4*ct
            d = P + 8*ct + 2*rt
            a(f"v_cvt_pk_bf16_f32 v{d}, v{s}, v{s+1}")
            a(f"v_cvt_pk_bf16_f32 v{d+1}, v{s+2}, v{s+3}")
    ONE = 156
    for j in range(4): a(f"v_mov_b32 v{ONE+j}, 0x3f803f80")
    KD = 32
    for kp in range(2):
        for i, (kt, vt) in enumerate(pairs):
            c = "0" if kp == 0 else V(KD+4*i, 4)
            a(f"v_mfma_f32_16x16x32_bf16 {V(KD+4*i,4)}, {V(P+8*vt+4*kp,4)}, {V(P+8*kt+4*kp,4)}, {c}")
        for kt in range(3):
            c = "0" if kp == 0 else V(KD+28+4*kt, 4)
            a(f"v_mfma_f32_16x16x32_bf16 {V(KD+28+4*kt,4)}, {V(ONE,4)}, {V(P+8*kt+4*kp,4)}, {c}")
    for i in range(7):
        a(f"ds_write2_b32 v{SC+i}, v{KD+4*i}, v{KD+4*i+1} offset0:0 offset1:20")
        a(f"ds_write2_b32 v{SC+i}, v{KD+4*i+2}, v{KD+4*i+3} offset0:40 offset1:60")
    for kt in range(3):
        a(f"ds_write_b32 v{SC+7+kt}, v{KD+28+4*kt}")
    st.stamp(a, "epi")
    a(f"s_branch {LJ}")

    a.label(LQ)
    ACC = 32; F = [72, 100]
    cA0, cA1, cB, cM = 10, 11, 12, 13
    aA0, aA1, aB, aM = 14, 15, 16, 17
    dX, dW = 18, 20
    a(f"s_and_b32 s5, s{sW}, 3")
    a(f"v_lshrrev_b32 v28, 3, v{vL}")
    a("v_mul_u32_u24 v28, 1280, v28")
    a("s_lshl_b32 s6, s5, 2")
    a("v_add_u32 v29, s6, v3")
    a(f"v_xor_b32 v29, v29, v{vL}")
    a("v_and_b32 v29, 7, v29")
    a("v_lshl_add_u32 v28, v29, 4, v28")
    a("s_mul_i32 s6, s5, 10240")
    a("s_add_u32 s6, s6, s4")
    a(f"v_add_u32 v{dX}, s6, v28")
    a("s_lshl_b32 s14, s5, 10")
    a("s_waitcnt lgkmcnt(0)")
    st.n = st.names.index("karg") if (st.on and "karg" in st.names) else st.n
    saved = list(st.names); st.names = st.names[:st.n]
    st.stamp(a, "karg")
    srd(a, 48, P_U, 2621440)
    srd(a, 52, P_WQKV, 2457600)
    def dmaX(t, sbuf, skx):
        return (f"s_add_u32 m0, s{sbuf}, {4096*t}\ns_add_u32 s9, s{skx}, {t*32*1280}\n"
                f"buffer_load_dwordx4 v{dX}, s[48:51], s9 offen lds")
    def dmaW(t, sbuf, skw):
        x = (f"s_add_u32 m0, s{sbuf}, {XSZ + 4096*t + (16 if t >= 5 else 0)}\ns_nop 0\n"
             f"buffer_load_dwordx4 v{dW+t}, s[52:55], s{skw} offen lds")
        if t == 7:
            l = a.newlabel("Lg_sk")
            x = f"s_cmp_ge_u32 s5, 2\ns_cbranch_scc1 {l}\n{x}\n{l}:"
        return x
    a("s_mov_b32 s15, s14"); a("s_mov_b32 s56, 0"); a("s_mov_b32 s57, 0")
    for t in range(4): a(dmaX(t, 15, 56))
    a(f"s_mul_i32 s7, s{sG}, 160")
    for t in range(8):
        a(f"s_add_u32 s6, s5, {4*t}")
        a("s_mul_i32 s8, s6, 26")
        a("s_lshr_b32 s8, s8, 8")
        a("s_mul_i32 s9, s8, 10")
        a("s_sub_u32 s6, s6, s9")
        a("s_lshl_b32 s6, s6, 6")
        a("s_mul_i32 s8, s8, 1280")
        a("s_add_u32 s8, s8, s7")
        a(f"v_add_u32 v28, s6, v{vL}")
        a("v_mul_u32_u24 v29, 6554, v28")
        a("v_lshrrev_b32 v29, 16, v29")
        a("v_mul_u32_u24 v30, 10, v29")
        a("v_sub_u32 v28, v28, v30")
        a("v_lshl_add_u32 v28, v28, 4, s8")
        a("v_lshrrev_b32 v30, 1, v29")
        a("v_xor_b32 v30, v30, v29")
        a("v_and_b32 v30, 4, v30")
        a("v_mul_u32_u24 v30, 3, v30")
        a("v_xor_b32 v29, v29, v30")
        a("v_mul_u32_u24 v29, 3840, v29")
        a(f"v_add_u32 v{dW+t}, v28, v29")
        a(dmaW(t, 15, 57))
    for s_ in (1, 2):
        a(f"s_add_u32 s15, s15, {STG}"); a("s_add_u32 s56, s56, 128"); a(f"s_add_u32 s57, s57, {64*3840}")
        for t in range(4): a(dmaX(t, 15, 56))
        for t in range(8): a(dmaW(t, 15, 57))
    a("s_lshl_b32 s8, s5, 12")
    a(f"v_add_u32 v{cA0}, s8, v4")
    a(f"v_xor_b32 v{cA1}, 64, v{cA0}")
    a(f"v_mov_b32 v{cB}, v5")
    a(f"v_lshl_add_u32 v{cM}, v6, 5, v5")
    for r in range(40): a(f"v_mov_b32 v{ACC+r}, 1.0")
    def q_reads(f, ks):
        L = []
        aa = aA1 if ks else aA0
        o = ks*32*160
        L.append(f"ds_read_b128 {V(f,4)}, v{aa}")
        L.append(f"ds_read_b128 {V(f+4,4)}, v{aa} offset:2048")
        for ct in range(5):
            for h in range(2):
                L.append(f"ds_read_b64_tr_b16 {V(f+8+4*ct+2*h,2)}, v{aB if ct < 4 else aM} offset:{o+(40*ct if ct < 4 else 32)+h*1280}")
        return L
    def q_mfma(f):
        return [f"v_mfma_f32_16x16x32_bf16 {V(ACC+20*rt+4*ct,4)}, {V(f+8+4*ct,4)}, {V(f+4*rt,4)}, {V(ACC+20*rt+4*ct,4)}" for ct in range(5) for rt in range(2)]
    def q_addr(): return [f"v_add_u32 v{d}, s12, v{c}" for d, c in ((aA0,cA0),(aB,cB),(aM,cM),(aA1,cA1))]
    def mix(m, r, d):
        out = []; ri = 0; di = 0
        for i, x in enumerate(m):
            out.append(x)
            for _ in range(2):
                if ri < len(r): out.append(r[ri]); ri += 1
            if i >= 4 and di < len(d): out.append(d[di]); di += 1
        out += r[ri:] + d[di:]
        for x in out: a(x)
    a("s_mov_b32 s12, 0")
    for x in q_addr(): a(x)
    st.stamp(a, "pre")
    a("s_waitcnt vmcnt(22)")
    a("s_barrier")
    st.stamp(a, "B0")
    for x in q_reads(F[0], 0): a(x)
    def body(first_dma, second_dma, vm):
        a("s_waitcnt lgkmcnt(0)")
        mix(q_mfma(F[0]), q_reads(F[1], 1), first_dma)
        a("s_add_u32 s15, s12, s14")
        advance()
        for x in q_addr(): a(x)
        a("s_add_u32 s56, s56, 128"); a(f"s_add_u32 s57, s57, {64*3840}")
        a(f"s_waitcnt vmcnt({vm}) lgkmcnt(0)")
        a("s_barrier")
        mix(q_mfma(F[1]), q_reads(F[0], 0), second_dma)
    D2 = lambda: [dmaX(t, 15, 56) for t in range(4)] + [dmaW(t, 15, 57) for t in range(2)]
    D1 = lambda: [dmaW(t, 15, 57) for t in range(2, 8)]
    body([], D2(), 11)
    a("s_mov_b32 s13, 6")
    LL = a.newlabel("Lg_ql")
    a.label(LL)
    body(D1(), D2(), 11)
    a("s_sub_u32 s13, s13, 1")
    a("s_cmp_lg_u32 s13, 0")
    a(f"s_cbranch_scc1 {LL}")
    body(D1(), [], 11)
    body([], [], 0)
    a("s_waitcnt lgkmcnt(0)")
    mix(q_mfma(F[0]), q_reads(F[1], 1), [])
    a("s_waitcnt lgkmcnt(0)")
    a("s_barrier")
    for x in q_mfma(F[1]): a(x)
    st.stamp(a, "loop")
    srd(a, 48, P_WS, 2621440, WS_PQ)
    a("v_lshrrev_b32 v28, 1, v3")
    a("v_lshlrev_b32 v28, 9, v28")
    a("v_lshl_add_u32 v28, v2, 4, v28")
    a("v_and_b32 v29, 1, v3")
    a("v_lshl_add_u32 v28, v29, 3, v28")
    a(f"s_lshl_b32 s6, s{sRB}, 2")
    a("s_add_u32 s6, s6, s5")
    a("s_mul_i32 s6, s6, 40960")
    a(f"s_mul_i32 s7, s{sG}, 5120")
    a("s_add_u32 s6, s6, s7")
    a("s_add_u32 s7, s6, 4096")
    TM = 72
    for rt in range(2):
        t = TM + 20*rt
        phi4(a, ACC+20*rt, 20, 8, t)
        for ct in range(5):
            a(f"v_cvt_pk_bf16_f32 v{t+4*ct}, v{t+4*ct}, v{t+4*ct+1}")
            a(f"v_cvt_pk_bf16_f32 v{t+4*ct+1}, v{t+4*ct+2}, v{t+4*ct+3}")
            so, off = (6, 1024*ct + 256*rt) if ct < 4 else (7, 256*rt)
            a(f"buffer_store_dwordx2 {V(t+4*ct,2)}, v28, s[48:51], s{so} offen offset:{off}")
    st.stamp(a, "epi")
    a.label(LJ)
    a(f"s_mul_i32 s6, s{sG}, 6720")
    a(f"s_add_u32 s52, s{P_WS}, s6")
    a(f"s_addc_u32 s53, s{P_WS+1}, 0")
    a("s_mov_b32 s54, 6720")
    a("s_mov_b32 s55, 0x20000")
    a(f"v_lshlrev_b32 v2, 2, v{vT}")
    a("v_add_u32 v3, 4096, v2")
    if zero_wait: zero_wait(a)
    a("s_waitcnt lgkmcnt(0)")
    a("s_barrier")
    for i in range(4):
        a(f"ds_read2st64_b32 {V(4+2*i,2)}, v2 offset0:{8*i} offset1:{8*i+27}")
    for i in range(4):
        a(f"s_waitcnt lgkmcnt({3-i})")
        a(f"v_add_f32 v{4+2*i}, v{4+2*i}, v{5+2*i}")
        a(f"buffer_atomic_add_f32 v{4+2*i}, v{2 + (i >> 1)}, s[52:55], 0 offen offset:{2048*(i&1)}")
```

```python
from common import *
WOB = 0; KVB = 102720; YB = KVB + 27136
PL = 2064; TS = 16*PL + 64
def role_p2(a, st, sSB, sCT, sW):
    vT, vL = 0, 1
    a(f"v_and_b32 v{vL}, 63, v{vT}")
    a(f"s_and_b32 s4, s{sW}, 1")
    a(f"s_lshr_b32 s5, s{sW}, 1")
    a(f"v_lshlrev_b32 v2, 4, v{vT}")
    a(f"s_lshl_b32 s6, s{sSB}, 1")
    a("s_add_u32 s6, s6, s4")
    a("s_mul_i32 s7, s6, 40960")
    a("s_mul_i32 s8, s5, 10240")
    a("s_add_u32 s7, s7, s8")
    a(f"s_add_u32 s7, s7, {WS_PQ}")
    a(f"v_lshl_add_u32 v3, v{vL}, 4, s7")
    a("v_add_u32 v4, 4096, v3")
    a("v_add_u32 v5, 8192, v3")
    a(f"v_and_b32 v6, 31, v{vL}")
    a(f"v_lshrrev_b32 v7, 5, v{vL}")
    a("s_lshl_b32 s7, s6, 7")
    a(f"s_add_u32 s7, s7, {WS_G}")
    a("v_lshl_add_u32 v8, v6, 2, s7")
    a(f"v_mul_u32_u24 v9, 26, v{vL}")
    a("v_lshrrev_b32 v9, 8, v9")
    a("v_mul_u32_u24 v9, 1120, v9")
    a(f"v_lshl_add_u32 v9, v{vL}, 4, v9")
    a(f"s_mul_i32 s7, s{sW}, 7680")
    a(f"s_mul_i32 s8, s{sCT}, 160")
    a("s_add_u32 s7, s7, s8")
    a("v_add_u32 v9, s7, v9")
    a(f"v_lshrrev_b32 v10, 3, v{vL}")
    a(f"v_lshrrev_b32 v11, 4, v{vL}")
    a(f"s_lshl_b32 s7, s{sW}, 2")
    a("v_add_u32 v11, s7, v11")
    a(f"v_xor_b32 v11, v11, v{vL}")
    a("v_and_b32 v11, 7, v11")
    a("v_lshlrev_b32 v11, 4, v11")
    a("v_lshl_add_u32 v10, v10, 12, v11")
    a(f"s_mul_i32 s7, s{sCT}, {80*4096}")
    a(f"s_lshl_b32 s8, s{sW}, 15")
    a("s_add_u32 s7, s7, s8")
    a(f"s_lshl_b32 s8, s{sSB}, 7")
    a("s_add_u32 s7, s7, s8")
    a("v_add_u32 v10, s7, v10")
    a("s_waitcnt lgkmcnt(0)")
    st.stamp(a, "karg")
    srd(a, 48, P_WS, 53760, WS_KV)
    srd(a, 52, P_WO, 819200)
    srd(a, 56, P_WS, 2621440, WS_YT)
    KL = 128
    for i in range(7):
        if i: a(f"v_add_u32 v2, 8192, v2")
        a(f"buffer_load_dwordx4 {V(KL+4*i,4)}, v2, s[48:51], 0 offen")
    PQ = 16
    for i in range(10):
        a(f"global_load_dwordx4 {V(PQ+4*i,4)}, v{3+(i>>2)}, s[{P_WS}:{P_WS+1}] offset:{1024*(i&3)}")
    a(f"global_load_dword v12, v8, s[{P_WS}:{P_WS+1}]")
    a(f"s_mul_i32 s9, s{sW}, 960")
    a("s_mov_b32 exec_hi, 0x0fffffff")
    lsk = a.newlabel("Lp_sk")
    for t in range(14):
        if t == 13:
            a(f"s_cmp_ge_u32 s{sW}, 3"); a(f"s_cbranch_scc1 {lsk}")
        a(f"s_add_u32 m0, s9, {WOB + 7680*t}")
        if t: a("v_add_u32 v9, 61440, v9")
        a("buffer_load_dwordx4 v9, s[52:55], 0 offen lds")
    a.label(lsk)
    a("s_mov_b64 exec, -1")
    a(f"s_lshl_b32 s9, s{sW}, 10")
    a(f"s_add_u32 m0, s9, {YB}")
    a("s_mov_b32 s10, 0x40000")
    a("buffer_load_dwordx4 v10, s[56:59], 0 offen lds")
    lsk = a.newlabel("Lp_sk")
    a(f"s_cmp_ge_u32 s{sW}, 2"); a(f"s_cbranch_scc1 {lsk}")
    a(f"s_add_u32 m0, s9, {YB+8192}")
    a("s_nop 0")
    a("buffer_load_dwordx4 v10, s[56:59], s10 offen lds")
    a.label(lsk)
    st.stamp(a, "issued")
    a(f"v_lshlrev_b32 v2, 3, v{vT}")
    a(f"v_add_u32 v2, {KVB}, v2")
    a("v_lshrrev_b32 v3, 3, v6")
    a("v_and_b32 v4, 3, v6")
    a("v_lshl_add_u32 v3, v3, 2, v4")
    a("v_bfe_u32 v4, v6, 2, 1")
    a("v_lshl_add_u32 v3, v3, 1, v4")
    a("v_min_u32 v3, 20, v3")
    a("v_mul_u32_u24 v3, 40, v3")
    a("s_mul_i32 s7, s5, 6720")
    a(f"s_add_u32 s7, s7, {KVB}")
    a("v_add_u32 v14, s7, v3")
    a("v_lshl_add_u32 v13, v7, 4, v14")
    a(f"v_bfe_u32 v3, v{vL}, 2, 2")
    a("v_lshl_add_u32 v3, v3, 1, v7")
    a("v_mul_u32_u24 v3, 160, v3")
    a(f"v_bfe_u32 v4, v{vL}, 4, 1")
    a("v_lshl_add_u32 v3, v4, 5, v3")
    a(f"v_and_b32 v4, 3, v{vL}")
    a("v_lshl_add_u32 v3, v4, 3, v3")
    a("s_mul_i32 s7, s5, 25600")
    a("v_add_u32 v15, s7, v3")
    A2 = 56
    for r in range(A2, A2+16): a(f"v_mov_b32 v{r}, 0")
    for i in range(7):
        a(f"s_waitcnt vmcnt({25+6-i})")
        a(f"v_cvt_pk_bf16_f32 v{KL+4*i}, v{KL+4*i}, v{KL+4*i+1}")
        a(f"v_cvt_pk_bf16_f32 v{KL+4*i+1}, v{KL+4*i+2}, v{KL+4*i+3}")
        if i == 6:
            a(f"v_cmp_gt_u32 vcc, 288, v{vT}")
            a("s_and_saveexec_b64 s[10:11], vcc")
        a(f"ds_write_b64 v2, {V(KL+4*i,2)} offset:{4096*i}")
    a("s_mov_b64 exec, -1")
    a("s_waitcnt vmcnt(14) lgkmcnt(0)")
    st.stamp(a, "kvpq")
    a("s_barrier")
    st.stamp(a, "Ba")
    a("v_cvt_pk_bf16_f32 v11, v12, v12")
    a("v_and_b32 v12, 0xffff0000, v11")
    a("v_sub_f32 v12, 1.0, v12")
    a("v_and_b32 v11, 0xffff, v11")
    A1 = 72
    OD = [104, 120]
    O = 136
    def rd(q):
        for j in range(4):
            hh = 4*q + j
            a(f"ds_read_b64 {V(A1+4*hh,2)}, v13 offset:{840*hh}")
            a(f"ds_read_b64 {V(A1+4*hh+2,2)}, v13 offset:{840*hh+8}")
    def rd2(q):
        a("s_mov_b32 exec_hi, 0")
        for j in range(4):
            if j == 2:
                a("s_mov_b32 exec_lo, 0"); a("s_mov_b32 exec_hi, -1")
            a(f"ds_read_b64 {V(A2+4*j+2*(j&1),2)}, v14 offset:{840*(4*q+j)+32}")
        a("s_mov_b32 exec_lo, -1")
    def mm(hh):
        q, j = hh >> 2, hh & 3
        d = OD[hh & 1]
        a(f"v_mfma_f32_32x32x16_bf16 {V(d,16)}, {V(A1+4*hh,4)}, {V(PQ+20*q+4*j,4)}, 0")
        a(f"v_mfma_f32_32x32x16_bf16 {V(d,16)}, {V(A2+4*j,4)}, {V(PQ+20*q+16,4)}, {V(d,16)}")
    def fin(hh):
        d = OD[hh & 1]
        a(f"v_add_f32 v{d+10}, 0x358637bd, v{d+10}")
        a(f"v_rcp_f32 v{d+10}, v{d+10}")
        a(f"v_mul_f32 v{d+10}, v{d+10}, v12")
        for r in range(10): a(f"v_mul_f32 v{d+r}, v{d+r}, v{d+10}")
        for r in range(5): a(f"v_cvt_pk_bf16_f32 v{O+5*hh+r}, v{d+2*r}, v{d+2*r+1}")
    rd(0); rd2(0); rd(1)
    a("s_waitcnt lgkmcnt(8)")
    mm(0)
    for hh in range(8):
        if hh + 1 < 8:
            if hh + 1 == 4: a("s_waitcnt lgkmcnt(0)")
            mm(hh+1)
            if hh + 1 == 3: rd2(1)
        fin(hh)
    st.stamp(a, "o")
    DG = 56
    a("s_lshl_b32 s7, s5, 4")
    a("v_lshl_add_u32 v3, v7, 3, s7")
    a("v_sub_u32 v3, v6, v3")
    a("v_and_b32 v4, 1, v3")
    a("v_lshlrev_b32 v4, 4, v4")
    a("v_lshlrev_b32 v11, v4, v11")
    a("v_ashrrev_i32 v3, 1, v3")
    for x in range(4):
        a(f"v_cmp_eq_u32 vcc, {x}, v3")
        a(f"v_cndmask_b32 v{DG+x}, 0, v11, vcc")
    a("s_lshl_b32 s7, s4, 2")
    a("s_lshl_b32 s8, s5, 1")
    a("s_add_u32 s7, s7, s8")
    a("v_add_u32 v3, s7, v7")
    a("v_bfe_u32 v4, v6, 1, 3")
    a("v_xor_b32 v3, v3, v4")
    a("v_and_b32 v3, 7, v3")
    a("v_lshlrev_b32 v3, 4, v3")
    a("v_lshl_add_u32 v3, v6, 7, v3")
    a(f"v_add_u32 v10, {YB}, v3")
    a("s_waitcnt vmcnt(0)")
    st.stamp(a, "wo")
    a("s_barrier")
    st.stamp(a, "Bb")
    ACC = 176
    WB = [16, 40, 72, 96]
    def wrd(g):
        L = []
        for mi in range(2):
            for t in range(3):
                for h in range(2):
                    L.append(f"ds_read_b64_tr_b16 {V(WB[g%4]+12*mi+4*t+2*h,2)}, v15 offset:{(16*(2*g+mi)+8*h)*160+64*t}")
        return L
    def wmm(g):
        L = []
        for mi in range(2):
            m = 2*g + mi
            for t in range(3):
                c = "0" if m == 0 else V(ACC+16*t, 16)
                L.append(f"v_mfma_f32_32x32x16_bf16 {V(ACC+16*t,16)}, {V(O+4*m,4)}, {V(WB[g%4]+12*mi+4*t,4)}, {c}")
        return L
    WB[1] = 104
    WB[3] = 16;
    WBs = [16, 104, 72]
    for i in range(4): WB[i] = WBs[i % 3]
    def wb(g): return WBs[g % 3]
    def wrd(g):
        return [f"ds_read_b64_tr_b16 {V(wb(g)+12*mi+4*t+2*h,2)}, v15 offset:{(16*(2*g+mi)+8*h)*160+64*t}" for mi in range(2) for t in range(3) for h in range(2)]
    def wmm(g):
        return [f"v_mfma_f32_32x32x16_bf16 {V(ACC+16*t,16)}, {V(O+4*(2*g+mi),4)}, {V(wb(g)+12*mi+4*t,4)}, {'0' if 2*g+mi == 0 else V(ACC+16*t,16)}" for mi in range(2) for t in range(3)]
    YF = 40
    for x in wrd(0): a(x)
    for t in range(3): a(f"ds_read_b128 {V(YF+4*t,4)}, v10 offset:{4096*t}")
    for g in range(5):
        nxt = wrd(g+1) if g < 4 else []
        a(f"s_waitcnt lgkmcnt({3 if g == 0 else 0})")
        for i, m in enumerate(wmm(g)):
            a(m)
            for x in nxt[3*i:3*i+3]: a(x)
    lsk = a.newlabel("Lp_sk")
    a("s_cmp_ge_u32 s5, 2"); a(f"s_cbranch_scc1 {lsk}")
    for t in range(3):
        a(f"v_mfma_f32_32x32x16_bf16 {V(ACC+16*t,16)}, {V(DG,4)}, {V(YF+4*t,4)}, {V(ACC+16*t,16)}")
    a.label(lsk)
    st.stamp(a, "gemm")
    srd(a, 48, P_OUT, 2621440)
    a(f"s_mul_i32 s7, s{sSB}, {64*1280}")
    a(f"s_mul_i32 s8, s{sCT}, 160")
    a("s_add_u32 s7, s7, s8")
    for k in range(2):
        a(f"v_add_u32 v2, {512*k}, v{vT}")
        a("v_mul_u32_u24 v3, 6554, v2")
        a("v_lshrrev_b32 v3, 16, v3")
        a("v_mul_u32_u24 v4, 10, v3")
        a("v_sub_u32 v4, v2, v4")
        a("v_mul_u32_u24 v5, 1280, v3")
        a(f"v_lshl_add_u32 v{8+2*k}, v4, 4, v5")
        a("v_bfe_u32 v5, v3, 3, 2")
        a("v_and_b32 v2, 3, v3")
        a("v_lshl_add_u32 v5, v5, 2, v2")
        a(f"v_mul_u32_u24 v5, {PL}, v5")
        a("v_lshrrev_b32 v2, 5, v3")
        a("v_lshl_add_u32 v5, v2, 8, v5")
        a("v_bfe_u32 v2, v3, 2, 1")
        a("v_lshl_add_u32 v5, v2, 7, v5")
        a("v_lshrrev_b32 v2, 2, v4")
        a(f"v_mul_u32_u24 v2, {TS}, v2")
        a("v_add_u32 v5, v5, v2")
        a("v_and_b32 v2, 3, v4")
        a(f"v_lshl_add_u32 v{9+2*k}, v2, 5, v5")
    a(f"s_lshl_b32 s9, s{sW}, 8")
    a("s_barrier")
    for t in range(3):
        a(f"s_add_u32 m0, s9, {min(t,1)*TS}")
        for r in range(16):
            a(f"ds_write_addtid_b32 v{ACC+16*t+r} offset:{r*PL + (TS if t == 2 else 0)}")
    a("s_waitcnt lgkmcnt(0)")
    a("s_barrier")
    st.stamp(a, "Bd")
    lsk = a.newlabel("Lp_sk")
    for k in range(2):
        if k == 1:
            a(f"s_cmp_ge_u32 s{sW}, 2"); a(f"s_cbranch_scc1 {lsk}")
        R = 16 + 32*k
        for p in range(4):
            for h in range(2):
                a(f"ds_read_b128 {V(R+8*p+4*h,4)}, v{9+2*k} offset:{512*p+16*h}")
        a("s_waitcnt lgkmcnt(4)")
        for i in range(0, 8, 2): a(f"v_pk_add_f32 {V(R+i,2)}, {V(R+i,2)}, {V(R+8+i,2)}")
        a("s_waitcnt lgkmcnt(0)")
        for i in range(0, 8, 2): a(f"v_pk_add_f32 {V(R+16+i,2)}, {V(R+16+i,2)}, {V(R+24+i,2)}")
        for i in range(0, 8, 2): a(f"v_pk_add_f32 {V(R+i,2)}, {V(R+i,2)}, {V(R+16+i,2)}")
        for i in range(4): a(f"v_cvt_pk_bf16_f32 v{R+i}, v{R+2*i}, v{R+2*i+1}")
        a(f"buffer_store_dwordx4 {V(R,4)}, v{8+2*k}, s[48:51], s7 offen")
    a.label(lsk)
```

```python
from common import *
TROW = 2064
T_Z = 24 * TROW
DB = 56 * TROW
KSTR = 4160; KCH = 4 * KSTR
UB = 5 * KCH
USTR = 4608
XB = UB + 5 * USTR
UNITS = [256*u for u in range(9)] + [4 + 256*u for u in range(4)] + [2, 258, 6, 262, 1, 5, 3, 7]
def unit_row(u):
    k = u >> 1
    return 8*(k >> 2) + 4*(u & 1) + (k & 3)

def cmul(a, t, x, m):
    a(f"v_pk_mul_f32 {V(t,2)}, {V(x,2)}, {V(m,2)} op_sel:[0,0] op_sel_hi:[0,1]")
    a(f"v_pk_fma_f32 {V(t,2)}, {V(x,2)}, {V(m,2)}, {V(t,2)} op_sel:[1,1,0] op_sel_hi:[1,0,1] neg_lo:[0,1,0]")

def role_s(a, st, sJ, sX, sW):
    vT, vL = 0, 1
    PB, PC, PARE, PAIM, PLDT = 2, 4, 6, 7, 8
    GA = [18, 22, 26, 30]
    EA = 34
    vTR, vFL = 40, 41
    ACC = 48
    a(f"v_and_b32 v{vL}, 63, v{vT}")
    for r in list(range(2, 9)) + list(range(10, 17)) + list(range(ACC, ACC+16)):
        a(f"v_mov_b32 v{r}, 0")
    a(f"s_mul_i32 s4, s{sJ}, 1920")
    a(f"s_lshl_b32 s5, s{sW}, 8")
    a("s_add_u32 s4, s4, s5")
    a(f"v_lshl_add_u32 v42, v{vL}, 1, s4")
    a(f"s_mul_i32 s6, s{sW}, 0xAAAC")
    a("s_add_u32 s7, s6, 0x5556")
    a("s_lshr_b32 s6, s6, 16")
    a("s_lshr_b32 s7, s7, 16")
    a("s_min_u32 s7, s7, 4")
    a(f"s_mul_i32 s8, s{sJ}, 10")
    a("s_lshl_b32 s9, s6, 1")
    a("s_add_u32 s9, s9, s8")
    a("v_mov_b32 v43, s9")
    a("s_lshl_b32 s9, s7, 1")
    a("s_add_u32 s9, s9, s8")
    a("v_mov_b32 v44, s9")
    a(f"s_lshr_b32 s10, 0x92, s{sW}")
    a("s_and_b32 s10, s10, 1")
    a("s_and_b32 s9, s8, -4")
    a("s_movk_i32 s11, 2560")
    a("v_mov_b32 v46, s9")
    a(f"v_mad_u32_u24 v45, v{vT}, s11, v46")
    a(f"s_and_b32 s12, s{sX}, 1")
    a("s_mul_i32 s12, s12, 1280")
    a("s_sub_u32 s13, 1280, s12")
    a(f"s_lshr_b32 s14, s{sX}, 1")
    a("s_mul_i32 s15, s14, 1310720")
    a("s_sub_u32 s3, 1310720, s15")
    a("s_add_u32 s48, s12, s15")
    a("s_add_u32 s49, s13, s15")
    a("s_add_u32 s50, s12, s3")
    a("s_add_u32 s51, s13, s3")
    a("s_waitcnt lgkmcnt(0)")
    st.stamp(a, "karg")
    def ploads(base, off, vld):
        a(f"global_load_short_d16_hi v{base+PLDT-2}, v{vld}, s[{P_LDT}:{P_LDT+1}]")
        for reg, p in ((PARE, P_ARE), (PAIM, P_AIM), (PB, P_BRE), (PB+1, P_BIM), (PC, P_CRE), (PC+1, P_CIM)):
            a(f"global_load_short_d16_hi v{base+reg-2}, v42, s[{p}:{p+1}] offset:{off}")
    ploads(2, 0, 43)
    a("s_xor_b32 exec_lo, s10, 1")
    a("s_mov_b32 exec_hi, 0")
    l = a.newlabel("Ls_nodsk")
    a(f"s_cbranch_execz {l}")
    a(f"global_load_short_d16_hi v{ACC}, v43, s[{P_DSK}:{P_DSK+1}]")
    a.label(l)
    a("s_mov_b64 exec, -1")
    l = a.newlabel("Ls_nor1")
    a(f"s_cmp_eq_u32 s{sW}, 7")
    a(f"s_cbranch_scc1 {l}")
    ploads(10, 128, 44)
    a.label(l)
    srd(a, 52, P_U, 2621440)
    a(f"v_mov_b32 v46, 0")
    a("s_movk_i32 s11, 3072")
    a(f"v_min_u32 v47, 9, v{vT}")
    a(f"v_mul_u32_u24 v47, s11, v47")
    a(f"v_add_u32 v47, {DB+2816}, v47")
    a("ds_write_b32 v47, v46")
    a(f"v_and_b32 v46, 31, v{vL}")
    a(f"v_mul_u32_u24 v46, {TROW}, v46")
    a(f"v_lshrrev_b32 v47, 5, v{vL}")
    a(f"v_lshl_add_u32 v46, v47, 4, v46")
    a(f"v_add_u32 v{vTR}, s5, v46")
    a("v_mov_b32 v64, 0x130d1100")
    a("v_mov_b32 v65, 0x140f1209")
    a(f"v_lshlrev_b32 v66, 1, v{vT}")
    for k in range(6):
        c = 2047 - 1024*(k // 3) - (k % 3)
        a(f"v_sub_u32 v{70+k}, {c}, v66")
        a(f"v_cvt_f32_i32 v{70+k}, v{70+k}")
    for k in range(0, 6, 2):
        a(f"v_cvt_pk_bf16_f32 v{70+k+1}, v{70+k}, v{70+k+1}")
        a(f"v_lshlrev_b32 v{70+k}, 16, v{70+k+1}")
        a(f"v_and_b32 v{70+k+1}, 0xffff0000, v{70+k+1}")
    for k in range(6):
        a(f"v_cvt_u32_f32 v{70+k}, v{70+k}")
        a(f"v_and_b32 v67, 7, v{70+k}")
        a(f"v_or_b32 v67, 0x0c0c0c00, v67")
        a(f"v_perm_b32 v67, v65, v64, v67")
        a(f"v_lshrrev_b32 v{70+k}, 3, v{70+k}")
        a(f"v_lshl_add_u32 v67, v67, 5, v{70+k}")
        a(f"v_lshlrev_b32 v67, 2, v67")
        a(f"v_add_u32 v{EA+k}, {DB}, v67")
    a(f"v_mov_b32 v67, {DB+2816}")
    a(f"v_cmp_eq_u32 vcc, 0x1ff, v{vT}")
    a(f"v_cndmask_b32 v{EA+5}, v{EA+5}, v67, vcc")
    a("s_mov_b32 s56, 0")
    a(f"s_add_u32 s57, s5, {T_Z}")
    a("s_barrier")
    for i in range(4):
        a(f"buffer_load_dwordx3 {V(GA[i],3)}, v45, s[52:55], s{48+i} offen")
    st.stamp(a, "gissue")
    a("s_waitcnt vmcnt(4)")
    st.stamp(a, "params")
    LK = a.newlabel("Ls_kgen")
    a.label(LK)
    Z1, Z8, Z256, DT, WW = 128, 130, 132, 134, 136
    T0 = 140
    a(f"v_mul_f32 v{DT}, {LOG2E}, v{PLDT}")
    a(f"v_exp_f32 v{DT}, v{DT}")
    cmul(a, T0, PC, PB)
    a(f"v_cvt_pk_bf16_f32 v{DT}, v{DT}, v{DT}")
    a(f"v_and_b32 v{DT}, 0xffff0000, v{DT}")
    a(f"v_mul_f32 v{PARE}, v{DT}, v{PARE}")
    a(f"v_mul_f32 v{PAIM}, v{DT}, v{PAIM}")
    a(f"v_pk_mul_f32 {V(WW,2)}, {V(T0,2)}, {V(DT,2)} op_sel_hi:[1,0]")
    a(f"v_mul_f32 v{PARE}, {LOG2E}, v{PARE}")
    a(f"v_mul_f32 v{PAIM}, {INV2PI}, v{PAIM}")
    a(f"v_exp_f32 v{T0}, v{PARE}")
    a(f"v_rndne_f32 v{T0+2}, v{PAIM}")
    a(f"v_sub_f32 v{PAIM}, v{PAIM}, v{T0+2}")
    a(f"v_cos_f32 v{Z1}, v{PAIM}")
    a(f"v_sin_f32 v{Z1+1}, v{PAIM}")
    a(f"v_mul_f32 v{PARE}, 0x43800000, v{PARE}")
    a(f"v_mul_f32 v{PAIM}, 0x43800000, v{PAIM}")
    a(f"v_pk_mul_f32 {V(Z1,2)}, {V(Z1,2)}, {V(T0,2)} op_sel_hi:[1,0]")
    a(f"v_exp_f32 v{T0+2}, v{PARE}")
    a(f"v_cos_f32 v{Z256}, v{PAIM}")
    a(f"v_sin_f32 v{Z256+1}, v{PAIM}")
    cmul(a, Z8, Z1, Z1)
    a(f"v_pk_mul_f32 {V(Z256,2)}, {V(Z256,2)}, {V(T0+2,2)} op_sel_hi:[1,0]")
    cmul(a, T0, Z8, Z8)
    cmul(a, Z8, T0, T0)
    CV = 176
    class Pipe:
        def __init__(s): s.pc = None; s.pw = None; s.n = 0
        def step(s, entry):
            if s.pw is not None:
                w = s.pw
            else: w = None
            if s.pc is not None:
                src, off, neg = s.pc
                r = CV + (s.n % 4); s.n += 1
                a(f"v_cvt_pk_bf16_f32 v{r}, v{src}, {'-' if neg else ''}v{src+1}")
                s.pw = (r, off)
            else: s.pw = None
            if w: a(f"ds_write_addtid_b32 v{w[0]} offset:{w[1]}")
            s.pc = entry
        def drain(s):
            s.step(None); s.step(None)
    a("s_mov_b32 m0, s5")
    p = Pipe()
    uo = lambda pp: unit_row(UNITS.index(pp)) * TROW
    Wreg = {0: WW}
    p.step((WW, uo(0), True))
    for k in range(1, 8):
        Wreg[k] = 144 + 2*k
        cmul(a, Wreg[k], Wreg[k-1], Z1); p.step((Wreg[k], uo(k), True))
    rot = [160, 162, 164, 166]; ri = 0
    for base, cnt in ((0, 8), (4, 3), (2, 1), (6, 1)):
        src = Wreg[base]
        for e in range(1, cnt+1):
            d = rot[ri % 4]; ri += 1
            cmul(a, d, src, Z256); p.step((d, uo(base + 256*e), True)); src = d
    a(f"v_mov_b32 v{T0}, 0x3f80")
    p.drain()
    a("s_mov_b32 m0, s57")
    p = Pipe()
    a(f"ds_write_addtid_b32 v{T0} offset:0")
    p.step((Z8, TROW, False))
    src = Z8
    for q in range(2, 32):
        d = rot[ri % 4]; ri += 1
        cmul(a, d, src, Z8); p.step((d, q*TROW, False)); src = d
    p.drain()
    a("s_waitcnt lgkmcnt(0)")
    FR = 64
    for ks in range(8):
        a(f"ds_read_b128 {V(FR+8*ks,4)}, v{vTR} offset:{32*ks}")
        a(f"ds_read_b128 {V(FR+8*ks+4,4)}, v{vTR} offset:{T_Z+32*ks}")
    a("s_mul_i32 s9, s6, 6144")
    a("s_mul_i32 s11, s10, 3072")
    a("s_add_u32 s9, s9, s11")
    a(f"s_add_u32 s9, s9, {DB}")
    a(f"v_lshl_add_u32 v{vFL}, v{vL}, 2, s9")
    for r in range(2, 9):
        a(f"v_mov_b32 v{r}, v{r+8}")
    for ks in range(8):
        a(f"s_waitcnt lgkmcnt({min(15, 14-2*ks)})")
        a(f"v_mfma_f32_32x32x16_bf16 {V(ACC,16)}, {V(FR+8*ks,4)}, {V(FR+8*ks+4,4)}, {V(ACC,16)}")
    lnf = a.newlabel("Ls_noflush"); lkd = a.newlabel("Ls_kdone")
    a("s_or_b32 s9, s10, s56")
    a(f"s_cbranch_scc0 {lnf}")
    for k in range(11):
        a(f"ds_write_b32 v{vFL}, v{ACC+k} offset:{256*k}")
    for k in range(11):
        a(f"v_mov_b32 v{ACC+k}, 0")
    a.label(lnf)
    a("s_mov_b32 s6, s7")
    a(f"s_cmp_eq_u32 s{sW}, 7")
    a(f"s_cbranch_scc1 {lkd}")
    a("s_xor_b32 s56, s56, 1")
    a(f"s_cbranch_scc1 {LK}")
    a.label(lkd)
    st.stamp(a, "kgen")
    a("s_and_b32 s9, s8, 2")
    a("s_lshl_b32 s9, s9, 3")
    a(f"s_bitcmp1_b32 s{sX}, 0")
    a("s_mov_b32 s11, 0x05040100")
    a("s_cselect_b32 s11, 0x01000504, s11")
    a("s_add_u32 s12, s11, 0x02020202")
    a("s_waitcnt vmcnt(0)")
    st.stamp(a, "gather")
    for i in range(4):
        g = GA[i]
        a(f"v_alignbit_b32 v{g}, v{g+1}, v{g}, s9")
        a(f"v_alignbit_b32 v{g+1}, v{g+2}, v{g+1}, s9")
        a(f"v_lshrrev_b32 v{g+2}, s9, v{g+2}")
    UD = 2
    for g in range(2):
        for c in range(5):
            a(f"v_perm_b32 v{UD+5*g+c}, v{GA[2*g+1]+(c>>1)}, v{GA[2*g]+(c>>1)}, s{11+(c&1)}")
    a(f"v_mul_u32_u24 v12, 7282, v{vT}")
    a("v_lshrrev_b32 v12, 16, v12")
    a("v_mul_u32_u24 v13, 9, v12")
    a(f"v_sub_u32 v13, v{vT}, v13")
    a("v_bfe_u32 v14, v12, 1, 1")
    a("v_sub_u32 v13, v13, v14")
    a(f"v_mul_u32_u24 v12, {KSTR}, v12")
    a("v_lshl_add_u32 v12, v13, 2, v12")
    a(f"v_mul_u32_u24 v13, 2185, v{vT}")
    a("v_lshrrev_b32 v13, 16, v13")
    a(f"v_mul_u32_u24 v13, {USTR-480}, v13")
    a(f"v_lshl_add_u32 v13, v{vT}, 4, v13")
    a(f"v_add_u32 v13, {UB}, v13")
    for r in range(20, 24): a(f"v_mov_b32 v{r}, 0")
    a("s_lshl_b32 s13, s14, 11")
    a("s_add_u32 s15, s5, 49152")
    a("s_add_u32 s13, s13, s15")
    a("s_xor_b32 s15, s13, 2048")
    a("s_waitcnt lgkmcnt(0)")
    a("s_barrier")
    st.stamp(a, "B1")
    ER = 64
    for c in range(5):
        for k in range(6):
            a(f"ds_read2st64_b32 {V(ER+12*c+2*k,2)}, v{EA+k} offset0:{24*c} offset1:{24*c+12}")
    for g in range(2):
        a(f"s_mov_b32 m0, s{13 if g == 0 else 15}")
        for c in range(5):
            a(f"ds_write_addtid_b32 v{UD+5*g+c} offset:{UB + c*USTR + 480 - 49152}")
    a(f"v_cmp_gt_u32 vcc, 180, v{vT}")
    a("s_and_saveexec_b64 s[58:59], vcc")
    a("ds_write_b32 v12, v20 offset:4096")
    a(f"v_cmp_gt_u32 vcc, 150, v{vT}")
    a("s_and_b64 exec, exec, vcc")
    a("ds_write_b128 v13, v[20:23]")
    a("s_mov_b64 exec, s[58:59]")
    a("s_mov_b32 m0, s5")
    a("s_waitcnt lgkmcnt(12)")
    for c in range(5):
        X = 0
        if c == 4:
            a("s_add_u32 m0, s5, 32768"); X = 32768
        for h in range(2):
            b = ER + 12*c + 6*h
            for k in range(3):
                a(f"v_add_f32 v{b+2*k}, v{b+2*k}, v{b+2*k+1}")
            a(f"v_cvt_pk_bf16_f32 v{b+1}, v{b}, v{b+2}")
            a(f"v_cvt_pk_bf16_f32 v{b+3}, v{b+2}, v{b+4}")
            o = c*KCH + 2048*h - X
            a(f"ds_write_addtid_b32 v{b+1} offset:{o}")
            a(f"ds_write_addtid_b32 v{b+3} offset:{o+KSTR}")
            a(f"ds_write_addtid_b32 v{b+1} offset:{o+2*KSTR-4}")
            a(f"ds_write_addtid_b32 v{b+3} offset:{o+3*KSTR-4}")
    vA, vB, vA4, vB4 = 2, 3, 4, 5
    a(f"v_and_b32 v6, 15, v{vL}")
    a(f"v_lshrrev_b32 v7, 4, v{vL}")
    a("v_and_b32 v8, 3, v6")
    a("v_sub_u32 v8, 3, v8")
    a(f"v_mul_u32_u24 v8, {KSTR}, v8")
    a("v_lshrrev_b32 v9, 2, v6")
    a("v_sub_u32 v9, 3, v9")
    a("v_lshl_add_u32 v8, v9, 3, v8")
    a("v_lshl_add_u32 v8, v7, 4, v8")
    a("v_lshlrev_b32 v9, 5, v6")
    a("v_lshl_add_u32 v9, v7, 4, v9")
    a(f"s_and_b32 s12, s{sW}, 1")
    a(f"s_lshr_b32 s13, s{sW}, 1")
    a("s_lshl_b32 s9, s12, 8")
    a(f"s_mul_i32 s11, s13, {KCH}")
    a("s_add_u32 s11, s11, s9")
    a(f"v_add_u32 v{vA}, s11, v8")
    a(f"s_add_u32 s11, s9, {4*KCH}")
    a(f"v_add_u32 v{vA4}, s11, v8")
    a(f"s_mul_i32 s11, s13, {USTR}")
    a(f"s_add_u32 s9, s9, {UB}")
    a("s_add_u32 s11, s11, s9")
    a(f"v_add_u32 v{vB}, s11, v9")
    a(f"s_add_u32 s11, s9, {4*USTR}")
    a(f"v_add_u32 v{vB4}, s11, v9")
    CA = 16
    C4 = 48
    for r in range(C4, C4+8): a(f"v_mov_b32 v{r}, 0")
    a("s_waitcnt lgkmcnt(0)")
    a("s_barrier")
    st.stamp(a, "B2")
    SET = [64, 128]
    def rdA(base, d, va, roff):
        a(f"ds_read_b64 {V(base+4*d,2)}, v{va} offset:{512*(7-d)+roff}")
        a(f"ds_read_b64 {V(base+4*d+2,2)}, v{va} offset:{512*(7-d)+roff+8}")
    def rdB(base, j, vb, roff):
        a(f"ds_read_b128 {V(base+32+4*j,4)}, v{vb} offset:{512*j+roff}")
    def p4(i):
        n = 8 - i
        lp = a.newlabel("Ls_p4")
        a("s_mov_b32 s9, 4")
        a.label(lp)
        base = SET[0]
        order = []
        loaded = []
        for d in range(n):
            rdA(base, d, vA4, 0); rdB(base, n-1-d, vB4, 0)
        a(f"v_add_u32 v{vA4}, 64, v{vA4}")
        a(f"v_add_u32 v{vB4}, 64, v{vB4}")
        a("s_sub_u32 s9, s9, 1")
        lo_done = set()
        for d in range(n):
            rem = 3*(n-1-d)
            if rem <= 15: a(f"s_waitcnt lgkmcnt({rem})")
            else: a("s_waitcnt lgkmcnt(15)") if d == 0 else None
            a(f"v_mfma_f32_16x16x32_bf16 {V(C4+4,4)}, {V(base+4*d,4)}, {V(base+32+4*(n-1-d),4)}, {V(C4+4,4)}")
            for dd in range(i+1):
                if dd not in lo_done and dd <= d and i-dd >= n-1-d:
                    lo_done.add(dd)
                    a(f"v_mfma_f32_16x16x32_bf16 {V(C4,4)}, {V(base+4*dd,4)}, {V(base+32+4*(i-dd),4)}, {V(C4,4)}")
        assert len(lo_done) == i+1
        a("s_cmp_lg_u32 s9, 0")
        a(f"s_cbranch_scc1 {lp}")
    def p4_dispatch(i0):
        l1 = a.newlabel("Ls_p4b"); le = a.newlabel("Ls_p4e")
        a(f"s_cmp_eq_u32 s13, {i0+1}")
        a(f"s_cbranch_scc1 {l1}")
        a(f"s_cmp_lg_u32 s13, {i0}")
        a(f"s_cbranch_scc1 {le}")
        p4(i0)
        a(f"s_branch {le}")
        a.label(l1)
        p4(i0+1)
        a.label(le)
    p4_dispatch(0)
    st.stamp(a, "p4a")
    def loads(base, r):
        L = []
        for k in range(8):
            L.append(f"ds_read_b64 {V(base+4*k,2)}, v{vA} offset:{512*(7-k)+64*r}")
            L.append(f"ds_read_b64 {V(base+4*k+2,2)}, v{vA} offset:{512*(7-k)+64*r+8}")
            L.append(f"ds_read_b128 {V(base+32+4*k,4)}, v{vB} offset:{512*k+64*r}")
        return L
    pairs = sorted([(d, j) for d in range(8) for j in range(8) if d+j < 8], key=lambda p: (max(p), p[0]+p[1], p))
    for ln in loads(SET[0], 0): a(ln)
    for r in range(4):
        base = SET[r & 1]
        nxt = loads(SET[(r+1) & 1], r+1) if r < 3 else []
        seen = set(); lastk = -1; ni = 0
        if r > 0: a("s_waitcnt lgkmcnt(0)")
        for idx, (d, j) in enumerate(pairs):
            k = max(d, j)
            if r == 0 and k > lastk:
                if k < 3: a(f"s_waitcnt lgkmcnt({min(3*(7-k),15)})")
                elif k == 3: a("s_waitcnt lgkmcnt(0)")
                lastk = k
            i = d + j
            c = "0" if (r == 0 and i not in seen) else V(CA+4*i, 4)
            seen.add(i)
            a(f"v_mfma_f32_16x16x32_bf16 {V(CA+4*i,4)}, {V(base+4*d,4)}, {V(base+32+4*j,4)}, {c}")
            start = 9 if r == 0 else 1
            if idx >= start and ni < len(nxt) and not (r == 0 and False):
                a(nxt[ni]); ni += 1
        assert ni == len(nxt), (r, ni)
        if r < 3: st.stamp(a, f"c{r}")
    st.stamp(a, "own")
    p4_dispatch(2)
    st.stamp(a, "p4b")
    a(f"s_mul_i32 s9, s{sW}, 5120")
    a(f"s_add_u32 s9, s9, {XB}")
    a(f"v_lshl_add_u32 v2, v{vL}, 4, s9")
    a(f"s_xor_b32 s9, s{sW}, 1")
    a("s_mul_i32 s9, s9, 5120")
    a(f"s_add_u32 s9, s9, {XB}")
    a(f"v_lshl_add_u32 v3, v{vL}, 4, s9")
    srd(a, 52, P_WS, 2621440, WS_YT)
    a("v_lshlrev_b32 v4, 5, v6")
    a("v_lshl_add_u32 v4, v7, 3, v4")
    a(f"s_mul_i32 s9, s{sJ}, 20480")
    a(f"s_lshl_b32 s11, s{sW}, 11")
    a("s_add_u32 s56, s9, s11")
    a("s_sub_u32 s11, 7, s13")
    a("s_cmp_eq_u32 s12, 0")
    a("s_cselect_b32 s11, s13, s11")
    a("s_lshl_b32 s11, s11, 9")
    a("s_add_u32 s57, s9, s11")
    a("s_add_u32 s57, s57, 16384")
    l1 = a.newlabel("Ls_x1"); le = a.newlabel("Ls_xe")
    a("s_cmp_eq_u32 s12, 1")
    a(f"s_cbranch_scc1 {l1}")
    def fin(keep, send):
        for t in range(5):
            a(f"ds_write_b128 v2, {V(send[t],4)} offset:{1024*t}")
        a("s_waitcnt lgkmcnt(0)")
        a("s_barrier")
        for t in range(5):
            a(f"ds_read_b128 {V(64+4*t,4)}, v3 offset:{1024*t}")
        for t in range(5):
            a(f"s_waitcnt lgkmcnt({4-t})")
            a(f"v_pk_add_f32 {V(64+4*t,2)}, {V(64+4*t,2)}, {V(keep[t],2)}")
            a(f"v_pk_add_f32 {V(66+4*t,2)}, {V(66+4*t,2)}, {V(keep[t]+2,2)}")
            a(f"v_cvt_pk_bf16_f32 v{64+4*t}, v{64+4*t}, v{65+4*t}")
            a(f"v_cvt_pk_bf16_f32 v{65+4*t}, v{66+4*t}, v{67+4*t}")
            if t < 4: a(f"buffer_store_dwordx2 {V(64+4*t,2)}, v4, s[52:55], s56 offen offset:{512*t}")
            else: a(f"buffer_store_dwordx2 {V(64+4*t,2)}, v4, s[52:55], s57 offen")
    lo = [CA+4*t for t in range(4)] + [C4]; hi = [CA+16+4*t for t in range(4)] + [C4+4]
    fin(lo, hi)
    a(f"s_branch {le}")
    a.label(l1)
    fin(hi, lo)
    a.label(le)
```

```python
import sys
from common import *
from role_g import role_g
from role_s import role_s
from role_p2 import role_p2
diag = len(sys.argv) > 2 and sys.argv[2] == "diag"
HDR = open("gated_mix__ssm_conv_s4__linear_attn_block__prompt.s.ref").read().split("; Override launch")[0]
z = Asm()
z("s_load_dwordx2 s[4:5], s[0:1], 120")
z("s_lshl_b32 s3, s2, 12")
z("v_lshl_add_u32 v1, v0, 4, s3")
for r in range(4, 8): z(f"v_mov_b32 v{r}, 0")
z("s_waitcnt lgkmcnt(0)")
z("s_mov_b32 s6, 53760"); z("s_mov_b32 s7, 0x20000")
z("buffer_store_dwordx4 v[4:7], v1, s[4:7], 0 offen")
z("s_endpgm")
a = Asm(); stg = Stamps(diag); sts = Stamps(diag); sts.skip = {'c0','c1','c2'}
stg.start(a);
if diag: sts.names.append("start"); sts.n = 1
a("s_cmp_ge_u32 s2, 256")
a("s_cbranch_scc1 L1_end")
load_kernargs(a)
a("v_lshrrev_b32 v1, 6, v0")
a("v_readfirstlane_b32 s60, v1")
a("s_lshr_b32 s3, s2, 3")
a("s_cmp_ge_u32 s3, 16")
a("s_cbranch_scc1 L1_s")
a("s_and_b32 s61, s2, 6")
a("s_lshl_b32 s61, s61, 1")
a("s_lshr_b32 s4, s3, 2")
a("s_add_u32 s61, s61, s4")
a("s_and_b32 s62, s2, 1")
a("s_lshl_b32 s62, s62, 2")
a("s_and_b32 s3, s3, 3")
a("s_add_u32 s62, s62, s3")
role_g(a, stg, 61, 62, 60)
stg.flush(a, 2, 60)
a("s_endpgm")
a.label("L1_s")
a("s_and_b32 s61, s2, 7")
a("s_lshl_b32 s61, s61, 4")
a("s_and_b32 s62, s3, 15")
a("s_add_u32 s61, s61, s62")
a("s_and_b32 s62, s62, 3")
role_s(a, sts, 61, 62, 60)
sts.flush(a, 2, 60)
a.label("L1_end")
a("s_endpgm")
b = Asm(); b.uid = 1000; stp = Stamps(diag)
stp.start(b)
b("s_cmp_ge_u32 s2, 256")
b("s_cbranch_scc1 L2_end")
load_kernargs(b)
b("v_lshrrev_b32 v1, 6, v0")
b("v_readfirstlane_b32 s60, v1")
b("s_lshr_b32 s3, s2, 3")
b("s_and_b32 s61, s2, 6")
b("s_lshl_b32 s61, s61, 2")
b("s_lshr_b32 s4, s3, 2")
b("s_add_u32 s61, s61, s4")
b("s_and_b32 s62, s2, 1")
b("s_lshl_b32 s62, s62, 2")
b("s_and_b32 s3, s3, 3")
b("s_add_u32 s62, s62, s3")
role_p2(b, stp, 61, 62, 60)
b("s_add_u32 s63, s2, 256")
stp.flush(b, 63, 60)
b.label("L2_end")
b("s_endpgm")
txt = HDR
txt += "; @launch kernel=z_kernel grid=(14,1,1) block=(256,1,1) lds=0\n"
txt += "; @launch kernel=p1_kernel grid=(256,1,1) block=(512,1,1) lds=163840\n"
txt += "; @launch kernel=p2_kernel grid=(256,1,1) block=(512,1,1) lds=163840\n"
txt += '.amdgcn_target "amdgcn-amd-amdhsa--gfx950"\n.text\n' + kernel_text("z_kernel", z, 8) + kernel_text("p1_kernel", a, 224) + kernel_text("p2_kernel", b, 224)
txt += '.section .rodata,"a"\n' + descriptor("z_kernel", 8, 16) + descriptor("p1_kernel", 224, 100) + descriptor("p2_kernel", 224, 100)
if diag:
    txt += "; stampsG: " + ",".join(stg.names) + "|np.arange(128)\n"
    txt += "; stampsS: " + ",".join(sts.names) + "|np.arange(128,256)\n"
    txt += "; stampsP2: " + ",".join(stp.names) + "|np.arange(256,512)\n"
open(sys.argv[1], "w").write(txt)
```

```python
import re

def V(i, n=1):
    return f"v{i}" if n == 1 else f"v[{i}:{i+n-1}]"
def S(i, n=1):
    return f"s{i}" if n == 1 else f"s[{i}:{i+n-1}]"

class Asm:
    def __init__(self):
        self.lines = []
        self.uid = 0
    def __call__(self, text):
        for ln in text.split("\n"):
            ln = ln.strip()
            if ln:
                self.lines.append(ln)
    def label(self, name):
        self.lines.append(name + ":")
    def newlabel(self, base="L"):
        self.uid += 1
        return f"{base}_{self.uid}"
    def comment(self, t):
        self.lines.append("; " + t)

TRANS = ("v_exp_", "v_log_", "v_rcp_", "v_rsq_", "v_sqrt_", "v_sin_", "v_cos_")
_REG = re.compile(r"^-?\|?(?:abs\()?([vsa])(?:(\d+)|\[(\d+):(\d+)\])\)?\|?$")

def regs_of(tok):
    tok = tok.strip()
    if tok in ("vcc",): return {("s", 106), ("s", 107)}
    if tok == "vcc_lo": return {("s", 106)}
    if tok == "vcc_hi": return {("s", 107)}
    if tok == "exec": return {("s", 126), ("s", 127)}
    if tok == "m0": return {("s", 124)}
    m = _REG.match(tok)
    if not m: return set()
    f = m.group(1)
    if m.group(2) is not None:
        return {(f, int(m.group(2)))}
    return {(f, i) for i in range(int(m.group(3)), int(m.group(4)) + 1)}

def split_ops(s):
    out, depth, cur = [], 0, ""
    for ch in s:
        if ch in "[(": depth += 1
        if ch in "])": depth -= 1
        if ch == "," and depth == 0:
            out.append(cur.strip()); cur = ""
        else:
            cur += ch
    if cur.strip(): out.append(cur.strip())
    return out

class Ins:
    def __init__(self, line):
        self.line = line
        body = line.split(";")[0].strip()
        parts = body.split(None, 1)
        self.op = parts[0]
        ops = split_ops(parts[1]) if len(parts) > 1 else []
        if ops:
            last = ops[-1].split()
            self.mods = " ".join(last[1:])
            ops[-1] = last[0]
        else:
            self.mods = ""
        self.ops = ops
        op = self.op
        self.kind = "other"
        self.w = set(); self.r = set(); self.srcc = set(); self.ab = set(); self.passes = 0
        self.states = 1
        self.storedata = set()
        R = [regs_of(o) for o in ops]
        allr = set().union(*R) if R else set()
        if op == "s_nop":
            self.states = int(ops[0], 0) + 1; self.kind = "salu"
        elif op.startswith("v_mfma"):
            self.kind = "mfma"
            self.passes = 8 if "32x32" in op else 4
            self.w = R[0]; self.ab = R[1] | R[2]; self.srcc = R[3]; self.r = self.ab | self.srcc
        elif op.startswith("v_"):
            self.kind = "valu"
            if op.startswith("v_cmp"):
                self.w = set(R[0]); self.r = set().union(*R[1:])
                if op.startswith("v_cmpx"): self.w |= regs_of("exec")
            elif op.startswith(("v_readfirstlane", "v_readlane")):
                self.w = R[0]; self.r = set().union(*R[1:])
            elif op.startswith(("v_permlane", "v_swap")):
                self.w = R[0] | R[1]; self.r = R[0] | R[1]
            elif op.startswith(("v_add_co", "v_sub_co", "v_addc_co", "v_subb_co", "v_mad_u64", "v_div_scale")):
                self.w = R[0] | R[1]; self.r = set().union(*R[2:])
            else:
                self.w = R[0]; self.r = set().union(*R[1:]) if len(R) > 1 else set()
                if op.startswith(("v_fmac", "v_dot2c", "v_writelane", "v_fma_mix")) or "sdwa" in op or "dpp" in op:
                    self.r = self.r | R[0]
        elif op.startswith("ds_"):
            self.kind = "ds"
            if op.startswith(("ds_read", "ds_bpermute", "ds_permute", "ds_swizzle")) or "_rtn" in op:
                self.w = R[0]; self.r = set().union(*R[1:]) if len(R) > 1 else set()
            else:
                self.r = allr
            if "addtid" in op: self.r = self.r | regs_of("m0")
        elif op.startswith(("buffer_", "global_", "flat_")):
            self.kind = "vmem"
            lds = " lds" in (" " + self.mods) or "load_lds" in op
            if "load" in op and not lds:
                self.w = R[0]; self.r = set().union(*R[1:])
            elif lds:
                self.r = allr | regs_of("m0")
            else:
                self.r = allr
                if "atomic" in op and "sc0" in self.mods:
                    self.w = R[0]
                if "store" in op and op.endswith(("x3", "x4")):
                    self.storedata = R[0] if op.startswith("buffer_") else R[1]
        elif op.startswith("s_"):
            self.kind = "salu"
            if op.startswith(("s_cmp", "s_cbranch", "s_branch", "s_waitcnt", "s_barrier", "s_endpgm", "s_sleep", "s_setprio", "s_bitcmp")):
                self.r = allr
            else:
                self.w = set(R[0]) if R else set(); self.r = set().union(*R[1:]) if len(R) > 1 else set()
                if "saveexec" in op: self.w |= regs_of("exec")
        self.trans = op.startswith(TRANS)
        self.dpp = "dpp" in op or "row_" in self.mods or "quad_perm" in self.mods or "wave_" in self.mods

def isv(rs): return {r for r in rs if r[0] in "va"}
def iss(rs): return {r for r in rs if r[0] == "s"}

def required(p, c):
    n = 0
    if p.kind == "valu":
        vw, sw = isv(p.w), iss(p.w)
        if c.kind == "mfma" and vw & c.r: n = max(n, 2)
        if c.kind == "mfma" and sw & regs_of("exec"): n = max(n, 4)
        if c.kind == "valu":
            if p.trans and not c.trans and vw & (c.r): n = max(n, 1)
            if p.trans and c.trans and vw & c.r: n = max(n, 1)
            if c.op.startswith(("v_readfirstlane", "v_readlane")) and vw & c.r: n = max(n, 1)
            if c.op.startswith("v_permlane") and vw & c.r: n = max(n, 2)
            if c.dpp and vw & c.r: n = max(n, 2)
            if sw & c.r: n = max(n, 2)
            if c.op.startswith(("v_readlane", "v_writelane")) and sw & c.r: n = max(n, 4)
            if sw & regs_of("exec") and (c.dpp or c.op.startswith(("v_read", "v_writelane", "v_permlane"))): n = max(n, 5)
            if ("sdwa" in p.op or "mix" in p.op) and vw & (c.r | c.w): n = max(n, 1)
        if p.trans and c.kind in ("ds", "vmem") and vw & c.r: n = max(n, 1)
        if c.kind == "vmem" and sw & c.r: n = max(n, 5)
        if c.kind == "salu" and sw & c.r: n = max(n, 1)
    if p.kind == "salu":
        if ("s", 124) in p.w and c.kind in ("ds", "vmem") and ("s", 124) in c.r: n = max(n, 1)
    if p.kind == "vmem" and p.storedata & c.w:
        n = max(n, 2)
    if p.kind == "mfma":
        P = p.passes
        if c.kind == "mfma":
            if p.w & c.srcc:
                if not (p.w == c.srcc and p.passes == c.passes): n = max(n, P + 2)
            if p.w & c.ab: n = max(n, P + 4)
            if p.w & c.w and not (p.w == c.w and p.passes == c.passes): n = max(n, P + 2)
        elif c.kind in ("valu", "ds", "vmem"):
            if p.w & (c.r | c.w): n = max(n, P + 4)
            if c.kind == "valu" and p.srcc & c.w: n = max(n, P - 1)
    return n

def fix_hazards(lines):
    W = 14
    snaps = {}
    out = None
    for it in range(6):
        out = []
        state = []
        newsnaps = {}
        dead = False
        for ln in lines:
            s = ln.strip()
            if not s or s.startswith((";", ".", "//")) and not s.endswith(":"):
                out.append(ln); continue
            if s.endswith(":"):
                lab = s[:-1]
                if dead: state = []
                dead = False
                state = state + list(newsnaps.get(lab, [])) + list(snaps.get(lab, []))
                out.append(ln); continue
            c = Ins(s)
            need = 0
            for p, d in state:
                need = max(need, required(p, c) - d)
            if need > 0:
                out.append(f"s_nop {need-1}")
                state = [(p, d + need) for p, d in state]
            out.append(ln)
            state = [(p, d + c.states) for p, d in state if d + c.states < W]
            state.append((c, 0))
            if c.op.startswith(("s_cbranch", "s_branch")):
                newsnaps.setdefault(c.ops[0], []).extend(state)
                if c.op == "s_branch": dead = True
            if c.op == "s_endpgm": dead = True
        snaps = newsnaps
    return out

def kernel_text(name, asm, vgpr, sgpr=96, accum=None):
    body = "\n".join(("" if l.endswith(":") else "    ") + l for l in fix_hazards(asm.lines))
    return f".globl {name}\n.p2align 8\n.type {name},@function\n{name}:\n{body}\n"

def descriptor(name, vgpr, sgpr=96, accum=None):
    if accum is None: accum = min(256, (vgpr + 3)//4*4)
    return f""".p2align 6
.amdhsa_kernel {name}
  .amdhsa_next_free_vgpr {vgpr}
  .amdhsa_next_free_sgpr {sgpr}
  .amdhsa_accum_offset {accum}
  .amdhsa_group_segment_fixed_size 0
  .amdhsa_kernarg_size 128
  .amdhsa_user_sgpr_count 2
  .amdhsa_user_sgpr_kernarg_segment_ptr 1
  .amdhsa_system_sgpr_workgroup_id_x 1
.end_amdhsa_kernel
"""

class Auto:
    def __init__(self, a):
        self.a = a; self.q = []
    def __call__(self, line):
        for ln in line.split("\n"):
            ln = ln.strip()
            if not ln: continue
            c = Ins(ln)
            use = c.r | (c.w if c.kind != "ds" else c.w)
            last = -1
            for i, d in enumerate(self.q):
                if d & use: last = i
            if last >= 0:
                n = len(self.q) - 1 - last
                n = min(n, 15)
                self.a(f"s_waitcnt lgkmcnt({n})")
                self.q = self.q[len(self.q)-n:] if n else []
            self.a(ln)
            if c.kind == "ds": self.q.append(set(c.w))
    def drain(self):
        if self.q: self.a("s_waitcnt lgkmcnt(0)"); self.q = []
```

```python
from asmlib import *
P_U, P_ARE, P_AIM, P_BRE, P_BIM, P_CRE, P_CIM, P_LDT = 16, 18, 20, 22, 24, 26, 28, 30
P_DSK, P_BX, P_WQKV, P_WO, P_GATE, P_OUT, P_DBG, P_WS = 32, 34, 36, 38, 40, 42, 44, 46
WS_KV = 0
WS_G = 65536
WS_PQ = 1 << 20
WS_YT = 4 << 20
WS_STAMP = 8 << 20
LOG2E = "0x3fb8aa3b"
INV2PI = "0.15915494"

def load_kernargs(a):
    a("s_load_dwordx16 s[16:31], s[0:1], 0")
    a("s_load_dwordx16 s[32:47], s[0:1], 64")

def srd(a, d, base, nbytes, off=0):
    if off:
        a(f"s_add_u32 s{d}, s{base}, {off}")
        a(f"s_addc_u32 s{d+1}, s{base+1}, 0")
    else:
        a(f"s_mov_b32 s{d}, s{base}")
        a(f"s_mov_b32 s{d+1}, s{base+1}")
    a(f"s_mov_b32 s{d+2}, {nbytes}")
    a(f"s_mov_b32 s{d+3}, 0x20000")

class Stamps:
    def __init__(self, on, first=70):
        self.on = on; self.first = first; self.n = 0; self.names = []; self.skip = set()
    def stamp(self, a, name):
        if not self.on or name in self.skip: return
        assert self.n < 13
        a(f"s_memtime s[{self.first+2*self.n}:{self.first+2*self.n+1}]")
        self.names.append(name); self.n += 1
    def flush(self, a, slot_sreg, wave_sreg, vt=2):
        if not self.on: return
        a("s_waitcnt vmcnt(0) lgkmcnt(0)")
        a(f"s_memtime s[{self.first+2*self.n}:{self.first+2*self.n+1}]")
        a("s_memrealtime s[62:63]")
        a("s_waitcnt lgkmcnt(0)")
        self.names.append("end"); self.n += 1
        a(f"s_lshl_b32 s61, s{slot_sreg}, 3")
        a(f"s_add_u32 s61, s61, s{wave_sreg}")
        a("s_lshl_b32 s61, s61, 6")
        a(f"s_add_u32 s61, s61, {WS_STAMP}")
        a(f"v_mov_b32 v{vt}, s61")
        a("s_mov_b64 exec, 1")
        for i in range(self.n):
            a(f"v_mov_b32 v{vt+1}, s{self.first+2*i}")
            a(f"global_store_dword v{vt}, v{vt+1}, s[{P_WS}:{P_WS+1}] offset:{4*i}")
        a(f"v_mov_b32 v{vt+1}, s68")
        a(f"global_store_dword v{vt}, v{vt+1}, s[{P_WS}:{P_WS+1}] offset:56")
        a(f"v_mov_b32 v{vt+1}, s62")
        a(f"global_store_dword v{vt}, v{vt+1}, s[{P_WS}:{P_WS+1}] offset:60")
        a("s_waitcnt vmcnt(0)")
    def start(self, a):
        if not self.on: return
        a("s_memrealtime s[68:69]")
        self.stamp(a, "start")

def code_prefetch(a, n, wave):
    if not n: return
    l = a.newlabel("Lpf")
    a(f"s_cmp_lg_u32 s60, {wave}")
    a(f"s_cbranch_scc1 {l}")
    a("s_getpc_b64 s[4:5]")
    a.label(l + "_pc")
    a("v_and_b32 v1, 63, v0")
    a("v_lshlrev_b32 v1, 7, v1")
    for i in range(n):
        if i: a("v_add_u32 v1, 8192, v1")
        if i == n - 1: a(f"v_min_u32 v1, L_code_end-{l}_pc-4, v1")
        a("global_load_dword v231, v1, s[4:5]")
    a.label(l)
```

```python
from common import *
XSZ = 16384
SEGK = 10240; SEGV = 20480 + 16
STG = XSZ + 30720 + 32
RSTR = 6912
DUMP = 2 * RSTR

def interleave(a, main, fill, start=0, every=1):
    fi = 0
    for i, m in enumerate(main):
        a(m)
        if i >= start and (i - start) % every == 0 and fi < len(fill):
            a(fill[fi]); fi += 1
    for f in fill[fi:]: a(f)

def phi4(a, base, n, vL, tmp):
    for i in range(0, n, 2):
        a(f"v_pk_fma_f32 {V(tmp+i,2)}, {V(base+i,2)}, {V(vL,2)}, {V(vL,2)} op_sel_hi:[1,0,0] neg_lo:[0,0,1] neg_hi:[0,0,1]")
    for i in range(n):
        a(f"v_exp_f32_e64 v{tmp+i}, v{tmp+i} clamp")
    for i in range(n):
        a(f"v_max_f32 v{tmp+i}, v{tmp+i}, v{base+i}")
    for i in range(0, n, 2):
        a(f"v_pk_add_f32 {V(tmp+i,2)}, {V(tmp+i,2)}, {V(vL,2)} op_sel:[0,1] op_sel_hi:[1,1]")

def role_g(a, st, sRB, sG, sW, opt):
    LEAD = opt.get("lead", "A")
    vT, vL = 0, 1
    LQ = a.newlabel("Lg_q"); LE = a.newlabel("Lg_end")
    a(f"v_and_b32 v{vL}, 63, v{vT}")
    a(f"v_and_b32 v2, 15, v{vL}")
    a(f"v_lshrrev_b32 v3, 4, v{vL}")
    def common_addr():
        a("v_lshrrev_b32 v4, 1, v2")
        a("v_xor_b32 v4, v4, v3")
        a("v_lshlrev_b32 v4, 4, v4")
        a("v_lshl_add_u32 v4, v2, 7, v4")
        a("v_lshrrev_b32 v5, 1, v3")
        a("v_lshlrev_b32 v5, 4, v5")
        a("v_and_b32 v6, 1, v3")
        a("v_lshl_add_u32 v5, v6, 2, v5")
        a("v_lshrrev_b32 v6, 2, v2")
        a("v_add_u32 v5, v5, v6")
        a("v_mul_u32_u24 v5, 160, v5")
        a("v_and_b32 v6, 3, v2")
        a("v_lshl_add_u32 v5, v6, 3, v5")
        a(f"v_add_u32 v5, {XSZ}, v5")
        a(f"v_mov_b32 v8, {LOG2E}")
        a("v_mov_b32 v9, 0x358637bd")
    def advance():
        a(f"s_add_u32 s12, s12, {STG}")
        a(f"s_cmp_eq_u32 s12, {3*STG}")
        a("s_cselect_b32 s12, 0, s12")
    a(f"s_cmp_lt_u32 s{sW}, 4")
    a(f"s_cbranch_scc1 {LQ}")

    n0 = st.n
    cA0, cA1, cB, cM = 10, 11, 12, 13
    aA0, aA1, aB, aM = 14, 15, 16, 17
    a(f"s_setprio {opt.get('qprio', 2)}")
    ACC = 32; F = [72, 100]
    dX, dW = 18, 20
    a(f"s_mul_i32 s4, s{sRB}, {128*1280}")
    a(f"s_and_b32 s5, s{sW}, 3")
    a(f"v_lshrrev_b32 v28, 3, v{vL}")
    a("v_mul_u32_u24 v28, 1280, v28")
    a("s_lshl_b32 s6, s5, 2")
    a("v_add_u32 v29, s6, v3")
    a(f"v_xor_b32 v29, v29, v{vL}")
    a("v_and_b32 v29, 7, v29")
    a("v_lshl_add_u32 v28, v29, 4, v28")
    a("s_mul_i32 s6, s5, 10240")
    a("s_add_u32 s6, s6, s4")
    a(f"v_add_u32 v{dX}, s6, v28")
    a("s_lshl_b32 s14, s5, 10")
    a(f"s_mul_i32 s7, s{sG}, 160")
    a("s_lshl_b32 s6, s5, 6")
    a(f"v_add_u32 v31, s6, v{vL}")
    a("s_movk_i32 s8, 3840")
    a("s_movk_i32 s9, 1280")
    for t in range(8):
        a(f"v_add_u32 v28, {256*t}, v31")
        a("v_mul_u32_u24 v29, 6554, v28")
        a("v_lshrrev_b32 v29, 16, v29")
        a("v_mul_u32_u24 v30, 10, v29")
        a("v_sub_u32 v28, v28, v30")
        a("v_lshl_add_u32 v28, v28, 4, s7")
        a("v_lshrrev_b32 v30, 6, v29")
        a("v_mad_u32_u24 v28, v30, s9, v28")
        a("v_lshrrev_b32 v30, 1, v29")
        a("v_xor_b32 v30, v30, v29")
        a("v_and_b32 v30, 4, v30")
        a("v_mul_u32_u24 v30, 3, v30")
        a("v_bitop3_b32 v29, v29, v30, 63 bitop3:0x28")
        a(f"v_mad_u32_u24 v{dW+t}, v29, s8, v28")
    a("s_mov_b32 s15, s14"); a("s_mov_b32 s56, 0"); a("s_mov_b32 s57, 0")
    a("s_waitcnt lgkmcnt(0)")
    st.stamp(a, "karg")
    srd(a, 48, P_U, 2621440)
    srd(a, 52, P_WQKV, 2457600)
    def dmaX(t):
        return (f"s_add_u32 m0, s15, {4096*t}\ns_add_u32 s9, s56, {t*32*1280}\n"
                f"buffer_load_dwordx4 v{dX}, s[48:51], s9 offen lds")
    def dmaW(t):
        x = (f"s_add_u32 m0, s15, {XSZ + 4096*t + (16 if t >= 5 else 0)}\ns_nop 0\n"
             f"buffer_load_dwordx4 v{dW+t}, s[52:55], s57 offen lds")
        if t == 7:
            l = a.newlabel("Lg_sk")
            x = f"s_cmp_ge_u32 s5, 2\ns_cbranch_scc1 {l}\n{x}\n{l}:"
        return x
    D2 = lambda: [dmaX(0), dmaW(0), dmaW(1), dmaX(1), dmaW(2), dmaW(3)]
    D1 = lambda: [dmaX(2), dmaW(4), dmaW(5), dmaX(3), dmaW(6), dmaW(7)]
    def nextstage():
        a("s_add_u32 s56, s56, 128"); a(f"s_add_u32 s57, s57, {64*3840}")
    for x in D2() + D1(): a(x)
    if opt.get("probe"):
        st.stamp(a, "i0"); a("s_waitcnt vmcnt(10)"); st.stamp(a, "first"); a("s_waitcnt vmcnt(0)"); st.stamp(a, "s0")
    common_addr()
    a("s_lshl_b32 s8, s5, 12")
    a(f"v_add_u32 v{cA0}, s8, v4")
    a(f"v_xor_b32 v{cA1}, 64, v{cA0}")
    a(f"v_mov_b32 v{cB}, v5")
    a(f"v_lshl_add_u32 v{cM}, v6, 5, v5")
    for r in range(40): a(f"v_mov_b32 v{ACC+r}, 1.0")
    a(f"s_add_u32 s15, s15, {STG}"); nextstage()
    for x in D2() + D1(): a(x)
    a(f"s_add_u32 s15, s15, {STG}"); nextstage()
    if LEAD == "A":
        for x in D2(): a(x)
    def q_reads(f, ks):
        L = []
        aa = aA1 if ks else aA0
        o = ks*32*160
        L.append(f"ds_read_b128 {V(f,4)}, v{aa}")
        L.append(f"ds_read_b128 {V(f+4,4)}, v{aa} offset:2048")
        for ct in range(5):
            for h in range(2):
                L.append(f"ds_read_b64_tr_b16 {V(f+8+4*ct+2*h,2)}, v{aB if ct < 4 else aM} offset:{o+(40*ct if ct < 4 else 32)+h*1280}")
        if opt.get("noread"): return []
        return L
    def q_mfma(f):
        if opt.get("nomfma"): return ["s_nop 0"]*10
        return [f"v_mfma_f32_16x16x32_bf16 {V(ACC+20*rt+4*ct,4)}, {V(f+8+4*ct,4)}, {V(f+4*rt,4)}, {V(ACC+20*rt+4*ct,4)}" for ct in range(5) for rt in range(2)]
    def q_addr(): return [f"v_add_u32 v{d}, s12, v{c}" for d, c in ((aA0,cA0),(aB,cB),(aM,cM),(aA1,cA1))]
    def mix(m, r, d):
        out = []; ri = 0; di = 0
        n = len(m)
        for i, x in enumerate(m):
            while di < len(d) and di * n <= i * len(d):
                out.append(d[di]); di += 1
            out.append(x)
            for _ in range(2):
                if ri < len(r): out.append(r[ri]); ri += 1
        out += r[ri:] + d[di:]
        for x in out: a(x)
    a("s_mov_b32 s12, 0")
    for x in q_addr(): a(x)
    st.stamp(a, "pre")
    a(f"s_waitcnt vmcnt({17 if LEAD == 'A' else 11})")
    a("s_barrier")
    st.stamp(a, "B0")
    for x in q_reads(F[0], 0): a(x)
    def body(first, second, vm):
        a("s_waitcnt lgkmcnt(0)")
        mix(q_mfma(F[0]), q_reads(F[1], 1), first)
        if LEAD == "A":
            a("s_add_u32 s15, s12, s14"); nextstage()
        else:
            a("s_add_u32 s58, s12, s14")
        advance()
        for x in q_addr(): a(x)
        a(f"s_waitcnt vmcnt({vm}) lgkmcnt(0)")
        a("s_barrier")
        mix(q_mfma(F[1]), q_reads(F[0], 0), second)
        if LEAD != "A":
            a("s_mov_b32 s15, s58"); nextstage()
    GX, GW = 128, 148
    gl = []
    for i in range(5):
        gl.append(f"global_load_dwordx4 {V(GX+4*i,4)}, v28, s[{P_U}:{P_U+1}] offset:{256*i}")
        gl.append(f"global_load_dwordx4 {V(GW+4*i,4)}, v29, s[{P_GATE}:{P_GATE+1}] offset:{256*i}")
    a(f"s_mov_b32 s13, {7 if LEAD == 'A' else 8}")
    LL = a.newlabel("Lg_ql")
    a.label(LL)
    if opt.get("nodma"): body([], [], 0)
    elif LEAD == "A": body(D1(), D2(), 11)
    else: body(D2(), D1(), 6)
    a("s_sub_u32 s13, s13, 1")
    a("s_cmp_lg_u32 s13, 0")
    a(f"s_cbranch_scc1 {LL}")
    a(f"s_lshl_b32 s7, s{sG}, 4")
    a("s_lshl_b32 s8, s5, 2")
    a("s_add_u32 s7, s7, s8")
    a("s_mul_i32 s8, s7, 1280")
    a("s_add_u32 s8, s8, s4")
    a("v_mul_u32_u24 v28, 1280, v3")
    a("v_lshlrev_b32 v29, 4, v2")
    a("v_add3_u32 v28, v28, v29, s8")
    if LEAD == "A":
        body(D1(), [], 11)
    body(gl, [], 10)
    a("s_waitcnt vmcnt(0) lgkmcnt(0)")
    a("v_mov_b32 v30, 0"); a("v_mov_b32 v31, 0")
    dots = [f"v_dot2_f32_bf16 v{30+(i&1)}, v{GX+i}, v{GW+i}, v{30+(i&1)}" for i in range(20)]
    mix(q_mfma(F[0]), q_reads(F[1], 1), dots)
    a("s_nop 2")
    a("v_add_f32 v30, v30, v31")
    for sh in (1, 2, 4, 8):
        a(f"v_add_f32_dpp v30, v30, v30 row_shr:{sh} row_mask:0xf bank_mask:0xf")
    a(f"v_mul_f32 v30, 0xbfb8aa3b, v30")
    a("v_exp_f32 v30, v30")
    a("v_add_f32 v30, 1.0, v30")
    a("v_rcp_f32 v30, v30")
    a(f"s_lshl_b32 s8, s{sRB}, 7")
    a("s_add_u32 s8, s8, s7")
    a("s_lshl_b32 s8, s8, 2")
    a(f"s_add_u32 s8, s8, {WS_G}")
    a("v_lshl_add_u32 v31, v3, 2, s8")
    a("s_mov_b32 exec_lo, 0x80008000"); a("s_mov_b32 exec_hi, 0x80008000")
    a(f"global_store_dword v31, v30, s[{P_WS}:{P_WS+1}]")
    a("s_mov_b64 exec, -1")
    a("s_waitcnt lgkmcnt(0)")
    a("s_barrier")
    a("s_setprio 0")
    for x in q_mfma(F[1]): a(x)
    st.stamp(a, "loop")
    srd(a, 48, P_WS, 2621440, WS_PQ)
    a("v_lshrrev_b32 v28, 1, v3")
    a("v_lshlrev_b32 v28, 9, v28")
    a("v_lshl_add_u32 v28, v2, 4, v28")
    a("v_and_b32 v29, 1, v3")
    a("v_lshl_add_u32 v28, v29, 3, v28")
    a(f"s_lshl_b32 s6, s{sRB}, 2")
    a("s_add_u32 s6, s6, s5")
    a("s_mul_i32 s6, s6, 40960")
    a(f"s_mul_i32 s7, s{sG}, 5120")
    a("s_add_u32 s6, s6, s7")
    a("s_add_u32 s7, s6, 4096")
    TM = 72
    for rt in range(2):
        t = TM + 20*rt
        if rt == opt.get("qbar", 1):
            st.stamp(a, "epi"); a("s_barrier")
        phi4(a, ACC+20*rt, 20, 8, t)
        for ct in range(5):
            a(f"v_cvt_pk_bf16_f32 v{t+4*ct}, v{t+4*ct}, v{t+4*ct+1}")
            a(f"v_cvt_pk_bf16_f32 v{t+4*ct+1}, v{t+4*ct+2}, v{t+4*ct+3}")
            so, off = (6, 1024*ct + 256*rt) if ct < 4 else (7, 256*rt)
            a(f"buffer_store_dwordx2 {V(t+4*ct,2)}, v28, s[48:51], s{so} offen offset:{off}")
    st.stamp(a, "epi2")
    a(f"s_branch {LE}")

    ACC = 32; F = [112, 148]
    cA0, cA1, cB, cM = 10, 11, 12, 13
    aA0, aA1, aB, aM = 14, 15, 16, 17
    SC = 18
    a.label(LQ)
    st.n = n0; st.names = st.names[:n0]
    common_addr()
    a(f"s_and_b32 s5, s{sW}, 1")
    a(f"s_lshr_b32 s6, s{sW}, 1")
    a("s_mov_b32 s14, 0")
    a(f"s_lshl_b32 s7, s{sG}, 2")
    a("v_mov_b32 v28, s7")
    a("v_mov_b32 v29, 1")
    a("s_waitcnt lgkmcnt(0)")
    st.stamp(a, "karg")
    if opt.get("probe"):
        st.stamp(a, "i0"); st.stamp(a, "first"); st.stamp(a, "s0")
    a(f"s_mul_i32 s8, s{sG}, 6720")
    a(f"s_add_u32 s52, s{P_WS}, s8")
    a(f"s_addc_u32 s53, s{P_WS+1}, 0")
    a("s_mov_b32 s54, 6720")
    a("s_mov_b32 s55, 0x20000")
    lz = a.newlabel("Lg_nz")
    a(f"s_cmp_lg_u32 s{sW}, 0")
    a(f"s_cbranch_scc1 {lz}")
    a("s_mov_b64 exec, 1")
    a(f"global_atomic_add v184, v28, v29, s[{P_DBG}:{P_DBG+1}] sc0")
    a("s_mov_b64 exec, -1")
    a.label(lz)
    a("s_lshl_b32 s8, s6, 13")
    a(f"v_add_u32 v{cA0}, s8, v4")
    a(f"v_xor_b32 v{cA1}, 64, v{cA0}")
    a("s_mul_i32 s8, s5, 80")
    a(f"s_add_u32 s8, s8, {SEGK}")
    a(f"v_add_u32 v{cB}, s8, v5")
    a("v_cmp_lt_u32 vcc, 1, v6")
    a(f"v_mov_b32 v30, 64")
    a(f"v_mov_b32 v31, {SEGV-SEGK-16}")
    a("v_cndmask_b32 v30, v30, v31, vcc")
    a(f"v_add_u32 v{cM}, v{cB}, v30")
    a("v_cmp_gt_u32 s[10:11], 8, v2")
    a("v_cndmask_b32 v30, 0, 1.0, s[10:11]")
    for rt in range(4):
        for ct in range(5):
            for j in range(4):
                src = "1.0" if ct < 2 else ("v30" if ct == 2 else "0")
                a(f"v_mov_b32 v{ACC+20*rt+4*ct+j}, {src}")
    pairs = [(0,2),(0,3),(1,2),(1,3),(1,4),(2,3),(2,4)]
    a(f"s_mul_i32 s8, s6, {RSTR}")
    a("s_mul_i32 s9, s5, 3360")
    a("s_add_u32 s8, s8, s9")
    a(f"v_lshlrev_b32 v31, 2, v{vL}")
    a(f"v_add_u32 v31, {DUMP}, v31")
    T = 112
    for kt in range(3):
        a(f"v_add_u32 v30, {16*kt}, v2")
        a(f"v_mul_u32_u24 v{T+kt}, 13, v30")
        a(f"v_lshrrev_b32 v{T+kt}, 8, v{T+kt}")
        a(f"v_mul_u32_u24 v{T+4+kt}, 1600, v{T+kt}")
        a(f"v_lshl_add_u32 v{T+4+kt}, v30, 2, v{T+4+kt}")
        a(f"v_add_u32 v{T+4+kt}, s8, v{T+4+kt}")
    for vt in range(2, 5):
        a(f"v_lshl_add_u32 v30, v3, 2, {16*vt-20}")
        a(f"v_mul_u32_u24 v{T+8+vt}, 13, v30")
        a(f"v_lshrrev_b32 v{T+8+vt}, 8, v{T+8+vt}")
        a(f"v_mul_u32_u24 v{T+16+vt}, 20, v{T+8+vt}")
        a(f"v_sub_u32 v{T+16+vt}, v30, v{T+16+vt}")
        a(f"v_mul_u32_u24 v{T+16+vt}, 80, v{T+16+vt}")
        a(f"v_add_u32 v{T+8+vt}, -1, v{T+8+vt}")
    for i, (kt, vt) in enumerate(pairs):
        a(f"v_cmp_eq_u32 vcc, v{T+kt}, v{T+8+vt}")
        a(f"v_add_u32 v30, v{T+4+kt}, v{T+16+vt}")
        a(f"v_cndmask_b32 v{SC+i}, v31, v30, vcc")
    for kt in range(3):
        a(f"v_lshl_add_u32 v30, v3, 2, v{T+kt}")
        a("v_cmp_gt_u32 vcc, 2, v30")
        a(f"v_add_u32 v30, 1600, v{T+4+kt}")
        a(f"v_cndmask_b32 v{SC+7+kt}, v31, v30, vcc")
    lz = a.newlabel("Lg_nz")
    a(f"s_cmp_lg_u32 s{sW}, 0")
    a(f"s_cbranch_scc1 {lz}")
    a("s_waitcnt vmcnt(0)")
    a("v_readfirstlane_b32 s8, v184")
    a("s_cmp_lg_u32 s8, 0")
    a(f"s_cbranch_scc1 {lz}")
    a("s_mov_b32 s14, 1")
    for r in range(184, 188): a(f"v_mov_b32 v{r}, 0")
    a(f"v_lshlrev_b32 v30, 4, v{vL}")
    a("v_add_u32 v31, 4096, v30")
    for i in range(7):
        a(f"buffer_store_dwordx4 v[184:187], v{30+(i>>2)}, s[52:55], 0 offen offset:{1024*(i&3)} sc0 sc1")
    a.label(lz)
    def kv_reads(f, ks):
        L = []
        aa = aA1 if ks else aA0
        o = ks*32*160
        bo = [(aB, 0), (aB, 32), (aM, 0), (aB, SEGV-SEGK+16), (aB, SEGV-SEGK+48)]
        L.append(f"ds_read_b128 {V(f,4)}, v{aa}")
        for ct in range(5):
            for h in range(2):
                L.append(f"ds_read_b64_tr_b16 {V(f+16+4*ct+2*h,2)}, v{bo[ct][0]} offset:{o+bo[ct][1]+h*1280}")
        for rt in range(1, 4):
            L.append(f"ds_read_b128 {V(f+4*rt,4)}, v{aa} offset:{2048*rt}")
        if opt.get("noread"): return []
        return L
    def kv_mfma(f):
        if opt.get("nomfma"): return ["s_nop 0"]*20
        return [f"v_mfma_f32_16x16x32_bf16 {V(ACC+20*rt+4*ct,4)}, {V(f+4*rt,4)}, {V(f+16+4*ct,4)}, {V(ACC+20*rt+4*ct,4)}" for rt in range(4) for ct in range(5)]
    def kv_addr(): return [f"v_add_u32 v{d}, s12, v{c}" for d, c in ((aA0,cA0),(aB,cB),(aM,cM),(aA1,cA1))]
    a("s_mov_b32 s12, 0"); a("s_mov_b32 s13, 9")
    a("s_mul_i32 s14, s14, 6")
    for x in kv_addr(): a(x)
    st.stamp(a, "pre")
    a("s_barrier")
    st.stamp(a, "B0")
    for x in kv_reads(F[0], 0): a(x)
    LL = a.newlabel("Lg_kvl")
    a.label(LL)
    a("s_waitcnt lgkmcnt(0)")
    m = kv_mfma(F[0])
    interleave(a, m[:16], kv_reads(F[1], 1))
    advance()
    interleave(a, m[16:], kv_addr())
    a("s_waitcnt lgkmcnt(0)")
    a("s_barrier")
    interleave(a, kv_mfma(F[1]), kv_reads(F[0], 0))
    lz = a.newlabel("Lg_nf")
    a("s_cmp_lg_u32 s13, s14")
    a(f"s_cbranch_scc1 {lz}")
    a("s_waitcnt vmcnt(0)")
    a("s_mov_b64 exec, 1")
    a(f"global_store_dword v28, v29, s[{P_DBG}:{P_DBG+1}] offset:64 sc0 sc1")
    a("s_mov_b64 exec, -1")
    a.label(lz)
    a("s_sub_u32 s13, s13, 1")
    a("s_cmp_lg_u32 s13, 0")
    a(f"s_cbranch_scc1 {LL}")
    a("s_waitcnt lgkmcnt(0)")
    interleave(a, kv_mfma(F[0]), kv_reads(F[1], 1))
    a(f"global_load_dword v184, v28, s[{P_DBG}:{P_DBG+1}] offset:64 sc0 sc1")
    a("s_waitcnt lgkmcnt(0)")
    a("s_barrier")
    a("s_setprio 3")
    for x in kv_mfma(F[1]): a(x)
    st.stamp(a, "loop")
    P = 188
    TM = 112
    ONE = 132
    for j in range(4): a(f"v_mov_b32 v{ONE+j}, 0x3f803f80")
    KD = 136
    for rt in range(4):
        b = ACC + 20*rt
        phi4(a, b, 12, 8, TM)
        for j in range(4):
            a(f"v_cndmask_b32 v{TM+8+j}, v{b+8+j}, v{TM+8+j}, s[10:11]")
        for ct in range(5):
            s = TM + 4*ct if ct < 3 else b + 4*ct
            d = P + 8*ct + 2*rt
            a(f"v_cvt_pk_bf16_f32 v{d}, v{s}, v{s+1}")
            a(f"v_cvt_pk_bf16_f32 v{d+1}, v{s+2}, v{s+3}")
    for kp in range(2):
        for i, (kt, vt) in enumerate(pairs):
            c = "0" if kp == 0 else V(KD+4*i, 4)
            a(f"v_mfma_f32_16x16x32_bf16 {V(KD+4*i,4)}, {V(P+8*vt+4*kp,4)}, {V(P+8*kt+4*kp,4)}, {c}")
        for kt in range(3):
            c = "0" if kp == 0 else V(KD+28+4*kt, 4)
            a(f"v_mfma_f32_16x16x32_bf16 {V(KD+28+4*kt,4)}, {V(ONE,4)}, {V(P+8*kt+4*kp,4)}, {c}")
    for i in range(7):
        a(f"ds_write2_b32 v{SC+i}, v{KD+4*i}, v{KD+4*i+1} offset0:0 offset1:20")
        a(f"ds_write2_b32 v{SC+i}, v{KD+4*i+2}, v{KD+4*i+3} offset0:40 offset1:60")
    for kt in range(3):
        a(f"ds_write_b32 v{SC+7+kt}, v{KD+28+4*kt}")
    a(f"v_lshlrev_b32 v2, 2, v{vT}")
    a("v_add_u32 v3, 4096, v2")
    lp = a.newlabel("Lg_poll"); lo = a.newlabel("Lg_ok")
    a("s_mov_b32 s13, 0x20000")
    a.label(lp)
    a("s_waitcnt vmcnt(0)")
    a("v_readfirstlane_b32 s8, v184")
    a("s_cmp_lg_u32 s8, 0")
    a(f"s_cbranch_scc1 {lo}")
    a(f"global_load_dword v184, v28, s[{P_DBG}:{P_DBG+1}] offset:64 sc0 sc1")
    a("s_sub_u32 s13, s13, 1")
    a("s_cmp_lg_u32 s13, 0")
    a(f"s_cbranch_scc1 {lp}")
    a.label(lo)
    st.stamp(a, "epi")
    a("s_waitcnt lgkmcnt(0)")
    a("s_barrier")
    for i in range(7):
        a(f"ds_read2st64_b32 {V(4+2*i,2)}, v2 offset0:{4*i} offset1:{4*i+27}")
    for i in range(7):
        a(f"s_waitcnt lgkmcnt({6-i})")
        a(f"v_add_f32 v{4+2*i}, v{4+2*i}, v{5+2*i}")
        a(f"buffer_atomic_add_f32 v{4+2*i}, v{2 + (i >> 2)}, s[52:55], 0 offen offset:{1024*(i&3)}")
    st.stamp(a, "epi2")
    a.label(LE)
```

```python
from common import *
import stab
TROW = 2064
T_Z = 24 * TROW
DB = 56 * TROW
KSTR = 2112; KCH = 4 * KSTR
UB = 5 * KCH
USTR = 4608
XB = UB + 5 * USTR
UNITS = [4, 512, 6, 1792, 1, 260, 1024, 2, 7, None, 5, 256, 772, 258, 3, 516, 2048, 0, 1536, 768, 1280, 262]
HS, RS, ZW = 33, 69, 767
def unit_row(u):
    k = u >> 1
    return 8*(k >> 2) + 4*(u & 1) + (k & 3)

def tables_text():
    _, addr = stab.cost(UNITS, HS, RS, ZW)
    t = ".p2align 8\nL_tab_band:\n"
    b = stab.band_table().reshape(-1).view("uint32")
    for i in range(0, len(b), 8):
        t += "    .long " + ", ".join(hex(int(x)) for x in b[i:i+8]) + "\n"
    t += "L_tab_src:\n"
    addr = [4*x for x in addr]
    for i in range(0, len(addr), 16):
        t += "    .short " + ", ".join(str(x) for x in addr[i:i+16]) + "\n"
    return t

def cmul(a, t, x, m):
    a(f"v_pk_mul_f32 {V(t,2)}, {V(x,2)}, {V(m,2)} op_sel:[0,0] op_sel_hi:[0,1]")
    a(f"v_pk_fma_f32 {V(t,2)}, {V(x,2)}, {V(m,2)}, {V(t,2)} op_sel:[1,1,0] op_sel_hi:[1,0,1] neg_lo:[0,1,0]")

TW, TX, TG, TO = 37, 38, 39, 33
def touch_setup1(a, sJ):
    a(f"s_and_b32 s48, s{sJ}, 15")
    a(f"s_lshr_b32 s49, s{sJ}, 4")
    a("v_min_u32 v64, 59, v1")
    a("v_mul_u32_u24 v65, 52, v64")
    a("v_lshrrev_b32 v65, 8, v65")
    a("v_mul_u32_u24 v66, 640, v65")
    a("v_lshl_add_u32 v66, v64, 7, v66")
    a("s_and_b32 s50, s49, 1")
    a("s_mul_i32 s50, s50, 640")
    a("s_mul_i32 s13, s48, 15360")
    a("s_add_u32 s13, s13, s50")
    a(f"v_add_u32 v{TW}, s13, v66")
    a("v_and_b32 v64, 31, v1")
    a("v_mul_u32_u24 v64, 1280, v64")
    a("v_lshrrev_b32 v65, 5, v1")
    a("v_lshl_add_u32 v64, v65, 7, v64")
    a("s_lshr_b32 s12, s49, 1")
    a("s_lshl_b32 s12, s12, 4")
    a("s_add_u32 s12, s12, s48")
    a("s_mul_i32 s12, s12, 40960")
    a(f"v_add_u32 v{TX}, s12, v64")
def touch_setup2(a, sJ):
    a("s_mul_i32 s13, s48, 51200")
    a("s_add_u32 s13, s13, s50")
    a(f"v_add_u32 v{TO}, s13, v66")
    a("s_mul_i32 s12, s49, 160")
    a("s_and_b32 s12, s12, -128")
    a("s_mul_i32 s13, s48, 163840")
    a("s_add_u32 s12, s12, s13")
    a(f"v_add_u32 v{TG}, s12, v64")
TU = 30
def touch_setupU(a, sJ):
    a("v_min_u32 v64, 29, v1")
    a("v_cmp_lt_u32 vcc, 14, v64")
    a(f"v_mov_b32 v65, {64*3840 - 15*128}")
    a("v_cndmask_b32 v65, 0, v65, vcc")
    a("v_lshl_add_u32 v64, v64, 7, v65")
    a(f"s_mul_i32 s12, s{sJ}, 1920")
    a("v_add_u32 v64, s12, v64")
    a("v_and_b32 v65, 15, v1")
    a("v_mul_u32_u24 v65, 1280, v65")
    a("v_bfe_u32 v67, v1, 4, 1")
    a("v_lshl_add_u32 v65, v67, 7, v65")
    a(f"s_mul_i32 s12, s{sJ}, 20480")
    a("v_add_u32 v65, s12, v65")
    a("v_cmp_lt_u32 vcc, 31, v1")
    a("v_cndmask_b32 v64, v64, v65, vcc")
    a(f"v_mov_b32 v65, {2*64*3840}")
    a("v_mov_b32 v67, 256")
    a(f"v_cndmask_b32 v{TU+2}, v65, v67, vcc")
def touch_setupU2(a):
    a(f"v_mov_b32 v{TU}, s{P_WQKV}")
    a(f"v_mov_b32 v{TU+1}, s{P_WQKV+1}")
    a(f"v_mov_b32 v65, s{P_U}")
    a(f"v_mov_b32 v67, s{P_U+1}")
    a(f"v_cndmask_b32 v{TU}, v{TU}, v65, vcc")
    a(f"v_cndmask_b32 v{TU+1}, v{TU+1}, v67, vcc")
    a(f"v_add_co_u32 v{TU}, vcc, v{TU}, v64")
    a(f"v_addc_co_u32 v{TU+1}, vcc, 0, v{TU+1}, vcc")
CNT = {"W": 0, "x": 0, "g": 0, "o": 0, "U": 0, "u": 0}
def do_touches(a, seq, opt, lpc, regs=None):
    if opt.get("notouch"): return
    w, x, g, o = regs or (TW, TX, TG, TO)
    for t in seq.split():
        if t in CNT: CNT[t] += 1
        if t == "W":
            a(f"global_load_dword v231, v{w}, s[{P_WQKV}:{P_WQKV+1}]"); a(f"v_add_u32 v{w}, {64*3840}, v{w}")
        elif t == "x":
            a(f"global_load_dword v231, v{x}, s[{P_U}:{P_U+1}] offset:{256*(CNT['x']-1)}")
        elif t == "g":
            a(f"global_load_dword v231, v{g}, s[{P_U}:{P_U+1}]"); a(f"v_add_u32 v{g}, 40960, v{g}")
        elif t == "o":
            a(f"v_min_u32 v{o}, 819196, v{o}")
            a(f"global_load_dword v231, v{o}, s[{P_WO}:{P_WO+1}]"); a(f"v_add_u32 v{o}, 15360, v{o}")
        elif t in "Uu":
            if t == "U": a(f"global_load_dword v231, {V(TU,2)}, off")
            a(f"v_add_co_u32 v{TU}, vcc, v{TU}, v{TU+2}")
            a(f"v_addc_co_u32 v{TU+1}, vcc, 0, v{TU+1}, vcc")
        elif t == "c":
            a("v_lshlrev_b32 v230, 7, v1")
            a(f"v_add_u32 v230, p2_kernel-{lpc}, v230")
            a(f"v_min_u32 v230, L_code_end-{lpc}-4, v230")
            a("global_load_dword v231, v230, s[64:65]")
        else:
            a(f"s_waitcnt vmcnt({t})")
    assert CNT["W"] <= 10 and CNT["x"] <= 5 and CNT["g"] <= 4 and CNT["U"] + CNT["u"] <= 5
def w7(a, sW, fn):
    l = a.newlabel("Ls_w7")
    a(f"s_cmp_lg_u32 s{sW}, 7")
    a(f"s_cbranch_scc1 {l}")
    fn()
    a.label(l)

def role_s_pro(a, st, sJ, sW, opt):
    a("v_and_b32 v1, 63, v0")
    for r in range(2, 9): a(f"v_mov_b32 v{r}, 0")
    a(f"s_mul_i32 s4, s{sJ}, 1920")
    a(f"s_lshl_b32 s5, s{sW}, 8")
    a("s_add_u32 s4, s4, s5")
    a("v_lshl_add_u32 v42, v1, 1, s4")
    a(f"s_mul_i32 s7, s{sW}, 0xAAAC")
    a("s_lshr_b32 s6, s7, 16")
    a(f"s_mul_i32 s8, s{sJ}, 10")
    a("s_lshl_b32 s9, s6, 1")
    a("s_add_u32 s9, s9, s8")
    a("v_mov_b32 v43, s9")
    touch_setupU(a, sJ)
    a("s_waitcnt lgkmcnt(0)")
    st.stamp(a, "karg")
    ploads(a, 2, 42, 43)
    touch_setupU2(a)
    w7(a, sW, lambda: do_touches(a, opt.get("t0", "U"), opt, None))

def ploads(a, base, va, vld):
    PB, PC, PARE, PAIM, PLDT = 2, 4, 6, 7, 8
    a(f"global_load_short_d16_hi v{base+PLDT-2}, v{vld}, s[{P_LDT}:{P_LDT+1}]")
    for reg, p in ((PARE, P_ARE), (PAIM, P_AIM), (PB, P_BRE), (PB+1, P_BIM), (PC, P_CRE), (PC+1, P_CIM)):
        a(f"global_load_short_d16_hi v{base+reg-2}, v{va}, s[{p}:{p+1}]")

def role_s(a, st, sJ, sX, sW, opt={}):
    vT, vL = 0, 1
    PB, PC, PARE, PAIM, PLDT = 2, 4, 6, 7, 8
    EA = 34
    vTR, vFL = 40, 41
    ACC = 48
    BAND = 200
    u0 = UNITS.index(0)
    lpc = a.newlabel("Ls_pc")
    a("s_getpc_b64 s[64:65]")
    a.label(lpc)
    for r in range(10, 18): a(f"v_mov_b32 v{r}, 0")
    a("s_add_u32 s7, s7, 0x5556")
    a("s_lshr_b32 s7, s7, 16")
    a("s_min_u32 s7, s7, 4")
    a("s_lshl_b32 s9, s7, 1")
    a("s_add_u32 s9, s9, s8")
    a("v_mov_b32 v44, s9")
    a("v_add_u32 v42, 128, v42")
    a("v_min_u32 v42, 245758, v42")
    ploads(a, 10, 42, 44)
    a(f"global_load_short_d16_hi v17, v43, s[{P_DSK}:{P_DSK+1}]")
    a(f"v_lshlrev_b32 v46, 2, v{vT}")
    a(f"v_add_u32 v46, L_tab_src-{lpc}, v46")
    a(f"global_load_dwordx2 {V(EA,2)}, v46, s[64:65]")
    for r in range(ACC, ACC+16): a(f"v_mov_b32 v{r}, 0")
    a(f"s_lshr_b32 s10, 0x92, s{sW}")
    a("s_and_b32 s10, s10, 1")
    a("s_and_b32 s9, s8, -4")
    a("s_movk_i32 s11, 2560")
    a("v_mov_b32 v46, s9")
    a(f"v_mad_u32_u24 v45, v{vT}, s11, v46")
    srd(a, 52, P_U, 2621440)
    a("s_mov_b32 s58, 1")
    touch_setup1(a, sJ); touch_setup2(a, sJ)
    touches = lambda seq: do_touches(a, seq, opt, lpc)
    a(f"v_mov_b32 v46, 0")
    a("s_movk_i32 s11, 3072")
    a(f"v_min_u32 v47, 9, v{vT}")
    a(f"v_mul_u32_u24 v47, s11, v47")
    a(f"v_add_u32 v47, {DB+4*ZW}, v47")
    a("ds_write_b32 v47, v46")
    a(f"v_and_b32 v46, 31, v{vL}")
    a(f"v_lshrrev_b32 v47, 5, v{vL}")
    a(f"v_mad_u32_u24 v9, v47, {HS}, v46")
    a(f"v_mul_u32_u24 v46, {TROW}, v46")
    a(f"v_lshl_add_u32 v46, v47, 4, v46")
    a(f"v_add_u32 v{vTR}, s5, v46")
    a("s_mov_b32 s56, 0")
    a(f"s_add_u32 s57, s5, {T_Z}")
    a("s_waitcnt vmcnt(9)")
    st.stamp(a, "params")
    LK = a.newlabel("Ls_kgen")
    a.label(LK)
    Z1, Z8, Z256, DT, WW = 128, 130, 132, 134, 136
    T0 = 140
    a(f"v_mul_f32 v{DT}, {LOG2E}, v{PLDT}")
    a(f"v_exp_f32 v{DT}, v{DT}")
    cmul(a, T0, PC, PB)
    a(f"v_cvt_pk_bf16_f32 v{DT}, v{DT}, v{DT}")
    a(f"v_and_b32 v{DT}, 0xffff0000, v{DT}")
    a(f"v_mul_f32 v{PARE}, v{DT}, v{PARE}")
    a(f"v_mul_f32 v{PAIM}, v{DT}, v{PAIM}")
    a(f"v_pk_mul_f32 {V(WW,2)}, {V(T0,2)}, {V(DT,2)} op_sel_hi:[1,0]")
    a(f"v_mul_f32 v{PARE}, {LOG2E}, v{PARE}")
    a(f"v_mul_f32 v{PAIM}, {INV2PI}, v{PAIM}")
    a(f"v_exp_f32 v{T0}, v{PARE}")
    a(f"v_rndne_f32 v{T0+2}, v{PAIM}")
    a(f"v_sub_f32 v{PAIM}, v{PAIM}, v{T0+2}")
    a(f"v_cos_f32 v{Z1}, v{PAIM}")
    a(f"v_sin_f32 v{Z1+1}, v{PAIM}")
    a(f"v_mul_f32 v{PARE}, 0x43800000, v{PARE}")
    a(f"v_mul_f32 v{PAIM}, 0x43800000, v{PAIM}")
    a(f"v_pk_mul_f32 {V(Z1,2)}, {V(Z1,2)}, {V(T0,2)} op_sel_hi:[1,0]")
    a(f"v_exp_f32 v{T0+2}, v{PARE}")
    a(f"v_cos_f32 v{Z256}, v{PAIM}")
    a(f"v_sin_f32 v{Z256+1}, v{PAIM}")
    cmul(a, Z8, Z1, Z1)
    a(f"v_pk_mul_f32 {V(Z256,2)}, {V(Z256,2)}, {V(T0+2,2)} op_sel_hi:[1,0]")
    cmul(a, T0, Z8, Z8)
    cmul(a, Z8, T0, T0)
    l = a.newlabel("Ls_r0")
    a("s_cmp_eq_u32 s58, 0")
    a(f"s_cbranch_scc1 {l}")
    a("s_waitcnt vmcnt(0)")
    lo, hi = ("exec_hi", "exec_lo") if u0 & 1 else ("exec_lo", "exec_hi")
    a(f"s_xor_b32 {lo}, s10, 1")
    a(f"s_mov_b32 {hi}, 0")
    a(f"v_mov_b32 v{ACC+(u0>>1)}, v17")
    a("s_mov_b64 exec, -1")
    a(f"v_and_b32 v{EA+2}, 0xffff, v{EA+1}")
    a(f"v_lshrrev_b32 v{EA+1}, 16, v{EA}")
    a(f"v_and_b32 v{EA}, 0xffff, v{EA}")
    for k in range(3): a(f"v_add_u32 v{EA+k}, {DB}, v{EA+k}")
    a(f"s_cmp_lt_u32 s{sW}, 5")
    a(f"s_cbranch_scc1 {l}")
    a(f"v_lshlrev_b32 v46, 4, v{vL}")
    a(f"v_add_u32 v46, L_tab_band-{lpc}+2048, v46")
    for t in range(6):
        a(f"global_load_dwordx4 {V(BAND+4*t,4)}, v46, s[64:65] offset:{1024*t-2048}")
    a(f"s_cmp_lg_u32 s{sW}, 7")
    a(f"s_cbranch_scc1 {l}")
    touches(opt.get("t1", "U U"))
    a.label(l)
    CV = 176
    class Pipe:
        def __init__(s): s.pc = None; s.pw = None; s.n = 0
        def step(s, entry):
            w = s.pw
            if s.pc is not None:
                src, off, neg = s.pc
                r = CV + (s.n % 4); s.n += 1
                a(f"v_cvt_pk_bf16_f32 v{r}, v{src}, {'-' if neg else ''}v{src+1}")
                s.pw = (r, off)
            else: s.pw = None
            if w: a(f"ds_write_addtid_b32 v{w[0]} offset:{w[1]}")
            s.pc = entry
        def drain(s):
            s.step(None); s.step(None)
    a("s_mov_b32 m0, s5")
    p = Pipe()
    uo = lambda pp: unit_row(UNITS.index(pp)) * TROW
    Wreg = {0: WW}
    p.step((WW, uo(0), True))
    for k in range(1, 8):
        Wreg[k] = 144 + 2*k
        cmul(a, Wreg[k], Wreg[k-1], Z1); p.step((Wreg[k], uo(k), True))
    rot = [160, 162, 164, 166]; ri = 0
    for base, cnt in ((0, 8), (4, 3), (2, 1), (6, 1)):
        src = Wreg[base]
        for e in range(1, cnt+1):
            d = rot[ri % 4]; ri += 1
            cmul(a, d, src, Z256); p.step((d, uo(base + 256*e), True)); src = d
    a(f"v_mov_b32 v{T0}, 0x3f80")
    p.drain()
    a("s_mov_b32 m0, s57")
    p = Pipe()
    a(f"ds_write_addtid_b32 v{T0} offset:0")
    p.step((Z8, TROW, False))
    src = Z8
    for q in range(2, 32):
        d = rot[ri % 4]; ri += 1
        cmul(a, d, src, Z8); p.step((d, q*TROW, False)); src = d
        if q == opt.get("q2", 16) and opt.get("t2", "x"): w7(a, sW, lambda: touches(opt.get("t2", "U U")))
    p.drain()
    a("s_waitcnt lgkmcnt(0)")
    FR = 64
    for ks in range(8):
        a(f"ds_read_b128 {V(FR+8*ks,4)}, v{vTR} offset:{32*ks}")
        a(f"ds_read_b128 {V(FR+8*ks+4,4)}, v{vTR} offset:{T_Z+32*ks}")
    a("s_mul_i32 s9, s6, 6144")
    a("s_mul_i32 s11, s10, 3072")
    a("s_add_u32 s9, s9, s11")
    a(f"s_add_u32 s9, s9, {DB}")
    a(f"v_lshl_add_u32 v{vFL}, v9, 2, s9")
    for r in range(2, 9):
        a(f"v_mov_b32 v{r}, v{r+8}")
    for ks in range(8):
        a(f"s_waitcnt lgkmcnt({14-2*ks})")
        a(f"v_mfma_f32_32x32x16_bf16 {V(ACC,16)}, {V(FR+8*ks,4)}, {V(FR+8*ks+4,4)}, {V(ACC,16)}")
    lnf = a.newlabel("Ls_noflush"); lkd = a.newlabel("Ls_kdone")
    a("s_or_b32 s9, s10, s56")
    a(f"s_cbranch_scc0 {lnf}")
    for k in range(11):
        a(f"ds_write_b32 v{vFL}, v{ACC+k} offset:{4*RS*k}")
    for k in range(11):
        a(f"v_mov_b32 v{ACC+k}, 0")
    a.label(lnf)
    a("s_mov_b32 s6, s7")
    a("s_mov_b32 s58, 0")
    a(f"s_cmp_eq_u32 s{sW}, 7")
    a(f"s_cbranch_scc1 {lkd}")
    a("s_xor_b32 s56, s56, 1")
    a(f"s_cbranch_scc1 {LK}")
    a.label(lkd)
    st.stamp(a, "kgen")
    GA = [128 + 4*i for i in range(8)]
    l7 = a.newlabel("Ls_k7"); lg = a.newlabel("Ls_ng")
    a(f"s_cmp_ge_u32 s{sW}, 4")
    a(f"s_cbranch_scc1 {l7}")
    for i in range(8):
        if i and not i & 1: a(f"v_add_u32 v45, {512*1280}, v45")
        a(f"buffer_load_dwordx3 {V(GA[i],3)}, v45, s[52:55], 0 offen offset:{1280*(i&1)}")
    a(f"s_branch {lg}")
    a.label(l7)
    a("s_waitcnt vmcnt(0)")
    a(f"s_cmp_lg_u32 s{sW}, 7")
    a(f"s_cbranch_scc1 {lg}")
    touches(opt.get("t3", "g g g g"))
    a.label(lg)
    st.stamp(a, "gather")
    a(f"v_mul_u32_u24 v13, 2185, v{vT}")
    a("v_lshrrev_b32 v13, 16, v13")
    a(f"v_mul_u32_u24 v13, {USTR-480}, v13")
    a(f"v_lshl_add_u32 v13, v{vT}, 4, v13")
    for r in range(20, 24): a(f"v_mov_b32 v{r}, 0")
    a(f"v_and_b32 v14, 15, v{vL}")
    a(f"v_lshrrev_b32 v15, 4, v{vL}")
    a("v_and_b32 v16, 3, v14")
    a("v_sub_u32 v16, 3, v16")
    a(f"v_mul_u32_u24 v16, {KSTR}, v16")
    a("v_lshrrev_b32 v17, 2, v14")
    a("v_sub_u32 v17, 3, v17")
    a("v_lshl_add_u32 v16, v17, 3, v16")
    a("v_lshlrev_b32 v17, 5, v14")
    a("v_lshl_add_u32 v18, v15, 3, v17")
    a("v_lshl_add_u32 v17, v15, 4, v17")
    a(f"v_add_u32 v17, {UB}, v17")
    a("s_waitcnt lgkmcnt(0)")
    a("s_barrier")
    st.stamp(a, "B1")
    ER = 64
    for c in range(5):
        for k in range(3):
            a(f"ds_read2st64_b32 {V(ER+6*c+2*k,2)}, v{EA+k} offset0:{24*c} offset1:{24*c+12}")
    a(f"v_cmp_gt_u32 vcc, 150, v{vT}")
    a("s_and_saveexec_b64 s[12:13], vcc")
    a(f"ds_write_b128 v13, v[20:23] offset:{UB}")
    a("s_mov_b64 exec, s[12:13]")
    a("s_mov_b32 m0, s5")
    a("s_waitcnt lgkmcnt(1)")
    for c in range(5):
        b = ER + 6*c
        for k in range(3):
            a(f"v_add_f32 v{b+2*k}, v{b+2*k}, v{b+2*k+1}")
        a(f"v_cvt_pk_bf16_f32 v{b+1}, v{b}, v{b+2}")
        a(f"v_cvt_pk_bf16_f32 v{b+3}, v{b+2}, v{b+4}")
        o = c*KCH
        a(f"ds_write_addtid_b32 v{b+1} offset:{o}")
        a(f"ds_write_addtid_b32 v{b+3} offset:{o+KSTR}")
        a(f"ds_write_addtid_b32 v{b+1} offset:{o+2*KSTR-4}")
        a(f"ds_write_addtid_b32 v{b+3} offset:{o+3*KSTR-4}")
    l = a.newlabel("Ls_nu")
    a(f"s_cmp_ge_u32 s{sW}, 4")
    a(f"s_cbranch_scc1 {l}")
    a("s_and_b32 s9, s8, 2")
    a("s_lshl_b32 s9, s9, 3")
    a("s_mov_b32 s11, 0x05040100")
    a("s_mov_b32 s12, 0x07060302")
    for g in range(4):
        a(f"s_waitcnt vmcnt({6-2*g})")
        for i in (2*g, 2*g+1):
            r = GA[i]
            a(f"v_alignbit_b32 v{r}, v{r+1}, v{r}, s9")
            a(f"v_alignbit_b32 v{r+1}, v{r+2}, v{r+1}, s9")
            a(f"v_lshrrev_b32 v{r+2}, s9, v{r+2}")
        for c in range(5):
            a(f"v_perm_b32 v{100+5*g+c}, v{GA[2*g+1]+(c>>1)}, v{GA[2*g]+(c>>1)}, s{11+(c&1)}")
        for c in range(5):
            a(f"ds_write_addtid_b32 v{100+5*g+c} offset:{UB + c*USTR + 480 + 1024*g}")
    a.label(l)
    LD = a.newlabel("Ls_dil"); LE = a.newlabel("Ls_end")
    a(f"s_cmp_ge_u32 s{sW}, 5")
    a(f"s_cbranch_scc1 {LD}")
    n0 = st.n
    vA, vB, vX = 2, 3, 4
    a(f"s_mul_i32 s9, s{sW}, {KCH}")
    a("v_lshl_add_u32 v2, v15, 4, v16")
    a(f"v_add_u32 v{vA}, s9, v2")
    a(f"s_mul_i32 s9, s{sW}, {USTR}")
    a(f"v_add_u32 v{vB}, s9, v17")
    a(f"s_mul_i32 s9, s{sW}, 10240")
    a(f"s_add_u32 s9, s9, {XB}")
    a(f"v_lshl_add_u32 v{vX}, v{vL}, 4, s9")
    srd(a, 52, P_WS, 2621440, WS_YT)
    a(f"s_mul_i32 s9, s{sJ}, 5")
    a(f"s_add_u32 s9, s9, s{sW}")
    a("s_lshl_b32 s56, s9, 12")
    a("s_waitcnt lgkmcnt(0)")
    a("s_barrier")
    st.stamp(a, "B2")
    CA = 24; AF = 56; BF = 128; NB = 12
    au = Auto(a)
    Areg = lambda x: AF + 4*(x + 7)
    def rdA(x):
        off = 64*(9 - x) if x <= 9 else 1120
        return [f"ds_read_b64 {V(Areg(x),2)}, v{vA} offset:{off}", f"ds_read_b64 {V(Areg(x)+2,2)}, v{vA} offset:{off+8}"]
    rdB = lambda m: f"ds_read_b128 {V(BF+4*(m % NB),4)}, v{vB} offset:{64*m}"
    groups = []
    for m in range(64):
        g = []
        if m < 8:
            g += rdA(-m) + rdA(8-m)
            if m == 7: g += rdA(9) + rdA(10)
        g.append(rdB(m)); groups.append(g)
    seen = set()
    def mf(i, x, m):
        c = V(CA+4*i, 4) if i in seen else "0"
        seen.add(i)
        return f"v_mfma_f32_16x16x32_bf16 {V(CA+4*i,4)}, {V(Areg(x),4)}, {V(BF+4*(m % NB),4)}, {c}"
    def fin_tile(i, em):
        em(f"v_cvt_pk_bf16_f32 v{CA+4*i}, v{CA+4*i}, v{CA+4*i+1}")
        em(f"v_cvt_pk_bf16_f32 v{CA+4*i+1}, v{CA+4*i+2}, v{CA+4*i+3}")
        em(f"buffer_store_dwordx2 {V(CA+4*i,2)}, v18, s[52:55], s56 offen offset:{512*i}")
    flat = [x for g in groups for x in g]
    gend = []; n = 0
    for g in groups: n += len(g); gend.append(n)
    ni = 0
    for _ in range(gend[2]): au(flat[ni]); ni += 1
    for m in range(64):
        j, r = m >> 3, m & 7
        ms = [mf(j, -r, m)]
        if j < 7: ms.append(mf(j+1, 8-r, m))
        if r == 7 and j < 6: ms.append(mf(j+2, 9, m))
        if r == 7 and j < 4: ms.append(mf(j+4, 10, m))
        lim = gend[min(63, m + NB - 2)]
        for x in ms:
            au(x)
            for _ in range(3 if m < 8 else 1):
                if ni < lim: au(flat[ni]); ni += 1
        if m == 20: fin_tile(0, au)
        if m == 28: fin_tile(1, au)
    assert ni == len(flat)
    st.stamp(a, "conv")
    a("s_barrier")
    st.stamp(a, "B3")
    au = Auto(a)
    R = 56
    for t in range(10): au(f"ds_read_b128 {V(R+4*t,4)}, v{vX} offset:{1024*t}")
    for i in range(2, 8):
        for t in ([i-2] + ([i+2] if i >= 4 else [])):
            au(f"v_pk_add_f32 {V(CA+4*i,2)}, {V(CA+4*i,2)}, {V(R+4*t,2)}")
            au(f"v_pk_add_f32 {V(CA+4*i+2,2)}, {V(CA+4*i+2,2)}, {V(R+4*t+2,2)}")
        fin_tile(i, au)
    a(f"s_branch {LE}")
    a.label(LD)
    st.n = n0; st.names = st.names[:n0]
    a("s_setprio 1")
    for k, r in enumerate((TW, TX, TG, TO)): a(f"v_mov_b32 v{226+k}, v{r}")
    a("v_lshl_add_u32 v16, v15, 3, v16")
    a(f"v_lshlrev_b32 v19, 4, v{vL}")
    a(f"v_add_u32 v19, {XB}, v19")
    a(f"s_cmp_eq_u32 s{sW}, 6")
    a("s_movk_i32 s56, 0x198")
    a("s_cselect_b32 s56, 0x3ba, s56")
    a(f"s_cmp_eq_u32 s{sW}, 7")
    a("s_cselect_b32 s56, 0x425c, s56")
    a("s_waitcnt lgkmcnt(0)")
    a("s_barrier")
    st.stamp(a, "B2")
    w7(a, sW, lambda: do_touches(a, opt.get("t4", "o o"), opt, lpc, (226, 227, 228, 229)))
    LU = a.newlabel("Ls_unit"); L3 = a.newlabel("Ls_u3"); LN = a.newlabel("Ls_un")
    a.label(LU)
    a("s_bitcmp1_b32 s56, 3")
    a("s_cselect_b32 s11, 8, 1")
    a("s_and_b32 s9, s56, 15")
    a("s_sub_u32 s9, s9, s11")
    a(f"s_mul_i32 s12, s9, {KCH}")
    a("v_add_u32 v2, s12, v16")
    a(f"s_mul_i32 s12, s9, {USTR}")
    a("v_add_u32 v3, s12, v17")
    a("s_mul_i32 s12, s9, 10240")
    a("v_add_u32 v4, s12, v19")
    a("s_cmp_eq_u32 s11, 1")
    a(f"s_cbranch_scc1 {L3}")
    TP = 24; WN = 48; BX = 96; OP = 128; DA = 144
    def unit(types, d0, nd, nJ, toff, tlen, tbase, xoff):
        au = Auto(a)
        npair = len(types)//2
        rdW = lambda J: [f"ds_read_b128 {V(WN+8*J+4*k,4)}, v3 offset:{512*J+432+16*k}" for k in range(2)]
        def rdT(di): return [f"ds_read_b64 {V(TP+4*(di*npair+(ti>>1))+2*(ti&1),2)}, v2 offset:{2*(toff+tlen*ti+tbase-16*(d0+di))}" for ti in range(len(types))]
        def box(J): return [f"v_mfma_f32_16x16x32_bf16 {V(BX+16*(J&1)+4*ti,4)}, {V(WN+8*J+(0 if stab.W0[ty] == -24 else 4),4)}, {V(BAND+4*ty,4)}, 0" for ti, ty in enumerate(types)]
        def cvt(J): return [f"v_cvt_pk_bf16_f32 v{OP+8*(J&1)+k}, v{BX+16*(J&1)+2*k}, v{BX+16*(J&1)+2*k+1}" for k in range(2*len(types))]
        seen = set()
        def main(J):
            L = []
            for pi in range(npair):
                for di in range(nd):
                    i = J + d0 + di
                    if i > 7: continue
                    acc = DA + 4*(i - d0)
                    c = V(acc, 4) if i in seen else "0"
                    seen.add(i)
                    L.append(f"v_mfma_f32_16x16x32_bf16 {V(acc,4)}, {V(OP+8*(J&1)+4*pi,4)}, {V(TP+4*(di*npair+pi),4)}, {c}")
            return L
        later = [x for di in range(nd) for x in rdT(di)] + [x for J in range(3, nJ) for x in rdW(J)]
        for J in range(3):
            for x in rdW(J): au(x)
        li = 0
        def emit(ms, fill, nread=2):
            nonlocal li
            fi = 0
            for x in ms:
                au(x)
                for _ in range(nread):
                    if li < len(later): au(later[li]); li += 1
                for _ in range(2):
                    if fi < len(fill): au(fill[fi]); fi += 1
            for x in fill[fi:]: au(x)
        emit(box(0), [])
        emit(box(1), [])
        for x in cvt(0): au(x)
        for J in range(nJ):
            emit(main(J), cvt(J+1) if J+1 < nJ else [])
            if J + 2 < nJ: emit(box(J+2), [])
            if J >= 1: au(f"ds_write_b128 v4, {V(DA+4*(J-1),4)} offset:{xoff+1024*(J-1)}")
        au(f"ds_write_b128 v4, {V(DA+4*(nJ-1),4)} offset:{xoff+1024*(nJ-1)}")
        assert li == len(later)
    unit([0,1,2,3], 2, 3, 6, 608, 64, 64, 0)
    w7(a, sW, lambda: do_touches(a, opt.get("t5", "o o c"), opt, lpc, (226, 227, 228, 229)))
    a(f"s_branch {LN}")
    a.label(L3)
    unit([4,5], 4, 4, 4, 864, 80, 112, 6144)
    a.label(LN)
    a("s_lshr_b32 s56, s56, 4")
    a(f"s_cbranch_scc1 {LU}")
    a("s_waitcnt lgkmcnt(0)")
    st.stamp(a, "conv")
    a("s_barrier")
    st.stamp(a, "B3")
    a.label(LE)
```

```python
import numpy as np, itertools, random
def bf16round(s):
    u = np.array([s], np.float32).view(np.uint32)[0]
    u = ((int(u) + 0x7FFF + ((int(u) >> 16) & 1)) >> 16) << 16
    return int(np.array([u], np.uint32).view(np.float32)[0])
TYPES = [(0,2,1),(4,1,0),(8,2,0),(12,1,0),(0,4,1),(8,3,0)]
W0 = [-24,-16,-16,-16,-24,-16]
def elem_src():
    src = []
    for t in range(560):
        s = 543 - t
        src.append(bf16round(s) if 0 <= s <= 514 else None)
    for t in range(48):
        s = 1055 - t
        src.append(1024 if s in (1027, 1028) else None)
    for ty in range(4):
        phi, h, sg = TYPES[ty]
        for t in range(64):
            mu = 79 - t
            src.append(16*(mu+sg)+phi if 32 <= mu <= 63 else None)
    for ty in (4, 5):
        phi, h, sg = TYPES[ty]
        for t in range(80):
            mu = 127 - t
            src.append(16*(mu+sg)+phi if 64 <= mu <= 127 else None)
    assert len(src) == 1024
    return src + [None, None]
ROWS = [256*u for u in range(9)] + [4 + 256*u for u in range(4)] + [2, 258, 6, 262, 1, 5, 3, 7]
def cost(order, HS, RS, zero):
    pos = {p: (u >> 1)*RS + (u & 1)*HS for u, p in enumerate(order) if p is not None}
    src = elem_src.cache
    addr = [zero if l is None else pos[(l & 7) + 256*(l >> 8)] + ((l >> 3) & 31) for l in src]
    c = 0
    for e in range(3):
        for g in range(16):
            banks = {}
            for t in range(32*g, 32*g+32):
                a = addr[2*t+e]; banks.setdefault(a % 32, set()).add(a)
            c += max(len(v) for v in banks.values())
    return c, addr
elem_src.cache = elem_src()
def search(seed=1):
    rnd = random.Random(seed); best = None
    for HS in range(32, 44):
        for RS in range(HS+32, 70):
            if 10*RS + HS + 32 >= 767: continue
            order = ROWS + [None]
            c, _ = cost(order, HS, RS, 767)
            for it in range(300):
                i, j = rnd.sample(range(22), 2)
                order[i], order[j] = order[j], order[i]
                c2, _ = cost(order, HS, RS, 767)
                if c2 <= c: c = c2
                else: order[i], order[j] = order[j], order[i]
            if best is None or c < best[0]: best = (c, list(order), HS, RS)
    return best
def band_table():
    T = np.zeros((6, 64, 8), np.uint16)
    for ty, (phi, h, sg) in enumerate(TYPES):
        for l in range(64):
            a, kg = l & 15, l >> 4
            for j in range(8):
                if abs((W0[ty] + 8*kg + j) - (a - 16*sg - phi)) <= h: T[ty, l, j] = 0x3f80
        assert (T[ty].reshape(4,16,8).transpose(1,0,2).reshape(16,32) != 0).sum(1).tolist() == [2*h+1]*16
    return T
if __name__ == "__main__":
    print(cost(ROWS+[None], 32, 64, 767)[0], "baseline (48 = conflict free)")
    print(search())
```

```python
import sys
from common import *
from role_g import role_g
from role_s import role_s, role_s_pro, tables_text
from role_p2 import role_p2
diag = len(sys.argv) > 2 and sys.argv[2] == "diag"
opt = eval(sys.argv[3]) if len(sys.argv) > 3 else {}
HDR = open("gated_mix__ssm_conv_s4__linear_attn_block__prompt.s.ref").read().split("; Override launch")[0]
z = Asm()
z("s_load_dwordx2 s[4:5], s[0:1], 120")
z("s_lshl_b32 s3, s2, 12")
z("v_lshl_add_u32 v1, v0, 4, s3")
for r in range(4, 8): z(f"v_mov_b32 v{r}, 0")
z("s_waitcnt lgkmcnt(0)")
z("s_mov_b32 s6, 53760"); z("s_mov_b32 s7, 0x20000")
z("buffer_store_dwordx4 v[4:7], v1, s[4:7], 0 offen")
z("s_endpgm")
a = Asm(); stg = Stamps(diag); sts = Stamps(diag); sts.skip = {'c0','c1','c2'}
stg.start(a);
if diag: sts.names.append("start"); sts.n = 1
a("s_cmp_ge_u32 s2, 256")
a("s_cbranch_scc1 L1_end")
load_kernargs(a)
a("v_lshrrev_b32 v1, 6, v0")
a("v_readfirstlane_b32 s60, v1")
code_prefetch(a, opt.get("pf1", 4), 3)
a("s_lshr_b32 s3, s2, 3")
a("s_cmp_lt_u32 s3, 16")
a("s_cbranch_scc1 L1_g")
if opt.get("nos"): a("s_endpgm")
a("s_and_b32 s61, s2, 7")
a("s_lshl_b32 s61, s61, 4")
a("s_and_b32 s62, s3, 15")
a("s_add_u32 s61, s61, s62")
a("s_and_b32 s62, s62, 3")
role_s_pro(a, sts, 61, 60, opt)
a("s_branch L1_s")
a.label("L1_g")
if opt.get("nog"): a("s_endpgm")
a("s_and_b32 s61, s2, 6")
a("s_lshl_b32 s61, s61, 1")
a("s_lshr_b32 s4, s3, 2")
a("s_add_u32 s61, s61, s4")
a("s_and_b32 s62, s2, 1")
a("s_lshl_b32 s62, s62, 2")
a("s_and_b32 s3, s3, 3")
a("s_add_u32 s62, s62, s3")
role_g(a, stg, 61, 62, 60, opt)
stg.flush(a, 2, 60)
a("s_endpgm")
a.label("L1_s")
role_s(a, sts, 61, 62, 60, opt)
sts.flush(a, 2, 60)
a.label("L1_end")
a("s_endpgm")
b = Asm(); b.uid = 1000; stp = Stamps(diag)
stp.start(b)
b("s_cmp_ge_u32 s2, 256")
b("s_cbranch_scc1 L2_end")
load_kernargs(b)
b("v_lshrrev_b32 v1, 6, v0")
b("v_readfirstlane_b32 s60, v1")
code_prefetch(b, opt.get("pf2", 1), 3)
b("s_lshr_b32 s3, s2, 3")
b("s_and_b32 s61, s2, 6")
b("s_lshl_b32 s61, s61, 2")
b("s_lshr_b32 s4, s3, 2")
b("s_add_u32 s61, s61, s4")
b("s_and_b32 s62, s2, 1")
b("s_lshl_b32 s62, s62, 2")
b("s_and_b32 s3, s3, 3")
b("s_add_u32 s62, s62, s3")
role_p2(b, stp, 61, 62, 60)
b("s_add_u32 s3, s2, 256")
stp.flush(b, 3, 60)
b.label("L2_end")
b("s_endpgm")
b.label("L_code_end")
txt = HDR
txt += "; @launch kernel=p1_kernel grid=(256,1,1) block=(512,1,1) lds=163840\n"
txt += "; @launch kernel=p2_kernel grid=(256,1,1) block=(512,1,1) lds=163840\n"
txt += '.amdgcn_target "amdgcn-amd-amdhsa--gfx950"\n.text\n' + kernel_text("p1_kernel", a, 232) + tables_text() + kernel_text("p2_kernel", b, 232)
txt += '.section .rodata,"a"\n' + descriptor("p1_kernel", 232, 100) + descriptor("p2_kernel", 232, 100)
if diag:
    txt += "; stampsG: " + ",".join(stg.names) + "|np.arange(128)\n"
    txt += "; stampsS: " + ",".join(sts.names) + "|np.arange(128,256)\n"
    txt += "; stampsP2: " + ",".join(stp.names) + "|np.arange(256,512)\n"
open(sys.argv[1], "w").write(txt)
```

```python
import sys
sys.path.insert(0,'gen')
from common import *
s=open('h_b.s').read()
l1="; @launch kernel=p1_kernel grid=(256,1,1) block=(512,1,1) lds=163840\n"
sizes = {P_U:2621440,P_ARE:245760,P_AIM:245760,P_BRE:245760,P_BIM:245760,P_CRE:245760,P_CIM:245760,P_LDT:1280,P_DSK:1280,P_WQKV:2457600,P_WO:819200,P_GATE:1280,P_OUT:2621440,P_WS:7<<20}
def mk(name, mode):
    a=Asm()
    a("s_cmp_ge_u32 s2, 256"); a("s_cbranch_scc1 Lpre_end")
    load_kernargs(a)
    a("s_waitcnt lgkmcnt(0)")
    if mode=="tlb2m" or mode=="tlb64k" or mode == "tlb4k":
        sh = {"tlb2m":21,"tlb64k":16,"tlb4k":12}[mode]
        if mode == "tlb4k":
            a("s_lshr_b32 s3, s2, 3"); a("s_lshl_b32 s3, s3, 6"); a("v_add_u32 v0, s3, v0")
        a(f"v_lshlrev_b32 v1, {sh}, v0")
        for p,sz in sizes.items():
            srd(a,4,p,sz); a("buffer_load_dword v2, v1, s[4:7], 0 offen")
            if mode=="tlb64k" and sz > (4<<20):
                a("v_add_u32 v3, 0x400000, v1"); a("buffer_load_dword v2, v3, s[4:7], 0 offen")
    if mode=="data":
        a("s_lshl_b32 s3, s2, 13"); a("v_lshl_add_u32 v1, v0, 7, s3"); a("v_add_u32 v3, 0x200000, v1")
        for p,sz in sizes.items():
            if p in (P_OUT,P_WS): continue
            srd(a,4,p,sz); a("buffer_load_dword v2, v1, s[4:7], 0 offen")
            if sz > (2<<20): a("buffer_load_dword v2, v3, s[4:7], 0 offen")
    a("s_waitcnt vmcnt(0)")
    a.label("Lpre_end"); a("s_endpgm")
    t=s.replace(l1,"; @launch kernel=pre_kernel grid=(256,1,1) block=(64,1,1) lds=0\n"+l1)
    t=t.replace(".text\n",".text\n"+kernel_text("pre_kernel",a,8),1)
    t=t.replace('.section .rodata,"a"\n','.section .rodata,"a"\n'+descriptor("pre_kernel",8,64))
    open(name,'w').write(t)
mk('h_p0.s','none'); mk('h_p1.s','tlb2m'); mk('h_p2.s','tlb64k'); mk('h_p3.s','data'); mk('h_p4.s','tlb4k')
```

```python
from asmlib import *
P_U, P_ARE, P_AIM, P_BRE, P_BIM, P_CRE, P_CIM, P_LDT = 16, 18, 20, 22, 24, 26, 28, 30
P_DSK, P_BX, P_WQKV, P_WO, P_GATE, P_OUT, P_DBG, P_WS = 32, 34, 36, 38, 40, 42, 44, 46
WS_KV = 0
WS_CNT = 131072
WS_G = 65536
WS_PQ = 1 << 20
WS_YT = 4 << 20
WS_STAMP = 8 << 20
LOG2E = "0x3fb8aa3b"
INV2PI = "0.15915494"

def load_kernargs(a):
    a("s_load_dwordx16 s[16:31], s[0:1], 0")
    a("s_load_dwordx16 s[32:47], s[0:1], 64")

def srd(a, d, base, nbytes, off=0):
    if off:
        a(f"s_add_u32 s{d}, s{base}, {off}")
        a(f"s_addc_u32 s{d+1}, s{base+1}, 0")
    else:
        a(f"s_mov_b32 s{d}, s{base}")
        a(f"s_mov_b32 s{d+1}, s{base+1}")
    a(f"s_mov_b32 s{d+2}, {nbytes}")
    a(f"s_mov_b32 s{d+3}, 0x20000")

class Stamps:
    def __init__(self, on, first=70):
        self.on = on; self.first = first; self.n = 0; self.names = []; self.skip = set()
    def stamp(self, a, name):
        if not self.on or name in self.skip: return
        assert self.n < 13, self.names
        a(f"s_memtime s[{self.first+2*self.n}:{self.first+2*self.n+1}]")
        self.names.append(name); self.n += 1
    def flush(self, a, slot_sreg, wave_sreg, vt=2):
        if not self.on: return
        a("s_waitcnt vmcnt(0) lgkmcnt(0)")
        a(f"s_memtime s[{self.first+2*self.n}:{self.first+2*self.n+1}]")
        a("s_memrealtime s[62:63]")
        a("s_waitcnt lgkmcnt(0)")
        self.names.append("end"); self.n += 1
        a(f"s_lshl_b32 s61, s{slot_sreg}, 3")
        a(f"s_add_u32 s61, s61, s{wave_sreg}")
        a("s_lshl_b32 s61, s61, 6")
        a(f"s_add_u32 s61, s61, {WS_STAMP}")
        a(f"v_mov_b32 v{vt}, s61")
        a("s_mov_b64 exec, 1")
        for i in range(self.n):
            a(f"v_mov_b32 v{vt+1}, s{self.first+2*i}")
            a(f"global_store_dword v{vt}, v{vt+1}, s[{P_WS}:{P_WS+1}] offset:{4*i}")
        a(f"v_mov_b32 v{vt+1}, s68")
        a(f"global_store_dword v{vt}, v{vt+1}, s[{P_WS}:{P_WS+1}] offset:56")
        a(f"v_mov_b32 v{vt+1}, s62")
        a(f"global_store_dword v{vt}, v{vt+1}, s[{P_WS}:{P_WS+1}] offset:60")
        a("s_waitcnt vmcnt(0)")
    def start(self, a):
        if not self.on: return
        a("s_memrealtime s[68:69]")
        self.stamp(a, "start")

def code_prefetch(a, n, wave):
    if not n: return
    l = a.newlabel("Lpf")
    a(f"s_cmp_lg_u32 s60, {wave}")
    a(f"s_cbranch_scc1 {l}")
    a("s_getpc_b64 s[4:5]")
    a.label(l + "_pc")
    a("v_and_b32 v1, 63, v0")
    a("v_lshlrev_b32 v1, 7, v1")
    for i in range(n):
        if i: a("v_add_u32 v1, 8192, v1")
        if i == n - 1: a(f"v_min_u32 v1, L_code_end-{l}_pc-4, v1")
        a("global_load_dword v255, v1, s[4:5]")
    a.label(l)

WOB = 51200
LCNT = 163836
SPIN = 0x20000

def flags_issue(a, vaddr, vdst):
    a(f"global_load_dword v{vdst}, v{vaddr}, s[{P_DBG}:{P_DBG+1}] sc1")
def flags_wait(a, vaddr, vdst):
    lp = a.newlabel("Lfl"); lo = a.newlabel("Lfo")
    a(f"s_mov_b32 s13, {SPIN}")
    a.label(lp)
    a("s_waitcnt vmcnt(0)")
    a(f"v_cmp_eq_u32 vcc, 0, v{vdst}")
    a(f"s_cbranch_vccz {lo}")
    flags_issue(a, vaddr, vdst)
    a("s_sub_u32 s13, s13, 1")
    a("s_cmp_lg_u32 s13, 0")
    a(f"s_cbranch_scc1 {lp}")
    a.label(lo)
def signal(a, n, s_off, s_mask):
    l = a.newlabel("Lsg")
    a(f"v_mov_b32 v2, {LCNT}")
    a("v_mov_b32 v3, 1")
    a(f"v_mov_b32 v5, s{s_off}")
    a("v_and_b32 v6, 28, v1")
    a("v_add_u32 v6, v6, v1")
    a("v_lshlrev_b32 v6, 8, v6")
    a(f"v_add_u32 v6, {WS_CNT+512}, v6")
    a("s_mov_b64 exec, 1")
    a("s_waitcnt vmcnt(0)")
    a("ds_add_rtn_u32 v4, v2, v3")
    a("s_waitcnt lgkmcnt(0)")
    a(f"v_cmp_eq_u32 vcc, {n-1}, v4")
    a(f"s_cbranch_vccz {l}")
    a(f"global_atomic_add v4, v5, v3, s[{P_WS}:{P_WS+1}] sc0 sc1")
    a("s_waitcnt vmcnt(0)")
    a("v_cmp_eq_u32 vcc, 15, v4")
    a(f"s_cbranch_vccz {l}")
    a(f"s_mov_b32 exec_lo, s{s_mask}")
    a(f"global_atomic_add v6, v3, s[{P_WS}:{P_WS+1}] sc1")
    a.label(l)
    a("s_mov_b64 exec, -1")
def wo_setup(a, vd, s_idx, s_ct, srd_base, s_m0):
    a(f"v_mul_u32_u24 v{vd}, 26, v1")
    a(f"v_lshrrev_b32 v{vd}, 8, v{vd}")
    a(f"v_mul_u32_u24 v{vd}, 1120, v{vd}")
    a(f"v_lshl_add_u32 v{vd}, v1, 4, v{vd}")
    a(f"s_mul_i32 s8, s{s_idx}, 7680")
    a(f"s_mul_i32 s9, s{s_ct}, 160")
    a("s_add_u32 s8, s8, s9")
    a(f"v_add_u32 v{vd}, s8, v{vd}")
    srd(a, srd_base, P_WO, 819200)
    a(f"s_mul_i32 s{s_m0}, s{s_idx}, 960")
    a(f"s_add_u32 s{s_m0}, s{s_m0}, {WOB}")
def wo_piece(vd, srd_base, s_m0, t, n):
    return (f"s_add_u32 m0, s{s_m0}, {960*n*t}\ns_nop 0\nbuffer_load_dwordx4 v{vd}, s[{srd_base}:{srd_base+3}], 0 offen lds\n"
            f"v_add_u32 v{vd}, {7680*n}, v{vd}")
```

```python
from common import *
XSZ = 16384
SEGK = 10240; SEGV = 20480 + 16
STG = XSZ + 30720 + 32
RSTR = 6912
DUMP = 2 * RSTR

def interleave(a, main, fill, start=0, every=1):
    fi = 0
    for i, m in enumerate(main):
        a(m)
        if i >= start and (i - start) % every == 0 and fi < len(fill):
            a(fill[fi]); fi += 1
    for f in fill[fi:]: a(f)

def phi4(a, base, n, vL, tmp):
    for i in range(0, n, 2):
        a(f"v_pk_fma_f32 {V(tmp+i,2)}, {V(base+i,2)}, {V(vL,2)}, {V(vL,2)} op_sel_hi:[1,0,0] neg_lo:[0,0,1] neg_hi:[0,0,1]")
    for i in range(n):
        a(f"v_exp_f32_e64 v{tmp+i}, v{tmp+i} clamp")
    for i in range(n):
        a(f"v_max_f32 v{tmp+i}, v{tmp+i}, v{base+i}")
    for i in range(0, n, 2):
        a(f"v_pk_add_f32 {V(tmp+i,2)}, {V(tmp+i,2)}, {V(vL,2)} op_sel:[0,1] op_sel_hi:[1,1]")

def role_g(a, st, sRB, sG, sW, sCT, opt):
    LEAD = "B"
    vT, vL = 0, 1
    LQ = a.newlabel("Lg_q"); LE = a.newlabel("Lg_end")
    a(f"v_and_b32 v{vL}, 63, v{vT}")
    a(f"v_and_b32 v2, 15, v{vL}")
    a(f"v_lshrrev_b32 v3, 4, v{vL}")
    def common_addr():
        a("v_lshrrev_b32 v4, 1, v2")
        a("v_xor_b32 v4, v4, v3")
        a("v_lshlrev_b32 v4, 4, v4")
        a("v_lshl_add_u32 v4, v2, 7, v4")
        a("v_lshrrev_b32 v5, 1, v3")
        a("v_lshlrev_b32 v5, 4, v5")
        a("v_and_b32 v6, 1, v3")
        a("v_lshl_add_u32 v5, v6, 2, v5")
        a("v_lshrrev_b32 v6, 2, v2")
        a("v_add_u32 v5, v5, v6")
        a("v_mul_u32_u24 v5, 160, v5")
        a("v_and_b32 v6, 3, v2")
        a("v_lshl_add_u32 v5, v6, 3, v5")
        a(f"v_add_u32 v5, {XSZ}, v5")
        a(f"v_mov_b32 v8, {LOG2E}")
        a("v_mov_b32 v9, 0x358637bd")
    def advance():
        a(f"s_add_u32 s12, s12, {STG}")
        a(f"s_cmp_eq_u32 s12, {3*STG}")
        a("s_cselect_b32 s12, 0, s12")
    a(f"s_cmp_lt_u32 s{sW}, 4")
    a(f"s_cbranch_scc1 {LQ}")

    n0 = st.n
    cA0, cA1, cB, cM = 10, 11, 12, 13
    aA0, aA1, aB, aM = 14, 15, 16, 17
    a(f"s_setprio {opt.get('qprio', 2)}")
    ACC = 32; F = [72, 100]
    dX, dW = 18, 20
    a(f"s_mul_i32 s4, s{sRB}, {128*1280}")
    a(f"s_and_b32 s5, s{sW}, 3")
    a(f"v_lshrrev_b32 v28, 3, v{vL}")
    a("v_mul_u32_u24 v28, 1280, v28")
    a("s_lshl_b32 s6, s5, 2")
    a("v_add_u32 v29, s6, v3")
    a(f"v_xor_b32 v29, v29, v{vL}")
    a("v_and_b32 v29, 7, v29")
    a("v_lshl_add_u32 v28, v29, 4, v28")
    a("s_mul_i32 s6, s5, 10240")
    a("s_add_u32 s6, s6, s4")
    a(f"v_add_u32 v{dX}, s6, v28")
    a("s_lshl_b32 s14, s5, 10")
    a(f"s_mul_i32 s7, s{sG}, 160")
    a("s_lshl_b32 s6, s5, 6")
    a(f"v_add_u32 v31, s6, v{vL}")
    a("s_movk_i32 s8, 3840")
    a("s_movk_i32 s9, 1280")
    for t in range(8):
        a(f"v_add_u32 v28, {256*t}, v31")
        a("v_mul_u32_u24 v29, 6554, v28")
        a("v_lshrrev_b32 v29, 16, v29")
        a("v_mul_u32_u24 v30, 10, v29")
        a("v_sub_u32 v28, v28, v30")
        a("v_lshl_add_u32 v28, v28, 4, s7")
        a("v_lshrrev_b32 v30, 6, v29")
        a("v_mad_u32_u24 v28, v30, s9, v28")
        a("v_lshrrev_b32 v30, 1, v29")
        a("v_xor_b32 v30, v30, v29")
        a("v_and_b32 v30, 4, v30")
        a("v_mul_u32_u24 v30, 3, v30")
        a("v_bitop3_b32 v29, v29, v30, 63 bitop3:0x28")
        a(f"v_mad_u32_u24 v{dW+t}, v29, s8, v28")
    a("s_mov_b32 s15, s14"); a("s_mov_b32 s56, 0"); a("s_mov_b32 s57, 0")
    a("s_waitcnt lgkmcnt(0)")
    st.stamp(a, "karg")
    srd(a, 48, P_U, 2621440)
    srd(a, 52, P_WQKV, 2457600)
    def dmaX(t):
        return (f"s_add_u32 m0, s15, {4096*t}\ns_add_u32 s9, s56, {t*32*1280}\n"
                f"buffer_load_dwordx4 v{dX}, s[48:51], s9 offen lds")
    def dmaW(t):
        x = (f"s_add_u32 m0, s15, {XSZ + 4096*t + (16 if t >= 5 else 0)}\ns_nop 0\n"
             f"buffer_load_dwordx4 v{dW+t}, s[52:55], s57 offen lds")
        if t == 7:
            l = a.newlabel("Lg_sk")
            x = f"s_cmp_ge_u32 s5, 2\ns_cbranch_scc1 {l}\n{x}\n{l}:"
        return x
    D2 = lambda: [dmaX(0), dmaW(0), dmaW(1), dmaX(1), dmaW(2), dmaW(3)]
    D1 = lambda: [dmaX(2), dmaW(4), dmaW(5), dmaX(3), dmaW(6), dmaW(7)]
    def nextstage():
        a("s_add_u32 s56, s56, 128"); a(f"s_add_u32 s57, s57, {64*3840}")
    for x in D2() + D1(): a(x)
    if opt.get("probe"):
        st.stamp(a, "i0"); a("s_waitcnt vmcnt(10)"); st.stamp(a, "first"); a("s_waitcnt vmcnt(0)"); st.stamp(a, "s0")
    common_addr()
    a("s_lshl_b32 s8, s5, 12")
    a(f"v_add_u32 v{cA0}, s8, v4")
    a(f"v_xor_b32 v{cA1}, 64, v{cA0}")
    a(f"v_mov_b32 v{cB}, v5")
    a(f"v_lshl_add_u32 v{cM}, v6, 5, v5")
    for r in range(40): a(f"v_mov_b32 v{ACC+r}, 1.0")
    a(f"s_add_u32 s15, s15, {STG}"); nextstage()
    for x in D2() + D1(): a(x)
    a(f"s_add_u32 s15, s15, {STG}"); nextstage()
    if LEAD == "A":
        for x in D2(): a(x)
    def q_reads(f, ks):
        L = []
        aa = aA1 if ks else aA0
        o = ks*32*160
        L.append(f"ds_read_b128 {V(f,4)}, v{aa}")
        L.append(f"ds_read_b128 {V(f+4,4)}, v{aa} offset:2048")
        for ct in range(5):
            for h in range(2):
                L.append(f"ds_read_b64_tr_b16 {V(f+8+4*ct+2*h,2)}, v{aB if ct < 4 else aM} offset:{o+(40*ct if ct < 4 else 32)+h*1280}")
        if opt.get("noread"): return []
        return L
    def q_mfma(f):
        if opt.get("nomfma"): return ["s_nop 0"]*10
        return [f"v_mfma_f32_16x16x32_bf16 {V(ACC+8*ct+4*rt,4)}, {V(f+8+4*ct,4)}, {V(f+4*rt,4)}, {V(ACC+8*ct+4*rt,4)}" for ct in range(5) for rt in range(2)]
    def q_addr(): return [f"v_add_u32 v{d}, s12, v{c}" for d, c in ((aA0,cA0),(aB,cB),(aM,cM),(aA1,cA1))]
    def mix(m, r, d):
        out = []; ri = 0; di = 0
        n = len(m)
        for i, x in enumerate(m):
            while di < len(d) and di * n <= i * len(d):
                out.append(d[di]); di += 1
            out.append(x)
            for _ in range(2):
                if ri < len(r): out.append(r[ri]); ri += 1
        out += r[ri:] + d[di:]
        for x in out: a(x)
    a("s_mov_b32 s12, 0")
    for x in q_addr(): a(x)
    st.stamp(a, "pre")
    a(f"s_waitcnt vmcnt({17 if LEAD == 'A' else 11})")
    a("s_barrier")
    st.stamp(a, "B0")
    for x in q_reads(F[0], 0): a(x)
    def body(first, second, vm):
        a("s_waitcnt lgkmcnt(0)")
        mix(q_mfma(F[0]), q_reads(F[1], 1), first)
        if LEAD == "A":
            a("s_add_u32 s15, s12, s14"); nextstage()
        else:
            a("s_add_u32 s58, s12, s14")
        advance()
        for x in q_addr(): a(x)
        a(f"s_waitcnt vmcnt({vm}) lgkmcnt(0)")
        a("s_barrier")
        mix(q_mfma(F[1]), q_reads(F[0], 0), second)
        if LEAD != "A":
            a("s_mov_b32 s15, s58"); nextstage()
    GX, GW = 128, 148
    gl = []
    for i in range(5):
        gl.append(f"global_load_dwordx4 {V(GX+4*i,4)}, v28, s[{P_U}:{P_U+1}] offset:{256*i}")
        gl.append(f"global_load_dwordx4 {V(GW+4*i,4)}, v29, s[{P_GATE}:{P_GATE+1}] offset:{256*i}")
    a(f"s_mov_b32 s13, {7 if LEAD == 'A' else 8}")
    LL = a.newlabel("Lg_ql")
    a.label(LL)
    if opt.get("nodma"): body([], [], 0)
    elif LEAD == "A": body(D1(), D2(), 11)
    else: body(D2(), D1(), 6)
    a("s_sub_u32 s13, s13, 1")
    a("s_cmp_lg_u32 s13, 0")
    a(f"s_cbranch_scc1 {LL}")
    a(f"s_lshl_b32 s7, s{sG}, 4")
    a("s_lshl_b32 s8, s5, 2")
    a("s_add_u32 s7, s7, s8")
    a("s_mul_i32 s8, s7, 1280")
    a("s_add_u32 s8, s8, s4")
    a("v_mul_u32_u24 v28, 1280, v3")
    a("v_lshlrev_b32 v29, 4, v2")
    a("v_add3_u32 v28, v28, v29, s8")
    wo_setup(a, dX, 5, sCT, 52, 56)
    wp = [wo_piece(dX, 52, 56, t, 4) for t in range(27)]
    LEADs = LEAD
    def body8():
        a("s_waitcnt lgkmcnt(0)")
        mix(q_mfma(F[0]), q_reads(F[1], 1), gl)
        advance()
        for x in q_addr(): a(x)
        a("s_waitcnt vmcnt(10) lgkmcnt(0)")
        a("s_barrier")
        mix(q_mfma(F[1]), q_reads(F[0], 0), wp[:9])
    body8()
    a("s_waitcnt vmcnt(9) lgkmcnt(0)")
    a("v_mov_b32 v30, 0"); a("v_mov_b32 v31, 0")
    dots = [f"v_dot2_f32_bf16 v{30+(i&1)}, v{GX+i}, v{GW+i}, v{30+(i&1)}" for i in range(20)]
    dd = []
    for i in range(10): dd += dots[2*i:2*i+2] + wp[9+i:10+i]
    mix(q_mfma(F[0]), q_reads(F[1], 1), dd)
    a("s_nop 2")
    a("v_add_f32 v30, v30, v31")
    for sh in (1, 2, 4, 8):
        a(f"v_add_f32_dpp v30, v30, v30 row_shr:{sh} row_mask:0xf bank_mask:0xf")
    a(f"v_mul_f32 v30, 0xbfb8aa3b, v30")
    a("v_exp_f32 v30, v30")
    a("v_add_f32 v30, 1.0, v30")
    a("v_rcp_f32 v30, v30")
    a(f"s_lshl_b32 s8, s{sRB}, 7")
    a("s_add_u32 s8, s8, s7")
    a("s_lshl_b32 s8, s8, 2")
    a(f"s_add_u32 s8, s8, {WS_G}")
    a("v_lshl_add_u32 v31, v3, 2, s8")
    a("s_mov_b32 exec_lo, 0x80008000"); a("s_mov_b32 exec_hi, 0x80008000")
    a(f"global_store_dword v31, v30, s[{P_WS}:{P_WS+1}] sc1")
    a("s_mov_b64 exec, -1")
    a("s_waitcnt lgkmcnt(0)")
    a("s_barrier")
    a("s_setprio 0")
    mix(q_mfma(F[1]), [], wp[19:])
    st.stamp(a, "loop")
    srd(a, 48, P_WS, 2621440, WS_PQ)
    a(f"v_lshlrev_b32 v28, 4, v{vL}")
    a(f"s_lshl_b32 s6, s{sRB}, 2")
    a("s_add_u32 s6, s6, s5")
    a("s_mul_i32 s6, s6, 40960")
    a(f"s_mul_i32 s7, s{sG}, 5120")
    a("s_add_u32 s6, s6, s7")
    a("s_add_u32 s7, s6, 4096")
    TM = 72
    QB = opt.get("qbar", 2)
    for c0, c1 in ((0, QB), (QB, 5)):
        if c1 > c0: phi4(a, ACC+8*c0, 8*(c1-c0), 8, TM+8*c0)
        for ct in range(c0, c1):
            t = TM + 8*ct
            for k in range(4): a(f"v_cvt_pk_bf16_f32 v{t+k}, v{t+2*k}, v{t+2*k+1}")
        for ct in range(c0, c1):
            t = TM + 8*ct
            a(f"v_permlane16_swap_b32 v{t}, v{t+2}")
            a(f"v_permlane16_swap_b32 v{t+1}, v{t+3}")
            so, off = (6, 1024*ct) if ct < 4 else (7, 0)
            a(f"buffer_store_dwordx4 {V(t,4)}, v28, s[48:51], s{so} offen offset:{off} sc1")
        if c0 == 0:
            st.stamp(a, "epi"); a("s_barrier")
    st.stamp(a, "epi2")
    a(f"s_branch {LE}")

    ACC = 32; F = [112, 148]
    cA0, cA1, cB, cM = 10, 11, 12, 13
    aA0, aA1, aB, aM = 14, 15, 16, 17
    SC = 18
    a.label(LQ)
    st.n = n0; st.names = st.names[:n0]
    common_addr()
    a(f"s_and_b32 s5, s{sW}, 1")
    a(f"s_lshr_b32 s6, s{sW}, 1")
    a("s_mov_b32 s14, 0")
    a(f"v_and_b32 v28, 7, v{vL}")
    a("v_lshlrev_b32 v28, 2, v28")
    for r in range(184, 188): a(f"v_mov_b32 v{r}, 0")
    a(f"v_mov_b32 v30, {LCNT}")
    a("ds_write_b32 v30, v184")
    a("s_waitcnt lgkmcnt(0)")
    st.stamp(a, "karg")
    if opt.get("probe"):
        st.stamp(a, "i0"); st.stamp(a, "first"); st.stamp(a, "s0")
    a(f"s_mul_i32 s8, s{sG}, 6720")
    a(f"s_add_u32 s52, s{P_WS}, s8")
    a(f"s_addc_u32 s53, s{P_WS+1}, 0")
    a("s_mov_b32 s54, 6720")
    a("s_mov_b32 s55, 0x20000")
    lz = a.newlabel("Lg_nz")
    a(f"s_or_b32 s8, s{sW}, s{sRB}")
    a(f"s_cbranch_scc1 {lz}")
    a("s_mov_b32 s14, 7")
    a(f"v_lshlrev_b32 v30, 4, v{vL}")
    a("v_add_u32 v31, 4096, v30")
    for i in range(7):
        a(f"buffer_store_dwordx4 v[184:187], v{30+(i>>2)}, s[52:55], 0 offen offset:{1024*(i&3)} sc1")
    a(f"s_lshl_b32 s8, s{sG}, 11")
    a(f"s_add_u32 s8, s8, {WS_CNT}")
    a(f"v_lshl_add_u32 v30, v28, 6, s8")
    a("s_mov_b64 exec, 63")
    a(f"global_store_dword v30, v184, s[{P_WS}:{P_WS+1}] sc1")
    a("s_mov_b64 exec, -1")
    a.label(lz)
    a("s_lshl_b32 s8, s6, 13")
    a(f"v_add_u32 v{cA0}, s8, v4")
    a(f"v_xor_b32 v{cA1}, 64, v{cA0}")
    a("s_mul_i32 s8, s5, 80")
    a(f"s_add_u32 s8, s8, {SEGK}")
    a(f"v_add_u32 v{cB}, s8, v5")
    a("v_cmp_lt_u32 vcc, 1, v6")
    a(f"v_mov_b32 v30, 64")
    a(f"v_mov_b32 v31, {SEGV-SEGK-16}")
    a("v_cndmask_b32 v30, v30, v31, vcc")
    a(f"v_add_u32 v{cM}, v{cB}, v30")
    a("v_cmp_gt_u32 s[10:11], 8, v2")
    a("v_cndmask_b32 v30, 0, 1.0, s[10:11]")
    for rt in range(4):
        for ct in range(5):
            for j in range(4):
                src = "1.0" if ct < 2 else ("v30" if ct == 2 else "0")
                a(f"v_mov_b32 v{ACC+20*rt+4*ct+j}, {src}")
    pairs = [(0,2),(0,3),(1,2),(1,3),(1,4),(2,3),(2,4)]
    a(f"s_mul_i32 s8, s6, {RSTR}")
    a("s_mul_i32 s9, s5, 3360")
    a("s_add_u32 s8, s8, s9")
    a(f"v_lshlrev_b32 v31, 2, v{vL}")
    a(f"v_add_u32 v31, {DUMP}, v31")
    T = 112
    for kt in range(3):
        a(f"v_add_u32 v30, {16*kt}, v2")
        a(f"v_mul_u32_u24 v{T+kt}, 13, v30")
        a(f"v_lshrrev_b32 v{T+kt}, 8, v{T+kt}")
        a(f"v_mul_u32_u24 v{T+4+kt}, 1600, v{T+kt}")
        a(f"v_lshl_add_u32 v{T+4+kt}, v30, 2, v{T+4+kt}")
        a(f"v_add_u32 v{T+4+kt}, s8, v{T+4+kt}")
    for vt in range(2, 5):
        a(f"v_lshl_add_u32 v30, v3, 2, {16*vt-20}")
        a(f"v_mul_u32_u24 v{T+8+vt}, 13, v30")
        a(f"v_lshrrev_b32 v{T+8+vt}, 8, v{T+8+vt}")
        a(f"v_mul_u32_u24 v{T+16+vt}, 20, v{T+8+vt}")
        a(f"v_sub_u32 v{T+16+vt}, v30, v{T+16+vt}")
        a(f"v_mul_u32_u24 v{T+16+vt}, 80, v{T+16+vt}")
        a(f"v_add_u32 v{T+8+vt}, -1, v{T+8+vt}")
    for i, (kt, vt) in enumerate(pairs):
        a(f"v_cmp_eq_u32 vcc, v{T+kt}, v{T+8+vt}")
        a(f"v_add_u32 v30, v{T+4+kt}, v{T+16+vt}")
        a(f"v_cndmask_b32 v{SC+i}, v31, v30, vcc")
    for kt in range(3):
        a(f"v_lshl_add_u32 v30, v3, 2, v{T+kt}")
        a("v_cmp_gt_u32 vcc, 2, v30")
        a(f"v_add_u32 v30, 1600, v{T+4+kt}")
        a(f"v_cndmask_b32 v{SC+7+kt}, v31, v30, vcc")
    def kv_reads(f, ks):
        L = []
        aa = aA1 if ks else aA0
        o = ks*32*160
        bo = [(aB, 0), (aB, 32), (aM, 0), (aB, SEGV-SEGK+16), (aB, SEGV-SEGK+48)]
        L.append(f"ds_read_b128 {V(f,4)}, v{aa}")
        for ct in range(5):
            for h in range(2):
                L.append(f"ds_read_b64_tr_b16 {V(f+16+4*ct+2*h,2)}, v{bo[ct][0]} offset:{o+bo[ct][1]+h*1280}")
        for rt in range(1, 4):
            L.append(f"ds_read_b128 {V(f+4*rt,4)}, v{aa} offset:{2048*rt}")
        if opt.get("noread"): return []
        return L
    def kv_mfma(f):
        if opt.get("nomfma"): return ["s_nop 0"]*20
        return [f"v_mfma_f32_16x16x32_bf16 {V(ACC+20*rt+4*ct,4)}, {V(f+4*rt,4)}, {V(f+16+4*ct,4)}, {V(ACC+20*rt+4*ct,4)}" for rt in range(4) for ct in range(5)]
    def kv_addr(): return [f"v_add_u32 v{d}, s12, v{c}" for d, c in ((aA0,cA0),(aB,cB),(aM,cM),(aA1,cA1))]
    a("s_mov_b32 s12, 0"); a("s_mov_b32 s13, 9")
    for x in kv_addr(): a(x)
    st.stamp(a, "pre")
    a("s_waitcnt lgkmcnt(0)")
    a("s_barrier")
    st.stamp(a, "B0")
    for x in kv_reads(F[0], 0): a(x)
    LL = a.newlabel("Lg_kvl")
    a.label(LL)
    a("s_waitcnt lgkmcnt(0)")
    m = kv_mfma(F[0])
    interleave(a, m[:16], kv_reads(F[1], 1))
    advance()
    interleave(a, m[16:], kv_addr())
    a("s_waitcnt lgkmcnt(0)")
    a("s_barrier")
    interleave(a, kv_mfma(F[1]), kv_reads(F[0], 0))
    lz = a.newlabel("Lg_nf")
    a("s_cmp_lg_u32 s13, s14")
    a(f"s_cbranch_scc1 {lz}")
    a("s_waitcnt vmcnt(0)")
    a("v_mov_b32 v29, 1")
    a(f"s_lshl_b64 exec, 1, s{sG}")
    a(f"global_store_dword v28, v29, s[{P_DBG}:{P_DBG+1}] sc1")
    a("s_mov_b64 exec, -1")
    a.label(lz)
    a("s_sub_u32 s13, s13, 1")
    a("s_cmp_lg_u32 s13, 0")
    a(f"s_cbranch_scc1 {LL}")
    a("s_waitcnt lgkmcnt(0)")
    interleave(a, kv_mfma(F[0]), kv_reads(F[1], 1))
    flags_issue(a, 28, 184)
    a("s_waitcnt lgkmcnt(0)")
    a("s_barrier")
    a("s_setprio 3")
    for x in kv_mfma(F[1]): a(x)
    st.stamp(a, "loop")
    P = 188
    TM = 112
    ONE = 132
    for j in range(4): a(f"v_mov_b32 v{ONE+j}, 0x3f803f80")
    KD = 136
    for rt in range(4):
        b = ACC + 20*rt
        phi4(a, b, 12, 8, TM)
        for j in range(4):
            a(f"v_cndmask_b32 v{TM+8+j}, v{b+8+j}, v{TM+8+j}, s[10:11]")
        for ct in range(5):
            s = TM + 4*ct if ct < 3 else b + 4*ct
            d = P + 8*ct + 2*rt
            a(f"v_cvt_pk_bf16_f32 v{d}, v{s}, v{s+1}")
            a(f"v_cvt_pk_bf16_f32 v{d+1}, v{s+2}, v{s+3}")
    for kp in range(2):
        for i, (kt, vt) in enumerate(pairs):
            c = "0" if kp == 0 else V(KD+4*i, 4)
            a(f"v_mfma_f32_16x16x32_bf16 {V(KD+4*i,4)}, {V(P+8*vt+4*kp,4)}, {V(P+8*kt+4*kp,4)}, {c}")
        for kt in range(3):
            c = "0" if kp == 0 else V(KD+28+4*kt, 4)
            a(f"v_mfma_f32_16x16x32_bf16 {V(KD+28+4*kt,4)}, {V(ONE,4)}, {V(P+8*kt+4*kp,4)}, {c}")
    for i in range(7):
        a(f"ds_write2_b32 v{SC+i}, v{KD+4*i}, v{KD+4*i+1} offset0:0 offset1:20")
        a(f"ds_write2_b32 v{SC+i}, v{KD+4*i+2}, v{KD+4*i+3} offset0:40 offset1:60")
    for kt in range(3):
        a(f"ds_write_b32 v{SC+7+kt}, v{KD+28+4*kt}")
    a(f"v_lshlrev_b32 v2, 2, v{vT}")
    a("v_add_u32 v3, 4096, v2")
    flags_wait(a, 28, 184)
    st.stamp(a, "epi")
    a("s_waitcnt lgkmcnt(0)")
    a("s_barrier")
    for i in range(7):
        a(f"ds_read2st64_b32 {V(4+2*i,2)}, v2 offset0:{4*i} offset1:{4*i+27}")
    for i in range(7):
        a(f"s_waitcnt lgkmcnt({6-i})")
        a(f"v_add_f32 v{4+2*i}, v{4+2*i}, v{5+2*i}")
        a(f"buffer_atomic_add_f32 v{4+2*i}, v{2 + (i >> 2)}, s[52:55], 0 offen offset:{1024*(i&3)}")
    st.stamp(a, "epi2")
    a.label(LE)
    a("s_setprio 0")
    a(f"s_lshl_b32 s8, s{sG}, 11")
    a(f"s_add_u32 s8, s8, {WS_CNT}")
    a("s_mov_b32 s9, -1")
    signal(a, 8, 8, 9)
```

```python
from common import *
KVB = 0; YB = 27136
PL = 2064; TS = 16*PL + 64
def role_p2(a, st, sSB, sCT, sW, opt):
    vT, vL = 0, 1
    a(f"s_and_b32 s4, s{sW}, 1")
    a(f"s_lshr_b32 s5, s{sW}, 1")
    a(f"v_lshlrev_b32 v2, 4, v{vT}")
    a(f"s_lshl_b32 s6, s{sSB}, 1")
    a("s_add_u32 s6, s6, s4")
    a("s_mul_i32 s7, s6, 40960")
    a("s_mul_i32 s8, s5, 10240")
    a("s_add_u32 s7, s7, s8")
    a(f"s_add_u32 s7, s7, {WS_PQ+4096}")
    a(f"v_lshl_add_u32 v3, v{vL}, 4, s7")
    a("v_add_u32 v4, 8192, v3")
    a(f"v_and_b32 v6, 31, v{vL}")
    a(f"v_lshrrev_b32 v7, 5, v{vL}")
    a("s_lshl_b32 s7, s6, 7")
    a(f"s_add_u32 s7, s7, {WS_G}")
    a("v_lshl_add_u32 v8, v6, 2, s7")
    a(f"v_lshrrev_b32 v10, 3, v{vL}")
    a(f"v_lshrrev_b32 v11, 4, v{vL}")
    a(f"s_lshl_b32 s7, s{sW}, 2")
    a("v_add_u32 v11, s7, v11")
    a(f"v_xor_b32 v11, v11, v{vL}")
    a("v_and_b32 v11, 7, v11")
    a("v_lshlrev_b32 v11, 4, v11")
    a("v_lshl_add_u32 v10, v10, 12, v11")
    a(f"s_mul_i32 s7, s{sCT}, {80*4096}")
    a(f"s_lshl_b32 s8, s{sSB}, 7")
    a("s_add_u32 s7, s7, s8")
    a(f"s_add_u32 s7, s7, {WS_YT}")
    a(f"s_lshl_b32 s8, s{sW}, 15")
    a("s_add_u32 s8, s8, s7")
    a("v_add_u32 v5, s8, v10")
    a(f"s_lshl_b32 s8, s4, 15")
    a("s_add_u32 s8, s8, s7")
    a("s_add_u32 s8, s8, 0x40000")
    a("v_add_u32 v9, s8, v10")
    srd(a, 48, P_WS, 53760, WS_KV)
    a("v_lshrrev_b32 v16, 3, v6")
    a("v_and_b32 v17, 3, v6")
    a("v_lshl_add_u32 v16, v16, 2, v17")
    a("v_bfe_u32 v17, v6, 2, 1")
    a("v_lshl_add_u32 v16, v16, 1, v17")
    a("v_min_u32 v16, 20, v16")
    a("v_mul_u32_u24 v16, 40, v16")
    a("s_mul_i32 s7, s5, 6720")
    a("v_add_u32 v14, s7, v16")
    a("v_lshl_add_u32 v13, v7, 4, v14")
    a(f"v_bfe_u32 v16, v{vL}, 2, 2")
    a("v_lshl_add_u32 v16, v16, 1, v7")
    a("v_mul_u32_u24 v16, 160, v16")
    a(f"v_bfe_u32 v17, v{vL}, 4, 1")
    a("v_lshl_add_u32 v16, v17, 5, v16")
    a(f"v_and_b32 v17, 3, v{vL}")
    a("v_lshl_add_u32 v16, v17, 3, v16")
    a("s_mul_i32 s7, s5, 25600")
    a(f"s_add_u32 s7, s7, {WOB}")
    a("v_add_u32 v15, s7, v16")
    a("s_lshl_b32 s7, s4, 2")
    a("s_lshl_b32 s8, s5, 1")
    a("s_add_u32 s7, s7, s8")
    a("v_add_u32 v16, s7, v7")
    a("v_bfe_u32 v17, v6, 1, 3")
    a("v_xor_b32 v16, v16, v17")
    a("v_and_b32 v16, 7, v16")
    a("v_lshlrev_b32 v16, 4, v16")
    a("v_lshl_add_u32 v10, v6, 7, v16")
    FA = 224
    for k in range(2):
        a(f"v_add_u32 v16, {512*k}, v{vT}")
        a("v_mul_u32_u24 v17, 6554, v16")
        a("v_lshrrev_b32 v17, 16, v17")
        a("v_mul_u32_u24 v18, 10, v17")
        a("v_sub_u32 v18, v16, v18")
        a("v_mul_u32_u24 v19, 1280, v17")
        a(f"v_lshl_add_u32 v{FA+2*k}, v18, 4, v19")
        a("v_bfe_u32 v19, v17, 3, 2")
        a("v_and_b32 v16, 3, v17")
        a("v_lshl_add_u32 v19, v19, 2, v16")
        a(f"v_mul_u32_u24 v19, {PL}, v19")
        a("v_lshrrev_b32 v16, 5, v17")
        a("v_lshl_add_u32 v19, v16, 8, v19")
        a("v_bfe_u32 v16, v17, 2, 1")
        a("v_lshl_add_u32 v19, v16, 7, v19")
        a("v_lshrrev_b32 v16, 2, v18")
        a(f"v_mul_u32_u24 v16, {TS}, v16")
        a("v_add_u32 v19, v19, v16")
        a("v_and_b32 v16, 3, v18")
        a(f"v_lshl_add_u32 v{FA+2*k+1}, v16, 5, v19")
    A2 = 56
    for r in range(A2, A2+32): a(f"v_mov_b32 v{r}, 0")
    st.stamp(a, "ready")
    if opt.get("prebar", 1): a("s_barrier")
    lsk = a.newlabel("Lp_np"); lp = a.newlabel("Lp_poll")
    a(f"s_cmp_lg_u32 s{sW}, 0")
    a(f"s_cbranch_scc1 {lsk}")
    a("s_and_b32 s7, s2, 31")
    a("s_and_b32 s8, s2, 28")
    a("s_add_u32 s7, s7, s8")
    a("s_lshl_b32 s7, s7, 8")
    a(f"s_add_u32 s7, s7, {WS_CNT+512}")
    a("v_mov_b32 v16, s7")
    a(f"s_mov_b32 s13, {SPIN}")
    a("s_mov_b64 exec, 1")
    a.label(lp)
    a(f"global_load_dword v17, v16, s[{P_WS}:{P_WS+1}] sc1")
    a("s_sub_u32 s13, s13, 1")
    a("s_cselect_b32 s12, 0, -1")
    if opt.get("sleep"): a(f"s_sleep {opt['sleep']}")
    a("s_waitcnt vmcnt(0)")
    a("v_cmp_ne_u32 vcc, 9, v17")
    a("s_and_b32 s12, s12, vcc_lo")
    a(f"s_cbranch_scc1 {lp}")
    a("s_mov_b64 exec, -1")
    a.label(lsk)
    a("s_barrier")
    st.stamp(a, "go")
    KL = 176
    for i in range(7):
        if i: a(f"v_add_u32 v2, 8192, v2")
        a(f"buffer_load_dwordx4 {V(KL+4*i,4)}, v2, s[48:51], 0 offen sc1")
    if opt.get("p2bar", 1): a("s_barrier")
    PQ = 16
    a(f"global_load_dword v12, v8, s[{P_WS}:{P_WS+1}] sc1")
    order = [4, 0, 1, 2, 3, 9, 5, 6, 7, 8]
    a(f"global_load_dwordx4 v[204:207], v5, s[{P_WS}:{P_WS+1}] sc1")
    a(f"global_load_dwordx4 v[208:211], v9, s[{P_WS}:{P_WS+1}] sc1")
    for i in order[:5]:
        a(f"global_load_dwordx4 {V(PQ+4*i,4)}, v{3+(i>>3)}, s[{P_WS}:{P_WS+1}] offset:{1024*(i&7)-4096} sc1")
    a(f"v_lshlrev_b32 v2, 3, v{vT}")
    for i in range(7):
        a(f"s_waitcnt vmcnt({8+6-i})")
        a(f"v_cvt_pk_bf16_f32 v{KL+4*i}, v{KL+4*i}, v{KL+4*i+1}")
        a(f"v_cvt_pk_bf16_f32 v{KL+4*i+1}, v{KL+4*i+2}, v{KL+4*i+3}")
        if i == 6:
            a(f"v_cmp_gt_u32 vcc, 288, v{vT}")
            a("s_and_saveexec_b64 s[10:11], vcc")
        a(f"ds_write_b64 v2, {V(KL+4*i,2)} offset:{KVB+4096*i}")
    a("s_mov_b64 exec, -1")
    for i in order[5:]:
        a(f"global_load_dwordx4 {V(PQ+4*i,4)}, v{3+(i>>3)}, s[{P_WS}:{P_WS+1}] offset:{1024*(i&7)-4096} sc1")
    a(f"v_lshlrev_b32 v2, 4, v{vT}")
    a("v_and_b32 v3, 0x7ff, v2")
    a("s_waitcnt vmcnt(10)")
    a(f"ds_write_b128 v2, v[204:207] offset:{YB}")
    a(f"ds_write_b128 v3, v[208:211] offset:{YB+8192}")
    DG = 88
    a("v_cvt_pk_bf16_f32 v11, v12, v12")
    a("v_and_b32 v12, 0xffff0000, v11")
    a("v_sub_f32 v12, 1.0, v12")
    a("v_and_b32 v11, 0xffff, v11")
    a("s_lshl_b32 s7, s5, 4")
    a("v_lshl_add_u32 v3, v7, 3, s7")
    a("v_sub_u32 v3, v6, v3")
    a("v_and_b32 v4, 1, v3")
    a("v_lshlrev_b32 v4, 4, v4")
    a("v_lshlrev_b32 v11, v4, v11")
    a("v_ashrrev_i32 v3, 1, v3")
    for x in range(4):
        a(f"v_cmp_eq_u32 vcc, {x}, v3")
        a(f"v_cndmask_b32 v{DG+x}, 0, v11, vcc")
    a("s_waitcnt lgkmcnt(0)")
    st.stamp(a, "kv")
    a("s_barrier")
    st.stamp(a, "Ba")
    A1 = 92
    OD = [104, 120]
    O = 136
    ACC = 176
    WB = 228
    au = Auto(a)
    def rdA1(hh): return [f"ds_read_b64 {V(A1+4*(hh%3),2)}, v13 offset:{KVB+840*hh}", f"ds_read_b64 {V(A1+4*(hh%3)+2,2)}, v13 offset:{KVB+840*hh+8}"]
    for x in rdA1(0): au(x)
    a("s_mov_b32 exec_hi, 0")
    for hh in (0, 1, 4, 5): au(f"ds_read_b64 {V(A2+4*hh+2*(hh&1),2)}, v14 offset:{KVB+840*hh+32}")
    a("s_not_b64 exec, exec")
    for hh in (2, 3, 6, 7): au(f"ds_read_b64 {V(A2+4*hh+2*(hh&1),2)}, v14 offset:{KVB+840*hh+32}")
    a("s_mov_b64 exec, -1")
    for x in rdA1(1) + rdA1(2): au(x)
    def mm(hh):
        q, j = hh >> 2, hh & 3
        d = OD[hh & 1]
        return [f"v_mfma_f32_32x32x16_bf16 {V(d,16)}, {V(A2+4*hh,4)}, {V(PQ+20*q+16,4)}, 0",
                f"v_mfma_f32_32x32x16_bf16 {V(d,16)}, {V(A1+4*(hh%3),4)}, {V(PQ+20*q+4*j,4)}, {V(d,16)}"]
    def fin(hh):
        d = OD[hh & 1]
        L = [f"v_add_f32 v{d+10}, 0x358637bd, v{d+10}", f"v_rcp_f32 v{d+10}, v{d+10}", f"v_mul_f32 v{d+10}, v{d+10}, v12"]
        for r in range(5):
            L += [f"v_mul_f32 v{d+2*r}, v{d+2*r}, v{d+10}", f"v_mul_f32 v{d+2*r+1}, v{d+2*r+1}, v{d+10}"]
        L += [f"v_cvt_pk_bf16_f32 v{O+5*hh+r}, v{d+2*r}, v{d+2*r+1}" for r in range(5)]
        return L
    NW = 6
    def wrd(k):
        m, t = divmod(k, 3)
        return [f"ds_read_b64_tr_b16 {V(WB+4*(k%NW)+2*h,2)}, v15 offset:{(16*m+8*h)*160+64*t}" for h in range(2)]
    def wmm(k):
        m, t = divmod(k, 3)
        return f"v_mfma_f32_32x32x16_bf16 {V(ACC+16*t,16)}, {V(O+4*m,4)}, {V(WB+4*(k%NW),4)}, {'0' if m == 0 else V(ACC+16*t,16)}"
    for k in range(NW):
        for x in wrd(k): au(x)
    pqwait = {0: 8, 1: 7, 2: 6, 3: 5, 4: 3, 5: 2, 6: 1, 7: 0}
    a(f"s_waitcnt vmcnt({pqwait[0]})")
    for x in mm(0): au(x)
    for x in rdA1(3): au(x)
    kdone = 0
    for hh in range(9):
        ms = []
        if hh + 1 < 8:
            a(f"s_waitcnt vmcnt({pqwait[hh+1]})")
            ms += [(x, []) for x in mm(hh+1)]
            if hh + 4 < 8: ms[-1] = (ms[-1][0], rdA1(hh+4))
        klim = 3*((10*hh)//8)
        while kdone < klim:
            ms.append((wmm(kdone), wrd(kdone+NW) if kdone + NW < 30 else [])); kdone += 1
        fl = fin(hh) if hh < 8 else []
        fi = 0
        for i, (m, rd) in enumerate(ms):
            au(m)
            for x in rd: au(x)
            if i >= 1:
                n = -(-len(fl) // max(1, len(ms) - 1))
                for x in fl[fi:fi+n]: au(x)
                fi += n
        for x in fl[fi:]: au(x)
        if hh == 5:
            for t in range(3): au(f"ds_read_b128 {V(16+4*t,4)}, v10 offset:{YB+4096*t}")
    assert kdone == 30
    au.drain()
    lsk = a.newlabel("Lp_sk")
    a("s_cmp_ge_u32 s5, 2"); a(f"s_cbranch_scc1 {lsk}")
    for t in range(3):
        a(f"v_mfma_f32_32x32x16_bf16 {V(ACC+16*t,16)}, {V(DG,4)}, {V(16+4*t,4)}, {V(ACC+16*t,16)}")
    a.label(lsk)
    st.stamp(a, "gemm")
    srd(a, 48, P_OUT, 2621440)
    a(f"s_mul_i32 s7, s{sSB}, {64*1280}")
    a(f"s_mul_i32 s8, s{sCT}, 160")
    a("s_add_u32 s7, s7, s8")
    a(f"s_lshl_b32 s9, s{sW}, 8")
    a("s_barrier")
    for t in range(3):
        a(f"s_add_u32 m0, s9, {min(t,1)*TS}")
        for r in range(16):
            a(f"ds_write_addtid_b32 v{ACC+16*t+r} offset:{r*PL + (TS if t == 2 else 0)}")
    a("s_waitcnt lgkmcnt(0)")
    a("s_barrier")
    st.stamp(a, "Bd")
    lsk = a.newlabel("Lp_sk")
    for k in range(2):
        if k == 1:
            a(f"s_cmp_ge_u32 s{sW}, 2"); a(f"s_cbranch_scc1 {lsk}")
        R = 16 + 32*k
        for p in range(4):
            for h in range(2):
                a(f"ds_read_b128 {V(R+8*p+4*h,4)}, v{FA+2*k+1} offset:{512*p+16*h}")
        a("s_waitcnt lgkmcnt(4)")
        for i in range(0, 8, 2): a(f"v_pk_add_f32 {V(R+i,2)}, {V(R+i,2)}, {V(R+8+i,2)}")
        a("s_waitcnt lgkmcnt(0)")
        for i in range(0, 8, 2): a(f"v_pk_add_f32 {V(R+16+i,2)}, {V(R+16+i,2)}, {V(R+24+i,2)}")
        for i in range(0, 8, 2): a(f"v_pk_add_f32 {V(R+i,2)}, {V(R+i,2)}, {V(R+16+i,2)}")
        for i in range(4): a(f"v_cvt_pk_bf16_f32 v{R+i}, v{R+2*i}, v{R+2*i+1}")
        a(f"buffer_store_dwordx4 {V(R,4)}, v{FA+2*k}, s[48:51], s7 offen")
    a.label(lsk)
```

```python
from common import *
import stab
TROW = 2064
T_Z = 24 * TROW
DB = 56 * TROW + 1024
KSTR = 2112; KCH = 4 * KSTR
XB = 0
KB = 51200
UB = KB + 5 * KCH
USTR = 4608
UNITS = [4, 512, 6, 1792, 1, 260, 1024, 2, 7, None, 5, 256, 772, 258, 3, 516, 2048, 0, 1536, 768, 1280, 262]
HS, RS, ZW = 33, 69, 767
def unit_row(u):
    k = u >> 1
    return 8*(k >> 2) + 4*(u & 1) + (k & 3)

def tables_text():
    _, addr = stab.cost(UNITS, HS, RS, ZW)
    t = ".p2align 8\nL_tab_band:\n"
    b = stab.band_table().reshape(-1).view("uint32")
    for i in range(0, len(b), 8):
        t += "    .long " + ", ".join(hex(int(x)) for x in b[i:i+8]) + "\n"
    t += "L_tab_src:\n"
    addr = [4*x for x in addr]
    for i in range(0, len(addr), 16):
        t += "    .short " + ", ".join(str(x) for x in addr[i:i+16]) + "\n"
    return t

def cmul(a, t, x, m):
    a(f"v_pk_mul_f32 {V(t,2)}, {V(x,2)}, {V(m,2)} op_sel:[0,0] op_sel_hi:[0,1]")
    a(f"v_pk_fma_f32 {V(t,2)}, {V(x,2)}, {V(m,2)}, {V(t,2)} op_sel:[1,1,0] op_sel_hi:[1,0,1] neg_lo:[0,1,0]")

TW, TX, TG, TO = 37, 38, 39, 33
def touch_setup1(a, sJ):
    a(f"s_and_b32 s48, s{sJ}, 15")
    a(f"s_lshr_b32 s49, s{sJ}, 4")
    a("v_min_u32 v64, 59, v1")
    a("v_mul_u32_u24 v65, 52, v64")
    a("v_lshrrev_b32 v65, 8, v65")
    a("v_mul_u32_u24 v66, 640, v65")
    a("v_lshl_add_u32 v66, v64, 7, v66")
    a("s_and_b32 s50, s49, 1")
    a("s_mul_i32 s50, s50, 640")
    a("s_mul_i32 s13, s48, 15360")
    a("s_add_u32 s13, s13, s50")
    a(f"v_add_u32 v{TW}, s13, v66")
    a("v_and_b32 v64, 31, v1")
    a("v_mul_u32_u24 v64, 1280, v64")
    a("v_lshrrev_b32 v65, 5, v1")
    a("v_lshl_add_u32 v64, v65, 7, v64")
    a("s_lshr_b32 s12, s49, 1")
    a("s_lshl_b32 s12, s12, 4")
    a("s_add_u32 s12, s12, s48")
    a("s_mul_i32 s12, s12, 40960")
    a(f"v_add_u32 v{TX}, s12, v64")
def touch_setup2(a, sJ):
    a("s_mul_i32 s13, s48, 51200")
    a("s_add_u32 s13, s13, s50")
    a(f"v_add_u32 v{TO}, s13, v66")
    a("s_mul_i32 s12, s49, 160")
    a("s_and_b32 s12, s12, -128")
    a("s_mul_i32 s13, s48, 163840")
    a("s_add_u32 s12, s12, s13")
    a(f"v_add_u32 v{TG}, s12, v64")
TU = 30
def touch_setupU(a, sJ):
    a("v_min_u32 v64, 29, v1")
    a("v_cmp_lt_u32 vcc, 14, v64")
    a(f"v_mov_b32 v65, {64*3840 - 15*128}")
    a("v_cndmask_b32 v65, 0, v65, vcc")
    a("v_lshl_add_u32 v64, v64, 7, v65")
    a(f"s_mul_i32 s12, s{sJ}, 1920")
    a("v_add_u32 v64, s12, v64")
    a("v_and_b32 v65, 15, v1")
    a("v_mul_u32_u24 v65, 1280, v65")
    a("v_bfe_u32 v67, v1, 4, 1")
    a("v_lshl_add_u32 v65, v67, 7, v65")
    a(f"s_mul_i32 s12, s{sJ}, 20480")
    a("v_add_u32 v65, s12, v65")
    a("v_cmp_lt_u32 vcc, 31, v1")
    a("v_cndmask_b32 v64, v64, v65, vcc")
    a(f"v_mov_b32 v65, {2*64*3840}")
    a("v_mov_b32 v67, 256")
    a(f"v_cndmask_b32 v{TU+2}, v65, v67, vcc")
def touch_setupU2(a):
    a(f"v_mov_b32 v{TU}, s{P_WQKV}")
    a(f"v_mov_b32 v{TU+1}, s{P_WQKV+1}")
    a(f"v_mov_b32 v65, s{P_U}")
    a(f"v_mov_b32 v67, s{P_U+1}")
    a(f"v_cndmask_b32 v{TU}, v{TU}, v65, vcc")
    a(f"v_cndmask_b32 v{TU+1}, v{TU+1}, v67, vcc")
    a(f"v_add_co_u32 v{TU}, vcc, v{TU}, v64")
    a(f"v_addc_co_u32 v{TU+1}, vcc, 0, v{TU+1}, vcc")
CNT = {"W": 0, "x": 0, "g": 0, "o": 0, "U": 0, "u": 0}
def do_touches(a, seq, opt, lpc, regs=None):
    if opt.get("notouch"): return
    w, x, g, o = regs or (TW, TX, TG, TO)
    for t in seq.split():
        if t in CNT: CNT[t] += 1
        if t == "W":
            a(f"global_load_dword v255, v{w}, s[{P_WQKV}:{P_WQKV+1}]"); a(f"v_add_u32 v{w}, {64*3840}, v{w}")
        elif t == "x":
            a(f"global_load_dword v255, v{x}, s[{P_U}:{P_U+1}] offset:{256*(CNT['x']-1)}")
        elif t == "g":
            a(f"global_load_dword v255, v{g}, s[{P_U}:{P_U+1}]"); a(f"v_add_u32 v{g}, 40960, v{g}")
        elif t == "o":
            a(f"v_min_u32 v{o}, 819196, v{o}")
            a(f"global_load_dword v255, v{o}, s[{P_WO}:{P_WO+1}]"); a(f"v_add_u32 v{o}, 15360, v{o}")
        elif t in "Uu":
            if t == "U": a(f"global_load_dword v255, {V(TU,2)}, off")
            a(f"v_add_co_u32 v{TU}, vcc, v{TU}, v{TU+2}")
            a(f"v_addc_co_u32 v{TU+1}, vcc, 0, v{TU+1}, vcc")
        elif t == "c":
            a("v_lshlrev_b32 v254, 7, v1")
            a(f"v_add_u32 v254, L_p2-{lpc}, v254")
            a(f"v_min_u32 v254, L_code_end-{lpc}-4, v254")
            a("global_load_dword v255, v254, s[64:65]")
        else:
            a(f"s_waitcnt vmcnt({t})")
    assert CNT["W"] <= 10 and CNT["x"] <= 5 and CNT["g"] <= 4 and CNT["U"] + CNT["u"] <= 5
def w7(a, sW, fn):
    l = a.newlabel("Ls_w7")
    a(f"s_cmp_lg_u32 s{sW}, 7")
    a(f"s_cbranch_scc1 {l}")
    fn()
    a.label(l)

def role_s_pro(a, st, sJ, sW, opt):
    a("v_and_b32 v1, 63, v0")
    for r in range(2, 9): a(f"v_mov_b32 v{r}, 0")
    a(f"s_mul_i32 s4, s{sJ}, 1920")
    a(f"s_lshl_b32 s5, s{sW}, 8")
    a("s_add_u32 s4, s4, s5")
    a("v_lshl_add_u32 v42, v1, 1, s4")
    a(f"s_mul_i32 s7, s{sW}, 0xAAAC")
    a("s_lshr_b32 s6, s7, 16")
    a(f"s_mul_i32 s8, s{sJ}, 10")
    a("s_lshl_b32 s9, s6, 1")
    a("s_add_u32 s9, s9, s8")
    a("v_mov_b32 v43, s9")
    touch_setupU(a, sJ)
    a("s_waitcnt lgkmcnt(0)")
    st.stamp(a, "karg")
    ploads(a, 2, 42, 43)
    touch_setupU2(a)
    w7(a, sW, lambda: do_touches(a, opt.get("t0", ""), opt, None))

def ploads(a, base, va, vld):
    PB, PC, PARE, PAIM, PLDT = 2, 4, 6, 7, 8
    a(f"global_load_short_d16_hi v{base+PLDT-2}, v{vld}, s[{P_LDT}:{P_LDT+1}]")
    for reg, p in ((PARE, P_ARE), (PAIM, P_AIM), (PB, P_BRE), (PB+1, P_BIM), (PC, P_CRE), (PC+1, P_CIM)):
        a(f"global_load_short_d16_hi v{base+reg-2}, v{va}, s[{p}:{p+1}]")

def role_s(a, st, sJ, sCT, sW, opt={}):
    vT, vL = 0, 1
    PB, PC, PARE, PAIM, PLDT = 2, 4, 6, 7, 8
    EA = 34
    vTR, vFL = 40, 41
    ACC = 48
    BAND = 200
    u0 = UNITS.index(0)
    lpc = a.newlabel("Ls_pc")
    a("s_getpc_b64 s[64:65]")
    a.label(lpc)
    for r in range(10, 18): a(f"v_mov_b32 v{r}, 0")
    a("s_add_u32 s7, s7, 0x5556")
    a("s_lshr_b32 s7, s7, 16")
    a("s_min_u32 s7, s7, 4")
    a("s_lshl_b32 s9, s7, 1")
    a("s_add_u32 s9, s9, s8")
    a("v_mov_b32 v44, s9")
    a("v_add_u32 v42, 128, v42")
    a("v_min_u32 v42, 245758, v42")
    ploads(a, 10, 42, 44)
    a(f"global_load_short_d16_hi v17, v43, s[{P_DSK}:{P_DSK+1}]")
    a(f"v_lshlrev_b32 v46, 2, v{vT}")
    a(f"v_add_u32 v46, L_tab_src-{lpc}, v46")
    a(f"global_load_dwordx2 {V(EA,2)}, v46, s[64:65]")
    for r in range(ACC, ACC+16): a(f"v_mov_b32 v{r}, 0")
    a(f"s_lshr_b32 s10, 0x92, s{sW}")
    a("s_and_b32 s10, s10, 1")
    a("s_and_b32 s9, s8, -4")
    a("s_movk_i32 s11, 2560")
    a("v_mov_b32 v46, s9")
    a(f"v_mad_u32_u24 v45, v{vT}, s11, v46")
    srd(a, 52, P_U, 2621440)
    a("s_mov_b32 s58, 1")
    touch_setup1(a, sJ); touch_setup2(a, sJ)
    touches = lambda seq: do_touches(a, seq, opt, lpc)
    a(f"v_mov_b32 v46, 0")
    a("s_movk_i32 s11, 3072")
    a(f"v_min_u32 v47, 9, v{vT}")
    a(f"v_mul_u32_u24 v47, s11, v47")
    a(f"v_add_u32 v47, {DB+4*ZW}, v47")
    a("ds_write_b32 v47, v46")
    a(f"v_mov_b32 v47, {LCNT}")
    a("ds_write_b32 v47, v46")
    a(f"v_and_b32 v46, 31, v{vL}")
    a(f"v_lshrrev_b32 v47, 5, v{vL}")
    a(f"v_mad_u32_u24 v9, v47, {HS}, v46")
    a(f"v_mul_u32_u24 v46, {TROW}, v46")
    a(f"v_lshl_add_u32 v46, v47, 4, v46")
    a(f"v_add_u32 v{vTR}, s5, v46")
    a("s_mov_b32 s56, 0")
    a(f"s_add_u32 s57, s5, {T_Z}")
    a("s_waitcnt vmcnt(9)")
    st.stamp(a, "params")
    LK = a.newlabel("Ls_kgen")
    a.label(LK)
    Z1, Z8, Z256, DT, WW = 128, 130, 132, 134, 136
    T0 = 140
    a(f"v_mul_f32 v{DT}, {LOG2E}, v{PLDT}")
    a(f"v_exp_f32 v{DT}, v{DT}")
    cmul(a, T0, PC, PB)
    a(f"v_cvt_pk_bf16_f32 v{DT}, v{DT}, v{DT}")
    a(f"v_and_b32 v{DT}, 0xffff0000, v{DT}")
    a(f"v_mul_f32 v{PARE}, v{DT}, v{PARE}")
    a(f"v_mul_f32 v{PAIM}, v{DT}, v{PAIM}")
    a(f"v_pk_mul_f32 {V(WW,2)}, {V(T0,2)}, {V(DT,2)} op_sel_hi:[1,0]")
    a(f"v_mul_f32 v{PARE}, {LOG2E}, v{PARE}")
    a(f"v_mul_f32 v{PAIM}, {INV2PI}, v{PAIM}")
    a(f"v_exp_f32 v{T0}, v{PARE}")
    a(f"v_rndne_f32 v{T0+2}, v{PAIM}")
    a(f"v_sub_f32 v{PAIM}, v{PAIM}, v{T0+2}")
    a(f"v_cos_f32 v{Z1}, v{PAIM}")
    a(f"v_sin_f32 v{Z1+1}, v{PAIM}")
    a(f"v_mul_f32 v{PARE}, 0x43800000, v{PARE}")
    a(f"v_mul_f32 v{PAIM}, 0x43800000, v{PAIM}")
    a(f"v_pk_mul_f32 {V(Z1,2)}, {V(Z1,2)}, {V(T0,2)} op_sel_hi:[1,0]")
    a(f"v_exp_f32 v{T0+2}, v{PARE}")
    a(f"v_cos_f32 v{Z256}, v{PAIM}")
    a(f"v_sin_f32 v{Z256+1}, v{PAIM}")
    cmul(a, Z8, Z1, Z1)
    a(f"v_pk_mul_f32 {V(Z256,2)}, {V(Z256,2)}, {V(T0+2,2)} op_sel_hi:[1,0]")
    cmul(a, T0, Z8, Z8)
    cmul(a, Z8, T0, T0)
    l = a.newlabel("Ls_r0")
    a("s_cmp_eq_u32 s58, 0")
    a(f"s_cbranch_scc1 {l}")
    a("s_waitcnt vmcnt(0)")
    lo, hi = ("exec_hi", "exec_lo") if u0 & 1 else ("exec_lo", "exec_hi")
    a(f"s_xor_b32 {lo}, s10, 1")
    a(f"s_mov_b32 {hi}, 0")
    a(f"v_mov_b32 v{ACC+(u0>>1)}, v17")
    a("s_mov_b64 exec, -1")
    a(f"v_and_b32 v{EA+2}, 0xffff, v{EA+1}")
    a(f"v_lshrrev_b32 v{EA+1}, 16, v{EA}")
    a(f"v_and_b32 v{EA}, 0xffff, v{EA}")
    for k in range(3): a(f"v_add_u32 v{EA+k}, {DB}, v{EA+k}")
    a(f"s_cmp_lt_u32 s{sW}, 5")
    a(f"s_cbranch_scc1 {l}")
    a(f"v_lshlrev_b32 v46, 4, v{vL}")
    a(f"v_add_u32 v46, L_tab_band-{lpc}+2048, v46")
    for t in range(6):
        a(f"global_load_dwordx4 {V(BAND+4*t,4)}, v46, s[64:65] offset:{1024*t-2048}")
    a(f"s_cmp_lg_u32 s{sW}, 7")
    a(f"s_cbranch_scc1 {l}")
    touches(opt.get("t1", "W x W W x W g g"))
    a.label(l)
    CV = 176
    class Pipe:
        def __init__(s): s.pc = None; s.pw = None; s.n = 0
        def step(s, entry):
            w = s.pw
            if s.pc is not None:
                src, off, neg = s.pc
                r = CV + (s.n % 4); s.n += 1
                a(f"v_cvt_pk_bf16_f32 v{r}, v{src}, {'-' if neg else ''}v{src+1}")
                s.pw = (r, off)
            else: s.pw = None
            if w: a(f"ds_write_addtid_b32 v{w[0]} offset:{w[1]}")
            s.pc = entry
        def drain(s):
            s.step(None); s.step(None)
    a("s_mov_b32 m0, s5")
    p = Pipe()
    uo = lambda pp: unit_row(UNITS.index(pp)) * TROW
    Wreg = {0: WW}
    p.step((WW, uo(0), True))
    for k in range(1, 8):
        Wreg[k] = 144 + 2*k
        cmul(a, Wreg[k], Wreg[k-1], Z1); p.step((Wreg[k], uo(k), True))
    rot = [160, 162, 164, 166]; ri = 0
    for base, cnt in ((0, 8), (4, 3), (2, 1), (6, 1)):
        src = Wreg[base]
        for e in range(1, cnt+1):
            d = rot[ri % 4]; ri += 1
            cmul(a, d, src, Z256); p.step((d, uo(base + 256*e), True)); src = d
    a(f"v_mov_b32 v{T0}, 0x3f80")
    p.drain()
    a("s_mov_b32 m0, s57")
    p = Pipe()
    a(f"ds_write_addtid_b32 v{T0} offset:0")
    p.step((Z8, TROW, False))
    src = Z8
    for q in range(2, 32):
        d = rot[ri % 4]; ri += 1
        cmul(a, d, src, Z8); p.step((d, q*TROW, False)); src = d
        if q == opt.get("q2", 16) and opt.get("t2", "x"): w7(a, sW, lambda: touches(opt.get("t2", "g g W x W")))
    p.drain()
    a("s_waitcnt lgkmcnt(0)")
    FR = 64
    for ks in range(8):
        a(f"ds_read_b128 {V(FR+8*ks,4)}, v{vTR} offset:{32*ks}")
        a(f"ds_read_b128 {V(FR+8*ks+4,4)}, v{vTR} offset:{T_Z+32*ks}")
    a("s_mul_i32 s9, s6, 6144")
    a("s_mul_i32 s11, s10, 3072")
    a("s_add_u32 s9, s9, s11")
    a(f"s_add_u32 s9, s9, {DB}")
    a(f"v_lshl_add_u32 v{vFL}, v9, 2, s9")
    for r in range(2, 9):
        a(f"v_mov_b32 v{r}, v{r+8}")
    for ks in range(8):
        a(f"s_waitcnt lgkmcnt({14-2*ks})")
        a(f"v_mfma_f32_32x32x16_bf16 {V(ACC,16)}, {V(FR+8*ks,4)}, {V(FR+8*ks+4,4)}, {V(ACC,16)}")
    lnf = a.newlabel("Ls_noflush"); lkd = a.newlabel("Ls_kdone")
    a("s_or_b32 s9, s10, s56")
    a(f"s_cbranch_scc0 {lnf}")
    for k in range(11):
        a(f"ds_write_b32 v{vFL}, v{ACC+k} offset:{4*RS*k}")
    for k in range(11):
        a(f"v_mov_b32 v{ACC+k}, 0")
    a.label(lnf)
    a("s_mov_b32 s6, s7")
    a("s_mov_b32 s58, 0")
    a(f"s_cmp_eq_u32 s{sW}, 7")
    a(f"s_cbranch_scc1 {lkd}")
    a("s_xor_b32 s56, s56, 1")
    a(f"s_cbranch_scc1 {LK}")
    a.label(lkd)
    st.stamp(a, "kgen")
    GA = [128 + 4*i for i in range(8)]
    l7 = a.newlabel("Ls_k7"); lg = a.newlabel("Ls_ng")
    a(f"s_cmp_ge_u32 s{sW}, 4")
    a(f"s_cbranch_scc1 {l7}")
    for i in range(8):
        if i and not i & 1: a(f"v_add_u32 v45, {512*1280}, v45")
        a(f"buffer_load_dwordx3 {V(GA[i],3)}, v45, s[52:55], 0 offen offset:{1280*(i&1)}")
    a(f"s_branch {lg}")
    a.label(l7)
    a("s_waitcnt vmcnt(0)")
    a(f"s_cmp_lg_u32 s{sW}, 7")
    a(f"s_cbranch_scc1 {lg}")
    touches(opt.get("t3", "W x W W x W"))
    a.label(lg)
    st.stamp(a, "gather")
    a(f"v_mul_u32_u24 v13, 2185, v{vT}")
    a("v_lshrrev_b32 v13, 16, v13")
    a(f"v_mul_u32_u24 v13, {USTR-480}, v13")
    a(f"v_lshl_add_u32 v13, v{vT}, 4, v13")
    for r in range(20, 24): a(f"v_mov_b32 v{r}, 0")
    a(f"v_and_b32 v14, 15, v{vL}")
    a(f"v_lshrrev_b32 v15, 4, v{vL}")
    a("v_and_b32 v16, 3, v14")
    a("v_sub_u32 v16, 3, v16")
    a(f"v_mul_u32_u24 v16, {KSTR}, v16")
    a("v_lshrrev_b32 v17, 2, v14")
    a("v_sub_u32 v17, 3, v17")
    a("v_lshl_add_u32 v16, v17, 3, v16")
    a(f"v_add_u32 v16, {KB}, v16")
    a(f"v_add_u32 v13, {UB}, v13")
    a("v_lshlrev_b32 v17, 5, v14")
    a("v_and_b32 v18, 1, v15")
    a("v_lshl_add_u32 v18, v18, 9, v17")
    a("v_and_b32 v19, 2, v15")
    a("v_lshl_add_u32 v18, v19, 3, v18")
    a("v_lshl_add_u32 v17, v15, 4, v17")
    a(f"v_add_u32 v17, {UB}, v17")
    a("s_waitcnt lgkmcnt(0)")
    a("s_barrier")
    st.stamp(a, "B1")
    ER = 64
    for c in range(5):
        for k in range(3):
            a(f"ds_read2st64_b32 {V(ER+6*c+2*k,2)}, v{EA+k} offset0:{24*c} offset1:{24*c+12}")
    a(f"v_cmp_gt_u32 vcc, 150, v{vT}")
    a("s_and_saveexec_b64 s[12:13], vcc")
    a(f"ds_write_b128 v13, v[20:23]")
    a("s_mov_b64 exec, s[12:13]")
    a(f"s_add_u32 m0, s5, {KB}")
    a("s_waitcnt lgkmcnt(1)")
    for c in range(5):
        b = ER + 6*c
        for k in range(3):
            a(f"v_add_f32 v{b+2*k}, v{b+2*k}, v{b+2*k+1}")
        a(f"v_cvt_pk_bf16_f32 v{b+1}, v{b}, v{b+2}")
        a(f"v_cvt_pk_bf16_f32 v{b+3}, v{b+2}, v{b+4}")
        o = c*KCH
        a(f"ds_write_addtid_b32 v{b+1} offset:{o}")
        a(f"ds_write_addtid_b32 v{b+3} offset:{o+KSTR}")
        a(f"ds_write_addtid_b32 v{b+1} offset:{o+2*KSTR-4}")
        a(f"ds_write_addtid_b32 v{b+3} offset:{o+3*KSTR-4}")
    l = a.newlabel("Ls_nu")
    a(f"s_cmp_ge_u32 s{sW}, 4")
    a(f"s_cbranch_scc1 {l}")
    a("s_and_b32 s9, s8, 2")
    a("s_lshl_b32 s9, s9, 3")
    a("s_mov_b32 s11, 0x05040100")
    a("s_mov_b32 s12, 0x07060302")
    for g in range(4):
        a(f"s_waitcnt vmcnt({6-2*g})")
        for i in (2*g, 2*g+1):
            r = GA[i]
            a(f"v_alignbit_b32 v{r}, v{r+1}, v{r}, s9")
            a(f"v_alignbit_b32 v{r+1}, v{r+2}, v{r+1}, s9")
            a(f"v_lshrrev_b32 v{r+2}, s9, v{r+2}")
        for c in range(5):
            a(f"v_perm_b32 v{100+5*g+c}, v{GA[2*g+1]+(c>>1)}, v{GA[2*g]+(c>>1)}, s{11+(c&1)}")
        for c in range(5):
            a(f"ds_write_addtid_b32 v{100+5*g+c} offset:{UB - KB + c*USTR + 480 + 1024*g}")
    a.label(l)
    LD = a.newlabel("Ls_dil"); LE = a.newlabel("Ls_end")
    a(f"s_cmp_ge_u32 s{sW}, 5")
    a(f"s_cbranch_scc1 {LD}")
    n0 = st.n
    vA, vB, vX = 2, 3, 4
    a(f"s_mul_i32 s9, s{sW}, {KCH}")
    a("v_lshl_add_u32 v2, v15, 4, v16")
    a(f"v_add_u32 v{vA}, s9, v2")
    a(f"s_mul_i32 s9, s{sW}, {USTR}")
    a(f"v_add_u32 v{vB}, s9, v17")
    a(f"s_mul_i32 s9, s{sW}, 10240")
    a(f"s_add_u32 s9, s9, {XB}")
    a(f"v_lshl_add_u32 v{vX}, v{vL}, 4, s9")
    srd(a, 52, P_WS, 2621440, WS_YT)
    a(f"s_mul_i32 s9, s{sJ}, 5")
    a(f"s_add_u32 s9, s9, s{sW}")
    a("s_lshl_b32 s56, s9, 12")
    a("s_waitcnt lgkmcnt(0)")
    a("s_barrier")
    st.stamp(a, "B2")
    CA = 24; AF = 56; BF = 128; NB = 12
    au = Auto(a)
    Areg = lambda x: AF + 4*(x + 7)
    def rdA(x):
        off = 64*(9 - x) if x <= 9 else 1120
        return [f"ds_read_b64 {V(Areg(x),2)}, v{vA} offset:{off}", f"ds_read_b64 {V(Areg(x)+2,2)}, v{vA} offset:{off+8}"]
    rdB = lambda m: f"ds_read_b128 {V(BF+4*(m % NB),4)}, v{vB} offset:{64*m}"
    groups = []
    for m in range(64):
        g = []
        if m < 8:
            g += rdA(-m) + rdA(8-m)
            if m == 7: g += rdA(9) + rdA(10)
        g.append(rdB(m)); groups.append(g)
    seen = set()
    def mf(i, x, m):
        c = V(CA+4*i, 4) if i in seen else "0"
        seen.add(i)
        return f"v_mfma_f32_16x16x32_bf16 {V(CA+4*i,4)}, {V(Areg(x),4)}, {V(BF+4*(m % NB),4)}, {c}"
    def fin_pair(i, em):
        b = CA + 4*i
        for k in range(4): em(f"v_cvt_pk_bf16_f32 v{b+k}, v{b+2*k}, v{b+2*k+1}")
        em(f"v_permlane16_swap_b32 v{b}, v{b+2}")
        em(f"v_permlane16_swap_b32 v{b+1}, v{b+3}")
        em(f"buffer_store_dwordx4 {V(b,4)}, v18, s[52:55], s56 offen offset:{512*i} sc1")
    flat = [x for g in groups for x in g]
    gend = []; n = 0
    for g in groups: n += len(g); gend.append(n)
    ni = 0
    for _ in range(gend[2]): au(flat[ni]); ni += 1
    for m in range(64):
        j, r = m >> 3, m & 7
        ms = [mf(j, -r, m)]
        if j < 7: ms.append(mf(j+1, 8-r, m))
        if r == 7 and j < 6: ms.append(mf(j+2, 9, m))
        if r == 7 and j < 4: ms.append(mf(j+4, 10, m))
        lim = gend[min(63, m + NB - 2)]
        for x in ms:
            au(x)
            for _ in range(3 if m < 8 else 1):
                if ni < lim: au(flat[ni]); ni += 1
        if m == 24: fin_pair(0, au)
    assert ni == len(flat)
    st.stamp(a, "conv")
    a("s_barrier")
    st.stamp(a, "B3")
    au = Auto(a)
    R = 56
    for t in range(10): au(f"ds_read_b128 {V(R+4*t,4)}, v{vX} offset:{1024*t}")
    for i in range(2, 8):
        for t in ([i-2] + ([i+2] if i >= 4 else [])):
            au(f"v_pk_add_f32 {V(CA+4*i,2)}, {V(CA+4*i,2)}, {V(R+4*t,2)}")
            au(f"v_pk_add_f32 {V(CA+4*i+2,2)}, {V(CA+4*i+2,2)}, {V(R+4*t+2,2)}")
        if i & 1: fin_pair(i-1, au)
    a("s_lshl_b32 s8, s49, 11")
    a(f"s_add_u32 s8, s8, {WS_CNT+256}")
    a("s_and_b32 s9, s49, 3")
    a("s_lshl_b32 s9, s9, 3")
    a("s_lshr_b32 s11, s49, 2")
    a("s_add_u32 s9, s9, s11")
    a("s_lshl_b32 s9, 0x55, s9")
    if opt.get("b4", 1) == 1: a("s_barrier")
    signal(a, 5, 8, 9)
    if opt.get("b4") == 2: a("s_barrier")
    a(f"s_branch {LE}")
    a.label(LD)
    st.n = n0; st.names = st.names[:n0]
    a("s_setprio 1")
    for k, r in enumerate((TW, TX, TG, TO)): a(f"v_mov_b32 v{226+k}, v{r}")
    a("v_lshl_add_u32 v16, v15, 3, v16")
    a(f"v_lshlrev_b32 v19, 4, v{vL}")
    a(f"v_add_u32 v19, {XB}, v19")
    a(f"s_cmp_eq_u32 s{sW}, 6")
    a("s_movk_i32 s56, 0x198")
    a("s_cselect_b32 s56, 0x3ba, s56")
    a(f"s_cmp_eq_u32 s{sW}, 7")
    a("s_cselect_b32 s56, 0x425c, s56")
    a("s_waitcnt lgkmcnt(0)")
    a("s_barrier")
    st.stamp(a, "B2")
    w7(a, sW, lambda: do_touches(a, opt.get("t4", "o o o o"), opt, lpc, (226, 227, 228, 229)))
    a(f"v_and_b32 v224, 7, v{vL}")
    a("v_lshlrev_b32 v224, 2, v224")
    flags_issue(a, 224, 225)
    LU = a.newlabel("Ls_unit"); L3 = a.newlabel("Ls_u3"); LN = a.newlabel("Ls_un")
    a.label(LU)
    a("s_bitcmp1_b32 s56, 3")
    a("s_cselect_b32 s11, 8, 1")
    a("s_and_b32 s9, s56, 15")
    a("s_sub_u32 s9, s9, s11")
    a(f"s_mul_i32 s12, s9, {KCH}")
    a("v_add_u32 v2, s12, v16")
    a(f"s_mul_i32 s12, s9, {USTR}")
    a("v_add_u32 v3, s12, v17")
    a("s_mul_i32 s12, s9, 10240")
    a("v_add_u32 v4, s12, v19")
    a("s_cmp_eq_u32 s11, 1")
    a(f"s_cbranch_scc1 {L3}")
    TP = 24; WN = 48; BX = 96; OP = 128; DA = 144
    def unit(types, d0, nd, nJ, toff, tlen, tbase, xoff):
        au = Auto(a)
        npair = len(types)//2
        rdW = lambda J: [f"ds_read_b128 {V(WN+8*J+4*k,4)}, v3 offset:{512*J+432+16*k}" for k in range(2)]
        def rdT(di): return [f"ds_read_b64 {V(TP+4*(di*npair+(ti>>1))+2*(ti&1),2)}, v2 offset:{2*(toff+tlen*ti+tbase-16*(d0+di))}" for ti in range(len(types))]
        def box(J): return [f"v_mfma_f32_16x16x32_bf16 {V(BX+16*(J&1)+4*ti,4)}, {V(WN+8*J+(0 if stab.W0[ty] == -24 else 4),4)}, {V(BAND+4*ty,4)}, 0" for ti, ty in enumerate(types)]
        def cvt(J): return [f"v_cvt_pk_bf16_f32 v{OP+8*(J&1)+k}, v{BX+16*(J&1)+2*k}, v{BX+16*(J&1)+2*k+1}" for k in range(2*len(types))]
        seen = set()
        def main(J):
            L = []
            for pi in range(npair):
                for di in range(nd):
                    i = J + d0 + di
                    if i > 7: continue
                    acc = DA + 4*(i - d0)
                    c = V(acc, 4) if i in seen else "0"
                    seen.add(i)
                    L.append(f"v_mfma_f32_16x16x32_bf16 {V(acc,4)}, {V(OP+8*(J&1)+4*pi,4)}, {V(TP+4*(di*npair+pi),4)}, {c}")
            return L
        later = [x for di in range(nd) for x in rdT(di)] + [x for J in range(3, nJ) for x in rdW(J)]
        for J in range(3):
            for x in rdW(J): au(x)
        li = 0
        def emit(ms, fill, nread=2):
            nonlocal li
            fi = 0
            for x in ms:
                au(x)
                for _ in range(nread):
                    if li < len(later): au(later[li]); li += 1
                for _ in range(2):
                    if fi < len(fill): au(fill[fi]); fi += 1
            for x in fill[fi:]: au(x)
        emit(box(0), [])
        emit(box(1), [])
        for x in cvt(0): au(x)
        for J in range(nJ):
            emit(main(J), cvt(J+1) if J+1 < nJ else [])
            if J + 2 < nJ: emit(box(J+2), [])
            if J >= 1: au(f"ds_write_b128 v4, {V(DA+4*(J-1),4)} offset:{xoff+1024*(J-1)}")
        au(f"ds_write_b128 v4, {V(DA+4*(nJ-1),4)} offset:{xoff+1024*(nJ-1)}")
        assert li == len(later)
    unit([0,1,2,3], 2, 3, 6, 608, 64, 64, 0)
    w7(a, sW, lambda: do_touches(a, opt.get("t5", ""), opt, lpc, (226, 227, 228, 229)))
    a(f"s_branch {LN}")
    a.label(L3)
    unit([4,5], 4, 4, 4, 864, 80, 112, 6144)
    a.label(LN)
    a("s_lshr_b32 s56, s56, 4")
    a(f"s_cbranch_scc1 {LU}")
    a(f"s_sub_u32 s57, s{sW}, 5")
    wo_setup(a, 2, 57, sCT, 52, 56)
    flags_wait(a, 224, 225)
    a("s_waitcnt lgkmcnt(0)")
    st.stamp(a, "conv")
    a("s_barrier")
    st.stamp(a, "B3")
    if opt.get("b4", 1): a("s_barrier")
    lp = a.newlabel("Ls_wo")
    a("s_mov_b32 s57, 9")
    a.label(lp)
    for t in range(4): a(wo_piece(2, 52, 56, t, 3))
    a(f"s_add_u32 s56, s56, {960*12}")
    a("s_sub_u32 s57, s57, 1")
    a("s_cmp_lg_u32 s57, 0")
    a(f"s_cbranch_scc1 {lp}")
    a("s_setprio 0")
    a("s_waitcnt vmcnt(0)")
    a.label(LE)
```

```python
import sys
from common import *
from role_g import role_g
from role_s import role_s, role_s_pro, tables_text
from role_p2 import role_p2
diag = len(sys.argv) > 2 and sys.argv[2] == "diag"
opt = eval(sys.argv[3]) if len(sys.argv) > 3 else {}
NAME = "gated_mix__ssm_conv_s4__linear_attn_block__prompt_kernel"
HDR = open("gated_mix__ssm_conv_s4__linear_attn_block__prompt.s.ref").read().split("; Override launch")[0]
a = Asm(); stg = Stamps(diag); sts = Stamps(diag)
stg.skip = set(opt.get("skipg", ["karg"])); sts.skip = set(opt.get("skips", ["karg", "gather", "conv", "slab", "params"]))
stg.start(a)
if diag: sts.names.append("start"); sts.n = 1
a("s_cmp_ge_u32 s2, 256")
a("s_cbranch_scc1 L_end")
load_kernargs(a)
a("v_lshrrev_b32 v1, 6, v0")
a("v_readfirstlane_b32 s60, v1")
code_prefetch(a, opt.get("pf1", 9), 3)
a("s_lshr_b32 s3, s2, 3")
a("s_and_b32 s62, s2, 1")
a("s_lshl_b32 s62, s62, 2")
a("s_and_b32 s4, s3, 3")
a("s_add_u32 s62, s62, s4")
a("s_cmp_lt_u32 s3, 16")
a("s_cbranch_scc1 L_g")
a("s_and_b32 s61, s2, 7")
a("s_lshl_b32 s61, s61, 4")
a("s_and_b32 s4, s3, 15")
a("s_add_u32 s61, s61, s4")
role_s_pro(a, sts, 61, 60, opt)
a("s_branch L_s")
a.label("L_g")
a("s_and_b32 s61, s2, 6")
a("s_lshl_b32 s61, s61, 1")
a("s_lshr_b32 s4, s3, 2")
a("s_add_u32 s61, s61, s4")
role_g(a, stg, 61, 62, 60, 62, opt)
a("s_branch L_p2")
a.label("L_s")
role_s(a, sts, 61, 62, 60, opt)
a.label("L_p2")
assert stg.n == sts.n, (stg.names, sts.names)
n0 = stg.n
stg.stamp(a, "done")
a("s_and_b32 s61, s2, 6")
a("s_lshl_b32 s61, s61, 2")
a("s_lshr_b32 s4, s2, 5")
a("s_add_u32 s61, s61, s4")
role_p2(a, stg, 61, 62, 60, opt)
stg.flush(a, 2, 60)
a.label("L_end")
a("s_endpgm")
txt = HDR
if opt.get("list", diag):
    txt += f"; @launch kernel={NAME} grid=(256,1,1) block=(512,1,1) lds=163840\n"
else:
    txt += "; @launch grid=(256,1,1) block=(512,1,1) lds=163840\n"
txt += '.amdgcn_target "amdgcn-amd-amdhsa--gfx950"\n.text\n' + kernel_text(NAME, a, 256) + tables_text() + "L_code_end:\n"
txt += '.section .rodata,"a"\n' + descriptor(NAME, 256, 100)
if diag:
    txt += "; stampsG: " + ",".join(stg.names) + "|np.arange(128)\n"
    txt += "; stampsS: " + ",".join(sts.names + stg.names[n0:]) + "|np.arange(128,256)\n"
open(sys.argv[1], "w").write(txt)
```

```python
from asmlib import *
P_U, P_ARE, P_AIM, P_BRE, P_BIM, P_CRE, P_CIM, P_LDT = 16, 18, 20, 22, 24, 26, 28, 30
P_DSK, P_BX, P_WQKV, P_WO, P_GATE, P_OUT, P_DBG, P_WS = 32, 34, 36, 38, 40, 42, 44, 46
WS_KV = 0
WS_CNT = 131072
WS_G = 65536
WS_PQ = 1 << 20
WS_YT = 4 << 20
WS_UT = 10 << 20
WS_STAMP = 8 << 20
LOG2E = "0x3fb8aa3b"
INV2PI = "0.15915494"

def load_kernargs(a):
    a("s_load_dwordx16 s[16:31], s[0:1], 0")
    a("s_load_dwordx16 s[32:47], s[0:1], 64")

def srd(a, d, base, nbytes, off=0):
    if off:
        a(f"s_add_u32 s{d}, s{base}, {off}")
        a(f"s_addc_u32 s{d+1}, s{base+1}, 0")
    else:
        a(f"s_mov_b32 s{d}, s{base}")
        a(f"s_mov_b32 s{d+1}, s{base+1}")
    a(f"s_mov_b32 s{d+2}, {nbytes}")
    a(f"s_mov_b32 s{d+3}, 0x20000")

class Stamps:
    def __init__(self, on, first=70):
        self.on = on; self.first = first; self.n = 0; self.names = []; self.skip = set()
    def stamp(self, a, name):
        if not self.on or name in self.skip: return
        assert self.n < 13, self.names
        a(f"s_memtime s[{self.first+2*self.n}:{self.first+2*self.n+1}]")
        self.names.append(name); self.n += 1
    def flush(self, a, slot_sreg, wave_sreg, vt=2):
        if not self.on: return
        a("s_waitcnt vmcnt(0) lgkmcnt(0)")
        a(f"s_memtime s[{self.first+2*self.n}:{self.first+2*self.n+1}]")
        a("s_memrealtime s[62:63]")
        a("s_waitcnt lgkmcnt(0)")
        self.names.append("end"); self.n += 1
        a(f"s_lshl_b32 s61, s{slot_sreg}, 3")
        a(f"s_add_u32 s61, s61, s{wave_sreg}")
        a("s_lshl_b32 s61, s61, 6")
        a(f"s_add_u32 s61, s61, {WS_STAMP}")
        a(f"v_mov_b32 v{vt}, s61")
        a("s_mov_b64 exec, 1")
        for i in range(self.n):
            a(f"v_mov_b32 v{vt+1}, s{self.first+2*i}")
            a(f"global_store_dword v{vt}, v{vt+1}, s[{P_WS}:{P_WS+1}] offset:{4*i}")
        a(f"v_mov_b32 v{vt+1}, s68")
        a(f"global_store_dword v{vt}, v{vt+1}, s[{P_WS}:{P_WS+1}] offset:56")
        a(f"v_mov_b32 v{vt+1}, s62")
        a(f"global_store_dword v{vt}, v{vt+1}, s[{P_WS}:{P_WS+1}] offset:60")
        a("s_waitcnt vmcnt(0)")
    def start(self, a):
        if not self.on: return
        a("s_memrealtime s[68:69]")
        self.stamp(a, "start")

def code_prefetch(a, n, wave):
    if not n: return
    l = a.newlabel("Lpf")
    a(f"s_cmp_lg_u32 s60, {wave}")
    a(f"s_cbranch_scc1 {l}")
    a("s_getpc_b64 s[4:5]")
    a.label(l + "_pc")
    a("s_lshr_b32 s6, s2, 3")
    a("s_lshl_b32 s6, s6, 7")
    a("v_and_b32 v1, 63, v0")
    a("v_lshl_add_u32 v1, v1, 12, s6")
    a(f"v_min_u32 v1, L_code_end-{l}_pc-4, v1")
    a(f"s_mov_b64 exec, {(1 << n) - 1}")
    a("global_load_dword v255, v1, s[4:5]")
    a("s_mov_b64 exec, -1")
    a.label(l)

WOB = 51200
LCNT = 163836
SPIN = 0x20000

def flags_issue(a, vaddr, vdst):
    a(f"global_load_dword v{vdst}, v{vaddr}, s[{P_DBG}:{P_DBG+1}] sc1")
def flags_wait(a, vaddr, vdst, first=0):
    lp = a.newlabel("Lfl"); lo = a.newlabel("Lfo")
    a(f"s_mov_b32 s13, {SPIN}")
    if first:
        a(f"s_waitcnt vmcnt({first})")
        a(f"v_cmp_eq_u32 vcc, 0, v{vdst}")
        a(f"s_cbranch_vccz {lo}")
    a.label(lp)
    a("s_waitcnt vmcnt(0)")
    a(f"v_cmp_eq_u32 vcc, 0, v{vdst}")
    a(f"s_cbranch_vccz {lo}")
    flags_issue(a, vaddr, vdst)
    a("s_sub_u32 s13, s13, 1")
    a("s_cmp_lg_u32 s13, 0")
    a(f"s_cbranch_scc1 {lp}")
    a.label(lo)
def signal(a, s_n, s_off, s_mask, t):
    l = a.newlabel("Lsg")
    a(f"v_mov_b32 v{t}, {LCNT}")
    a(f"v_mov_b32 v{t+1}, 1")
    a(f"v_mov_b32 v{t+3}, s{s_off}")
    a(f"v_and_b32 v{t+4}, 28, v1")
    a(f"v_add_u32 v{t+4}, v{t+4}, v1")
    a(f"v_lshlrev_b32 v{t+4}, 8, v{t+4}")
    a(f"v_add_u32 v{t+4}, {WS_CNT+512}, v{t+4}")
    a("s_waitcnt vmcnt(0)")
    a(f"s_cmp_eq_u32 s{s_n}, 0")
    a(f"s_cbranch_scc1 {l}")
    a("s_mov_b64 exec, 1")
    a(f"ds_add_rtn_u32 v{t+2}, v{t}, v{t+1}")
    a("s_waitcnt lgkmcnt(0)")
    a(f"v_cmp_eq_u32 vcc, s{s_n}, v{t+2}")
    a(f"s_cbranch_vccz {l}")
    a(f"global_atomic_add v{t+2}, v{t+3}, v{t+1}, s[{P_WS}:{P_WS+1}] sc0 sc1")
    a("s_waitcnt vmcnt(0)")
    a(f"v_cmp_eq_u32 vcc, 15, v{t+2}")
    a(f"s_cbranch_vccz {l}")
    a(f"s_mov_b32 exec_lo, s{s_mask}")
    a(f"global_atomic_add v{t+4}, v{t+1}, s[{P_WS}:{P_WS+1}] sc1")
    a.label(l)
    a("s_mov_b64 exec, -1")
def poll(a, vaddr, vdst, target):
    lp = a.newlabel("Lpoll")
    a(f"s_mov_b32 s13, {SPIN}")
    a("s_mov_b64 exec, 1")
    a.label(lp)
    a(f"global_load_dword v{vdst}, v{vaddr}, s[{P_WS}:{P_WS+1}] sc1")
    a("s_sub_u32 s13, s13, 1")
    a("s_cselect_b32 s12, 0, -1")
    a("s_waitcnt vmcnt(0)")
    a(f"v_cmp_ne_u32 vcc, {target}, v{vdst}")
    a("s_and_b32 s12, s12, vcc_lo")
    a(f"s_cbranch_scc1 {lp}")
    a("s_mov_b64 exec, -1")
TW, TX = 37, 38
def touch_setup(a):
    a("s_bfe_u32 s48, s2, 0x40003")
    a("v_min_u32 v64, 59, v1")
    a("v_mul_u32_u24 v65, 52, v64")
    a("v_lshrrev_b32 v65, 8, v65")
    a("v_mul_u32_u24 v66, 640, v65")
    a("v_lshl_add_u32 v66, v64, 7, v66")
    a("s_and_b32 s50, s2, 1")
    a(f"s_mul_i32 s12, s50, {5*64*3840+640}")
    a("s_mul_i32 s50, s50, 640")
    a("s_mul_i32 s13, s48, 15360")
    a("s_add_u32 s13, s13, s12")
    a(f"v_add_u32 v{TW}, s13, v66")
    a("v_and_b32 v64, 31, v1")
    a("v_mul_u32_u24 v64, 1280, v64")
    a("v_lshrrev_b32 v65, 5, v1")
    a("v_lshl_add_u32 v64, v65, 7, v64")
    a("s_and_b32 s12, s2, 6")
    a("s_lshl_b32 s12, s12, 3")
    a("s_add_u32 s12, s12, s48")
    a("s_mul_i32 s51, s12, 40960")
    a("s_add_u32 s12, s51, s50")
    a(f"v_add_u32 v{TX}, s12, v64")
def wo_setup(a, vd, s_idx, s_ct, srd_base, s_m0):
    a(f"v_mul_u32_u24 v{vd}, 26, v1")
    a(f"v_lshrrev_b32 v{vd}, 8, v{vd}")
    a(f"v_mul_u32_u24 v{vd}, 1120, v{vd}")
    a(f"v_lshl_add_u32 v{vd}, v1, 4, v{vd}")
    a(f"s_mul_i32 s8, s{s_idx}, 7680")
    a(f"s_mul_i32 s9, s{s_ct}, 160")
    a("s_add_u32 s8, s8, s9")
    a(f"v_add_u32 v{vd}, s8, v{vd}")
    srd(a, srd_base, P_WO, 819200)
    a(f"s_mul_i32 s{s_m0}, s{s_idx}, 960")
    a(f"s_add_u32 s{s_m0}, s{s_m0}, {WOB}")
def wo_piece(vd, srd_base, s_m0, t, n):
    return (f"s_add_u32 m0, s{s_m0}, {960*n*t}\ns_nop 0\nbuffer_load_dwordx4 v{vd}, s[{srd_base}:{srd_base+3}], 0 offen lds\n"
            f"v_add_u32 v{vd}, {7680*n}, v{vd}")
```

```python
from common import *
XSZ = 16384
SEGK = 10240; SEGV = 20480 + 16
STG = XSZ + 30720 + 32
RSTR = 6912
DUMP = 2 * RSTR

def interleave(a, main, fill, start=0, every=1):
    fi = 0
    for i, m in enumerate(main):
        a(m)
        if i >= start and (i - start) % every == 0 and fi < len(fill):
            a(fill[fi]); fi += 1
    for f in fill[fi:]: a(f)

def phi4(a, base, n, vL, tmp):
    for i in range(0, n, 2):
        a(f"v_pk_fma_f32 {V(tmp+i,2)}, {V(base+i,2)}, {V(vL,2)}, {V(vL,2)} op_sel_hi:[1,0,0] neg_lo:[0,0,1] neg_hi:[0,0,1]")
    for i in range(n):
        a(f"v_exp_f32_e64 v{tmp+i}, v{tmp+i} clamp")
    for i in range(n):
        a(f"v_max_f32 v{tmp+i}, v{tmp+i}, v{base+i}")
    for i in range(0, n, 2):
        a(f"v_pk_add_f32 {V(tmp+i,2)}, {V(tmp+i,2)}, {V(vL,2)} op_sel:[0,1] op_sel_hi:[1,1]")

def role_g(a, st, sRB, sG, sW, sCT, opt):
    LEAD = "B"
    vT, vL = 0, 1
    LQ = a.newlabel("Lg_q"); LE = a.newlabel("Lg_end")
    a(f"v_and_b32 v{vL}, 63, v{vT}")
    a(f"v_and_b32 v2, 15, v{vL}")
    a(f"v_lshrrev_b32 v3, 4, v{vL}")
    def common_addr():
        a("v_lshrrev_b32 v4, 1, v2")
        a("v_xor_b32 v4, v4, v3")
        a("v_lshlrev_b32 v4, 4, v4")
        a("v_lshl_add_u32 v4, v2, 7, v4")
        a("v_lshrrev_b32 v5, 1, v3")
        a("v_lshlrev_b32 v5, 4, v5")
        a("v_and_b32 v6, 1, v3")
        a("v_lshl_add_u32 v5, v6, 2, v5")
        a("v_lshrrev_b32 v6, 2, v2")
        a("v_add_u32 v5, v5, v6")
        a("v_mul_u32_u24 v5, 160, v5")
        a("v_and_b32 v6, 3, v2")
        a("v_lshl_add_u32 v5, v6, 3, v5")
        a(f"v_add_u32 v5, {XSZ}, v5")
        a(f"v_mov_b32 v8, {LOG2E}")
        a("v_mov_b32 v9, 0x358637bd")
    def advance():
        a(f"s_add_u32 s12, s12, {STG}")
        a(f"s_cmp_eq_u32 s12, {3*STG}")
        a("s_cselect_b32 s12, 0, s12")
    lq = a.newlabel("Lg_qw")
    a(f"s_cmp_ge_u32 s{sW}, 4")
    a(f"s_cbranch_scc1 {lq}")
    if not opt.get("notouch"):
        lt = a.newlabel("Lg_nt")
        a(f"s_cmp_lg_u32 s{sW}, 1")
        a(f"s_cbranch_scc1 {lt}")
        touch_setup(a)
        a("s_waitcnt lgkmcnt(0)")
        a(f"global_load_dword v255, v{TW}, s[{P_WQKV}:{P_WQKV+1}]")
        for t in opt.get("gt", "W"):
            if t == "W":
                a(f"v_add_u32 v{TW}, {64*3840}, v{TW}")
                a(f"global_load_dword v255, v{TW}, s[{P_WQKV}:{P_WQKV+1}]")
            else:
                a(f"global_load_dword v255, v{TX}, s[{P_U}:{P_U+1}]")
        a.label(lt)
    if opt.get("tbar", 1): a("s_barrier")
    a(f"s_branch {LQ}")
    a.label(lq)

    n0 = st.n
    cA0, cA1, cB, cM = 10, 11, 12, 13
    aA0, aA1, aB, aM = 14, 15, 16, 17
    a(f"s_setprio {opt.get('qprio', 2)}")
    ACC = 32; F = [72, 100]
    dX, dW = 18, 20
    a(f"s_mul_i32 s4, s{sRB}, {128*1280}")
    a(f"s_and_b32 s5, s{sW}, 3")
    a(f"v_lshrrev_b32 v28, 3, v{vL}")
    a("v_mul_u32_u24 v28, 1280, v28")
    a("s_lshl_b32 s6, s5, 2")
    a("v_add_u32 v29, s6, v3")
    a(f"v_xor_b32 v29, v29, v{vL}")
    a("v_and_b32 v29, 7, v29")
    a("v_lshl_add_u32 v28, v29, 4, v28")
    a("s_mul_i32 s6, s5, 10240")
    a("s_add_u32 s6, s6, s4")
    a(f"v_add_u32 v{dX}, s6, v28")
    a("s_lshl_b32 s14, s5, 10")
    a(f"s_mul_i32 s7, s{sG}, 160")
    a("s_lshl_b32 s6, s5, 6")
    a(f"v_add_u32 v31, s6, v{vL}")
    a("s_movk_i32 s8, 3840")
    a("s_movk_i32 s9, 1280")
    for t in range(8):
        a(f"v_add_u32 v28, {256*t}, v31")
        a("v_mul_u32_u24 v29, 6554, v28")
        a("v_lshrrev_b32 v29, 16, v29")
        a("v_mul_u32_u24 v30, 10, v29")
        a("v_sub_u32 v28, v28, v30")
        a("v_lshl_add_u32 v28, v28, 4, s7")
        a("v_lshrrev_b32 v30, 6, v29")
        a("v_mad_u32_u24 v28, v30, s9, v28")
        a("v_lshrrev_b32 v30, 1, v29")
        a("v_xor_b32 v30, v30, v29")
        a("v_and_b32 v30, 4, v30")
        a("v_mul_u32_u24 v30, 3, v30")
        a("v_bitop3_b32 v29, v29, v30, 63 bitop3:0x28")
        a(f"v_mad_u32_u24 v{dW+t}, v29, s8, v28")
    a("s_mov_b32 s15, s14"); a("s_and_b32 s56, s2, 1"); a(f"s_mul_i32 s57, s56, {5*64*3840}"); a("s_mul_i32 s56, s56, 640")
    a("s_waitcnt lgkmcnt(0)")
    st.stamp(a, "karg")
    srd(a, 48, P_U, 2621440)
    srd(a, 52, P_WQKV, 2457600)
    if opt.get("tbar", 1): a("s_barrier")
    def dmaX(t):
        return (f"s_add_u32 m0, s15, {4096*t}\ns_add_u32 s9, s56, {t*32*1280}\n"
                f"buffer_load_dwordx4 v{dX}, s[48:51], s9 offen lds")
    def dmaW(t):
        x = (f"s_add_u32 m0, s15, {XSZ + 4096*t + (16 if t >= 5 else 0)}\ns_nop 0\n"
             f"buffer_load_dwordx4 v{dW+t}, s[52:55], s57 offen lds")
        if t == 7:
            l = a.newlabel("Lg_sk")
            x = f"s_cmp_ge_u32 s5, 2\ns_cbranch_scc1 {l}\n{x}\n{l}:"
        return x
    D2 = lambda: [dmaX(0), dmaW(0), dmaW(1), dmaX(1), dmaW(2), dmaW(3)]
    D1 = lambda: [dmaX(2), dmaW(4), dmaW(5), dmaX(3), dmaW(6), dmaW(7)]
    def nextstage():
        a("s_add_u32 s56, s56, 128"); a(f"s_add_u32 s57, s57, {64*3840}")
        a("s_cmp_eq_u32 s56, 1280"); a("s_cselect_b32 s56, 0, s56"); a("s_cselect_b32 s57, 0, s57")
    for x in D2() + D1(): a(x)
    if opt.get("probe"):
        st.stamp(a, "i0"); a("s_waitcnt vmcnt(10)"); st.stamp(a, "first"); a("s_waitcnt vmcnt(0)"); st.stamp(a, "s0")
    common_addr()
    a("s_lshl_b32 s8, s5, 12")
    a(f"v_add_u32 v{cA0}, s8, v4")
    a(f"v_xor_b32 v{cA1}, 64, v{cA0}")
    a(f"v_mov_b32 v{cB}, v5")
    a(f"v_lshl_add_u32 v{cM}, v6, 5, v5")
    for r in range(40): a(f"v_mov_b32 v{ACC+r}, 1.0")
    a(f"s_add_u32 s15, s15, {STG}"); nextstage()
    for x in D2() + D1(): a(x)
    a(f"s_add_u32 s15, s15, {STG}"); nextstage()
    if LEAD == "A":
        for x in D2(): a(x)
    def q_reads(f, ks):
        L = []
        aa = aA1 if ks else aA0
        o = ks*32*160
        L.append(f"ds_read_b128 {V(f,4)}, v{aa}")
        L.append(f"ds_read_b128 {V(f+4,4)}, v{aa} offset:2048")
        for ct in range(5):
            for h in range(2):
                L.append(f"ds_read_b64_tr_b16 {V(f+8+4*ct+2*h,2)}, v{aB if ct < 4 else aM} offset:{o+(40*ct if ct < 4 else 32)+h*1280}")
        if opt.get("noread"): return []
        return L
    def q_mfma(f):
        if opt.get("nomfma"): return ["s_nop 0"]*10
        return [f"v_mfma_f32_16x16x32_bf16 {V(ACC+8*ct+4*rt,4)}, {V(f+8+4*ct,4)}, {V(f+4*rt,4)}, {V(ACC+8*ct+4*rt,4)}" for ct in range(5) for rt in range(2)]
    def q_addr(): return [f"v_add_u32 v{d}, s12, v{c}" for d, c in ((aA0,cA0),(aB,cB),(aM,cM),(aA1,cA1))]
    def mix(m, r, d):
        out = []; ri = 0; di = 0
        n = len(m)
        for i, x in enumerate(m):
            while di < len(d) and di * n <= i * len(d):
                out.append(d[di]); di += 1
            out.append(x)
            for _ in range(2):
                if ri < len(r): out.append(r[ri]); ri += 1
        out += r[ri:] + d[di:]
        for x in out: a(x)
    a("s_mov_b32 s12, 0")
    for x in q_addr(): a(x)
    st.stamp(a, "pre")
    a(f"s_waitcnt vmcnt({17 if LEAD == 'A' else 11})")
    a("s_barrier")
    st.stamp(a, "B0")
    for x in q_reads(F[0], 0): a(x)
    def body(first, second, vm):
        a("s_waitcnt lgkmcnt(0)")
        mix(q_mfma(F[0]), q_reads(F[1], 1), first)
        if LEAD == "A":
            a("s_add_u32 s15, s12, s14"); nextstage()
        else:
            a("s_add_u32 s58, s12, s14")
        advance()
        for x in q_addr(): a(x)
        a(f"s_waitcnt vmcnt({vm}) lgkmcnt(0)")
        a("s_barrier")
        mix(q_mfma(F[1]), q_reads(F[0], 0), second)
        if LEAD != "A":
            a("s_mov_b32 s15, s58"); nextstage()
    GX, GW = 128, 148
    gl = []
    for i in range(5):
        gl.append(f"global_load_dwordx4 {V(GX+4*i,4)}, v28, s[{P_U}:{P_U+1}] offset:{256*i}")
        gl.append(f"global_load_dwordx4 {V(GW+4*i,4)}, v29, s[{P_GATE}:{P_GATE+1}] offset:{256*i}")
    a(f"s_mov_b32 s13, {7 if LEAD == 'A' else 8}")
    LL = a.newlabel("Lg_ql")
    a.label(LL)
    if opt.get("nodma"): body([], [], 0)
    elif LEAD == "A": body(D1(), D2(), 11)
    else: body(D2(), D1(), 6)
    a("s_sub_u32 s13, s13, 1")
    a("s_cmp_lg_u32 s13, 0")
    a(f"s_cbranch_scc1 {LL}")
    a(f"s_lshl_b32 s7, s{sG}, 4")
    a("s_lshl_b32 s8, s5, 2")
    a("s_add_u32 s7, s7, s8")
    a("s_mul_i32 s8, s7, 1280")
    a("s_add_u32 s8, s8, s4")
    a("v_mul_u32_u24 v28, 1280, v3")
    a("v_lshlrev_b32 v29, 4, v2")
    a("v_add3_u32 v28, v28, v29, s8")
    wo_setup(a, dX, 5, sCT, 52, 56)
    wp = [wo_piece(dX, 52, 56, t, 4) for t in range(27)]
    LEADs = LEAD
    def body8():
        a("s_waitcnt lgkmcnt(0)")
        mix(q_mfma(F[0]), q_reads(F[1], 1), gl)
        advance()
        for x in q_addr(): a(x)
        a("s_waitcnt vmcnt(10) lgkmcnt(0)")
        a("s_barrier")
        mix(q_mfma(F[1]), q_reads(F[0], 0), wp[:9])
    body8()
    a("s_waitcnt vmcnt(9) lgkmcnt(0)")
    a("v_mov_b32 v30, 0"); a("v_mov_b32 v31, 0")
    dots = [f"v_dot2_f32_bf16 v{30+(i&1)}, v{GX+i}, v{GW+i}, v{30+(i&1)}" for i in range(20)]
    dd = []
    for i in range(10): dd += dots[2*i:2*i+2] + wp[9+i:10+i]
    mix(q_mfma(F[0]), q_reads(F[1], 1), dd)
    a("s_nop 2")
    a("v_add_f32 v30, v30, v31")
    for sh in (1, 2, 4, 8):
        a(f"v_add_f32_dpp v30, v30, v30 row_shr:{sh} row_mask:0xf bank_mask:0xf")
    a(f"v_mul_f32 v30, 0xbfb8aa3b, v30")
    a("v_exp_f32 v30, v30")
    a("v_add_f32 v30, 1.0, v30")
    a("v_rcp_f32 v30, v30")
    a(f"s_lshl_b32 s8, s{sRB}, 7")
    a("s_add_u32 s8, s8, s7")
    a("s_lshl_b32 s8, s8, 2")
    a(f"s_add_u32 s8, s8, {WS_G}")
    a("v_lshl_add_u32 v31, v3, 2, s8")
    a("s_mov_b32 exec_lo, 0x80008000"); a("s_mov_b32 exec_hi, 0x80008000")
    a(f"global_store_dword v31, v30, s[{P_WS}:{P_WS+1}] sc1")
    a("s_mov_b64 exec, -1")
    a("s_waitcnt lgkmcnt(0)")
    a("s_barrier")
    a("s_setprio 0")
    mix(q_mfma(F[1]), [], wp[19:])
    st.stamp(a, "loop")
    srd(a, 48, P_WS, 2621440, WS_PQ)
    a(f"v_lshlrev_b32 v28, 4, v{vL}")
    a(f"s_lshl_b32 s6, s{sRB}, 2")
    a("s_add_u32 s6, s6, s5")
    a("s_mul_i32 s6, s6, 40960")
    a(f"s_mul_i32 s7, s{sG}, 5120")
    a("s_add_u32 s6, s6, s7")
    a("s_add_u32 s7, s6, 4096")
    TM = 72
    QB = opt.get("qbar", 2)
    for c0, c1 in ((0, QB), (QB, 5)):
        if c1 > c0: phi4(a, ACC+8*c0, 8*(c1-c0), 8, TM+8*c0)
        for ct in range(c0, c1):
            t = TM + 8*ct
            for k in range(4): a(f"v_cvt_pk_bf16_f32 v{t+k}, v{t+2*k}, v{t+2*k+1}")
        for ct in range(c0, c1):
            t = TM + 8*ct
            a(f"v_permlane16_swap_b32 v{t}, v{t+2}")
            a(f"v_permlane16_swap_b32 v{t+1}, v{t+3}")
            so, off = (6, 1024*ct) if ct < 4 else (7, 0)
            a(f"buffer_store_dwordx4 {V(t,4)}, v28, s[48:51], s{so} offen offset:{off} sc1")
        if c0 == 0:
            st.stamp(a, "epi"); a("s_barrier")
    st.stamp(a, "epi2")
    a(f"s_branch {LE}")

    ACC = 32; F = [112, 148]
    cA0, cA1, cB, cM = 10, 11, 12, 13
    aA0, aA1, aB, aM = 14, 15, 16, 17
    SC = 18
    a.label(LQ)
    st.n = n0; st.names = st.names[:n0]
    common_addr()
    a(f"s_and_b32 s5, s{sW}, 1")
    a(f"s_lshr_b32 s6, s{sW}, 1")
    a(f"v_and_b32 v28, 7, v{vL}")
    a("v_lshlrev_b32 v28, 2, v28")
    a("v_mov_b32 v184, 0")
    a(f"v_mov_b32 v30, {LCNT}")
    a("ds_write_b32 v30, v184")
    a("s_waitcnt lgkmcnt(0)")
    st.stamp(a, "karg")
    if opt.get("probe"):
        st.stamp(a, "i0"); st.stamp(a, "first"); st.stamp(a, "s0")
    a(f"s_mul_i32 s8, s{sG}, 6720")
    a(f"s_add_u32 s52, s{P_WS}, s8")
    a(f"s_addc_u32 s53, s{P_WS+1}, 0")
    a("s_mov_b32 s54, 6720")
    a("s_mov_b32 s55, 0x20000")
    a("s_lshl_b32 s8, s6, 13")
    a(f"v_add_u32 v{cA0}, s8, v4")
    a(f"v_xor_b32 v{cA1}, 64, v{cA0}")
    a("s_mul_i32 s8, s5, 80")
    a(f"s_add_u32 s8, s8, {SEGK}")
    a(f"v_add_u32 v{cB}, s8, v5")
    a("v_cmp_lt_u32 vcc, 1, v6")
    a(f"v_mov_b32 v30, 64")
    a(f"v_mov_b32 v31, {SEGV-SEGK-16}")
    a("v_cndmask_b32 v30, v30, v31, vcc")
    a(f"v_add_u32 v{cM}, v{cB}, v30")
    a("v_cmp_gt_u32 s[10:11], 8, v2")
    a("v_cndmask_b32 v30, 0, 1.0, s[10:11]")
    for rt in range(4):
        for ct in range(5):
            for j in range(4):
                src = "1.0" if ct < 2 else ("v30" if ct == 2 else "0")
                a(f"v_mov_b32 v{ACC+20*rt+4*ct+j}, {src}")
    pairs = [(0,2),(0,3),(1,2),(1,3),(1,4),(2,3),(2,4)]
    a(f"s_mul_i32 s8, s6, {RSTR}")
    a("s_mul_i32 s9, s5, 3360")
    a("s_add_u32 s8, s8, s9")
    a(f"v_lshlrev_b32 v31, 2, v{vL}")
    a(f"v_add_u32 v31, {DUMP}, v31")
    T = 112
    for kt in range(3):
        a(f"v_add_u32 v30, {16*kt}, v2")
        a(f"v_mul_u32_u24 v{T+kt}, 13, v30")
        a(f"v_lshrrev_b32 v{T+kt}, 8, v{T+kt}")
        a(f"v_mul_u32_u24 v{T+4+kt}, 1600, v{T+kt}")
        a(f"v_lshl_add_u32 v{T+4+kt}, v30, 2, v{T+4+kt}")
        a(f"v_add_u32 v{T+4+kt}, s8, v{T+4+kt}")
    for vt in range(2, 5):
        a(f"v_lshl_add_u32 v30, v3, 2, {16*vt-20}")
        a(f"v_mul_u32_u24 v{T+8+vt}, 13, v30")
        a(f"v_lshrrev_b32 v{T+8+vt}, 8, v{T+8+vt}")
        a(f"v_mul_u32_u24 v{T+16+vt}, 20, v{T+8+vt}")
        a(f"v_sub_u32 v{T+16+vt}, v30, v{T+16+vt}")
        a(f"v_mul_u32_u24 v{T+16+vt}, 80, v{T+16+vt}")
        a(f"v_add_u32 v{T+8+vt}, -1, v{T+8+vt}")
    for i, (kt, vt) in enumerate(pairs):
        a(f"v_cmp_eq_u32 vcc, v{T+kt}, v{T+8+vt}")
        a(f"v_add_u32 v30, v{T+4+kt}, v{T+16+vt}")
        a(f"v_cndmask_b32 v{SC+i}, v31, v30, vcc")
    for kt in range(3):
        a(f"v_lshl_add_u32 v30, v3, 2, v{T+kt}")
        a("v_cmp_gt_u32 vcc, 2, v30")
        a(f"v_add_u32 v30, 1600, v{T+4+kt}")
        a(f"v_cndmask_b32 v{SC+7+kt}, v31, v30, vcc")
    def kv_reads(f, ks):
        L = []
        aa = aA1 if ks else aA0
        o = ks*32*160
        bo = [(aB, 0), (aB, 32), (aM, 0), (aB, SEGV-SEGK+16), (aB, SEGV-SEGK+48)]
        L.append(f"ds_read_b128 {V(f,4)}, v{aa}")
        for ct in range(5):
            for h in range(2):
                L.append(f"ds_read_b64_tr_b16 {V(f+16+4*ct+2*h,2)}, v{bo[ct][0]} offset:{o+bo[ct][1]+h*1280}")
        for rt in range(1, 4):
            L.append(f"ds_read_b128 {V(f+4*rt,4)}, v{aa} offset:{2048*rt}")
        if opt.get("noread"): return []
        return L
    def kv_mfma(f):
        if opt.get("nomfma"): return ["s_nop 0"]*20
        return [f"v_mfma_f32_16x16x32_bf16 {V(ACC+20*rt+4*ct,4)}, {V(f+4*rt,4)}, {V(f+16+4*ct,4)}, {V(ACC+20*rt+4*ct,4)}" for rt in range(4) for ct in range(5)]
    def kv_addr(): return [f"v_add_u32 v{d}, s12, v{c}" for d, c in ((aA0,cA0),(aB,cB),(aM,cM),(aA1,cA1))]
    a("s_mov_b32 s12, 0"); a("s_mov_b32 s13, 9")
    for x in kv_addr(): a(x)
    st.stamp(a, "pre")
    a("s_waitcnt lgkmcnt(0)")
    a("s_barrier")
    st.stamp(a, "B0")
    for x in kv_reads(F[0], 0): a(x)
    LL = a.newlabel("Lg_kvl")
    a.label(LL)
    a("s_waitcnt lgkmcnt(0)")
    m = kv_mfma(F[0])
    interleave(a, m[:16], kv_reads(F[1], 1))
    advance()
    interleave(a, m[16:], kv_addr())
    a("s_waitcnt lgkmcnt(0)")
    a("s_barrier")
    interleave(a, kv_mfma(F[1]), kv_reads(F[0], 0))
    a("s_sub_u32 s13, s13, 1")
    a("s_cmp_lg_u32 s13, 0")
    a(f"s_cbranch_scc1 {LL}")
    a("s_waitcnt lgkmcnt(0)")
    interleave(a, kv_mfma(F[0]), kv_reads(F[1], 1))
    flags_issue(a, 28, 184)
    a("s_waitcnt lgkmcnt(0)")
    a("s_barrier")
    a("s_setprio 3")
    for x in kv_mfma(F[1]): a(x)
    st.stamp(a, "loop")
    P = 188
    TM = 112
    ONE = 132
    for j in range(4): a(f"v_mov_b32 v{ONE+j}, 0x3f803f80")
    KD = 136
    for rt in range(4):
        b = ACC + 20*rt
        phi4(a, b, 12, 8, TM)
        for j in range(4):
            a(f"v_cndmask_b32 v{TM+8+j}, v{b+8+j}, v{TM+8+j}, s[10:11]")
        for ct in range(5):
            s = TM + 4*ct if ct < 3 else b + 4*ct
            d = P + 8*ct + 2*rt
            a(f"v_cvt_pk_bf16_f32 v{d}, v{s}, v{s+1}")
            a(f"v_cvt_pk_bf16_f32 v{d+1}, v{s+2}, v{s+3}")
    for kp in range(2):
        for i, (kt, vt) in enumerate(pairs):
            c = "0" if kp == 0 else V(KD+4*i, 4)
            a(f"v_mfma_f32_16x16x32_bf16 {V(KD+4*i,4)}, {V(P+8*vt+4*kp,4)}, {V(P+8*kt+4*kp,4)}, {c}")
        for kt in range(3):
            c = "0" if kp == 0 else V(KD+28+4*kt, 4)
            a(f"v_mfma_f32_16x16x32_bf16 {V(KD+28+4*kt,4)}, {V(ONE,4)}, {V(P+8*kt+4*kp,4)}, {c}")
    for i in range(7):
        a(f"ds_write2_b32 v{SC+i}, v{KD+4*i}, v{KD+4*i+1} offset0:0 offset1:20")
        a(f"ds_write2_b32 v{SC+i}, v{KD+4*i+2}, v{KD+4*i+3} offset0:40 offset1:60")
    for kt in range(3):
        a(f"ds_write_b32 v{SC+7+kt}, v{KD+28+4*kt}")
    a(f"v_lshlrev_b32 v2, 2, v{vT}")
    a("v_add_u32 v3, 4096, v2")
    flags_wait(a, 28, 184)
    st.stamp(a, "epi")
    a("s_waitcnt lgkmcnt(0)")
    a("s_barrier")
    for i in range(7):
        a(f"ds_read2st64_b32 {V(4+2*i,2)}, v2 offset0:{4*i} offset1:{4*i+27}")
    for i in range(7):
        a(f"s_waitcnt lgkmcnt({6-i})")
        a(f"v_add_f32 v{4+2*i}, v{4+2*i}, v{5+2*i}")
        a(f"buffer_atomic_add_f32 v{4+2*i}, v{2 + (i >> 2)}, s[52:55], 0 offen offset:{1024*(i&3)}")
    st.stamp(a, "epi2")
    a.label(LE)
    a("s_setprio 0")
    a(f"s_lshl_b32 s57, s{sG}, 11")
    a(f"s_add_u32 s57, s57, {WS_CNT}")
    a("s_mov_b32 s58, -1")
    a("s_mov_b32 s56, 7")
```

```python
from common import *
YB = 0; KVB = 12288; RB = 12288
PL = 2064; TS = 16*PL + 64
def role_p2(a, st, sSB, sCT, sW, opt):
    vT, vL = 0, 1
    a(f"s_and_b32 s4, s{sW}, 1")
    a(f"s_lshr_b32 s5, s{sW}, 1")
    a(f"v_lshlrev_b32 v2, 4, v{vT}")
    a(f"s_lshl_b32 s6, s{sSB}, 1")
    a("s_add_u32 s6, s6, s4")
    a("s_mul_i32 s7, s6, 40960")
    a("s_mul_i32 s8, s5, 10240")
    a("s_add_u32 s7, s7, s8")
    a(f"s_add_u32 s7, s7, {WS_PQ+4096}")
    a(f"v_lshl_add_u32 v3, v{vL}, 4, s7")
    a("v_add_u32 v4, 8192, v3")
    a(f"v_and_b32 v6, 31, v{vL}")
    a(f"v_lshrrev_b32 v7, 5, v{vL}")
    a("s_lshl_b32 s7, s6, 7")
    a(f"s_add_u32 s7, s7, {WS_G}")
    a("v_lshl_add_u32 v8, v6, 2, s7")
    a(f"v_lshrrev_b32 v10, 3, v{vL}")
    a(f"v_lshrrev_b32 v11, 4, v{vL}")
    a(f"s_lshl_b32 s7, s{sW}, 2")
    a("v_add_u32 v11, s7, v11")
    a(f"v_xor_b32 v11, v11, v{vL}")
    a("v_and_b32 v11, 7, v11")
    a("v_lshlrev_b32 v11, 4, v11")
    a("v_lshl_add_u32 v10, v10, 12, v11")
    a(f"s_mul_i32 s7, s{sCT}, {80*4096}")
    a(f"s_lshl_b32 s8, s{sSB}, 7")
    a("s_add_u32 s7, s7, s8")
    a(f"s_add_u32 s7, s7, {WS_YT}")
    a(f"s_lshl_b32 s8, s{sW}, 15")
    a("s_add_u32 s8, s8, s7")
    a("v_add_u32 v5, s8, v10")
    a(f"s_lshl_b32 s8, s4, 15")
    a("s_add_u32 s8, s8, s7")
    a("s_add_u32 s8, s8, 0x40000")
    a("v_add_u32 v9, s8, v10")
    srd(a, 48, P_WS, 53760, WS_KV)
    a("v_lshrrev_b32 v16, 3, v6")
    a("v_and_b32 v17, 3, v6")
    a("v_lshl_add_u32 v16, v16, 2, v17")
    a("v_bfe_u32 v17, v6, 2, 1")
    a("v_lshl_add_u32 v16, v16, 1, v17")
    a("v_min_u32 v16, 20, v16")
    a("v_mul_u32_u24 v16, 40, v16")
    a("s_mul_i32 s7, s5, 6720")
    a("v_add_u32 v14, s7, v16")
    a("v_lshl_add_u32 v13, v7, 4, v14")
    a(f"v_bfe_u32 v16, v{vL}, 2, 2")
    a("v_lshl_add_u32 v16, v16, 1, v7")
    a("v_mul_u32_u24 v16, 160, v16")
    a(f"v_bfe_u32 v17, v{vL}, 4, 1")
    a("v_lshl_add_u32 v16, v17, 5, v16")
    a(f"v_and_b32 v17, 3, v{vL}")
    a("v_lshl_add_u32 v16, v17, 3, v16")
    a("s_mul_i32 s7, s5, 25600")
    a(f"s_add_u32 s7, s7, {WOB}")
    a("v_add_u32 v15, s7, v16")
    a("s_lshl_b32 s7, s4, 2")
    a("s_lshl_b32 s8, s5, 1")
    a("s_add_u32 s7, s7, s8")
    a("v_add_u32 v16, s7, v7")
    a("v_bfe_u32 v17, v6, 1, 3")
    a("v_xor_b32 v16, v16, v17")
    a("v_and_b32 v16, 7, v16")
    a("v_lshlrev_b32 v16, 4, v16")
    a("v_lshl_add_u32 v10, v6, 7, v16")
    FA = 224
    for k in range(2):
        a(f"v_add_u32 v16, {512*k}, v{vT}")
        a("v_mul_u32_u24 v17, 6554, v16")
        a("v_lshrrev_b32 v17, 16, v17")
        a("v_mul_u32_u24 v18, 10, v17")
        a("v_sub_u32 v18, v16, v18")
        a("v_mul_u32_u24 v19, 1280, v17")
        a(f"v_lshl_add_u32 v{FA+2*k}, v18, 4, v19")
        a("v_bfe_u32 v19, v17, 3, 2")
        a("v_and_b32 v16, 3, v17")
        a("v_lshl_add_u32 v19, v19, 2, v16")
        a(f"v_mul_u32_u24 v19, {PL}, v19")
        a("v_lshrrev_b32 v16, 5, v17")
        a("v_lshl_add_u32 v19, v16, 8, v19")
        a("v_bfe_u32 v16, v17, 2, 1")
        a("v_lshl_add_u32 v19, v16, 7, v19")
        a("v_lshrrev_b32 v16, 2, v18")
        a(f"v_mul_u32_u24 v16, {TS}, v16")
        a("v_add_u32 v19, v19, v16")
        a("v_and_b32 v16, 3, v18")
        a(f"v_lshl_add_u32 v{FA+2*k+1}, v16, 5, v19")
    a("s_lshr_b32 s7, s2, 3")
    a("s_mul_i32 s8, s7, 37")
    a("s_lshr_b32 s8, s8, 8")
    a("s_mul_i32 s8, s8, 7")
    a("s_sub_u32 s7, s7, s8")
    a("s_lshl_b32 s7, s7, 13")
    for i in range(7):
        a(f"v_add_u32 v{212+i}, s7, v2")
        a("s_add_u32 s7, s7, 8192")
        a("s_cmp_eq_u32 s7, 57344")
        a("s_cselect_b32 s7, 0, s7")
    A2 = 56
    for r in range(A2, A2+32): a(f"v_mov_b32 v{r}, 0")
    signal(a, 56, 57, 58, 16)
    st.stamp(a, "ready")
    if opt.get("prebar", 1): a("s_barrier")
    lsk = a.newlabel("Lp_np"); lp = a.newlabel("Lp_poll")
    a(f"s_cmp_lg_u32 s{sW}, 0")
    a(f"s_cbranch_scc1 {lsk}")
    a("s_and_b32 s7, s2, 31")
    a("s_and_b32 s8, s2, 28")
    a("s_add_u32 s7, s7, s8")
    a("s_lshl_b32 s7, s7, 8")
    a(f"s_add_u32 s7, s7, {WS_CNT+512}")
    a("v_mov_b32 v16, s7")
    poll(a, 16, 17, 9)
    a.label(lsk)
    a("s_barrier")
    st.stamp(a, "go")
    KL = 176
    for i in range(7):
        a(f"buffer_load_dwordx4 {V(KL+4*i,4)}, v{212+i}, s[48:51], 0 offen sc1")
    if opt.get("p2bar", 1): a("s_barrier")
    PQ = 16
    order = [4, 0, 1, 2, 3, 9, 5, 6, 7, 8]
    NPRE = opt.get("npre", 3)
    pql = [f"global_load_dwordx4 {V(PQ+4*i,4)}, v{3+(i>>3)}, s[{P_WS}:{P_WS+1}] offset:{1024*(i&7)-4096} sc1" for i in order]
    a(f"global_load_dword v12, v8, s[{P_WS}:{P_WS+1}] sc1")
    for x in pql[:NPRE]: a(x)
    for i in range(7): a(f"v_lshrrev_b32 v{212+i}, 1, v{212+i}")
    WB = 228; NW = 6
    def wrd(k):
        m, t = divmod(k, 3)
        return [f"ds_read_b64_tr_b16 {V(WB+4*(k%NW)+2*h,2)}, v15 offset:{(16*m+8*h)*160+64*t}" for h in range(2)]
    for k in range(NW):
        for x in wrd(k): a(x)
    for i in range(7):
        a(f"s_waitcnt vmcnt({1+NPRE+6-i})")
        a(f"v_cvt_pk_bf16_f32 v{KL+4*i}, v{KL+4*i}, v{KL+4*i+1}")
        a(f"v_cvt_pk_bf16_f32 v{KL+4*i+1}, v{KL+4*i+2}, v{KL+4*i+3}")
        a(f"ds_write_b64 v{212+i}, {V(KL+4*i,2)} offset:{KVB}")
    a("s_waitcnt lgkmcnt(0)")
    st.stamp(a, "kv")
    a("s_barrier")
    st.stamp(a, "Ba")
    A1 = 92
    OD = [104, 120]
    O = 136
    ACC = 176
    WB = 228
    au = Auto(a)
    def rdA1(hh): return [f"ds_read_b64 {V(A1+4*(hh%3),2)}, v13 offset:{KVB+840*hh}", f"ds_read_b64 {V(A1+4*(hh%3)+2,2)}, v13 offset:{KVB+840*hh+8}"]
    for x in rdA1(0): au(x)
    a("s_mov_b32 exec_hi, 0")
    for hh in (0, 1, 4, 5): au(f"ds_read_b64 {V(A2+4*hh+2*(hh&1),2)}, v14 offset:{KVB+840*hh+32}")
    a("s_not_b64 exec, exec")
    for hh in (2, 3, 6, 7): au(f"ds_read_b64 {V(A2+4*hh+2*(hh&1),2)}, v14 offset:{KVB+840*hh+32}")
    a("s_mov_b64 exec, -1")
    for x in rdA1(1) + rdA1(2): au(x)
    def mm(hh):
        q, j = hh >> 2, hh & 3
        d = OD[hh & 1]
        return [f"v_mfma_f32_32x32x16_bf16 {V(d,16)}, {V(A2+4*hh,4)}, {V(PQ+20*q+16,4)}, 0",
                f"v_mfma_f32_32x32x16_bf16 {V(d,16)}, {V(A1+4*(hh%3),4)}, {V(PQ+20*q+4*j,4)}, {V(d,16)}"]
    def fin(hh):
        d = OD[hh & 1]
        L = [f"v_add_f32 v{d+10}, 0x358637bd, v{d+10}", f"v_rcp_f32 v{d+10}, v{d+10}", f"v_mul_f32 v{d+10}, v{d+10}, v12"]
        for r in range(5):
            L += [f"v_mul_f32 v{d+2*r}, v{d+2*r}, v{d+10}", f"v_mul_f32 v{d+2*r+1}, v{d+2*r+1}, v{d+10}"]
        L += [f"v_cvt_pk_bf16_f32 v{O+5*hh+r}, v{d+2*r}, v{d+2*r+1}" for r in range(5)]
        return L
    NW = 6
    def wrd(k):
        m, t = divmod(k, 3)
        return [f"ds_read_b64_tr_b16 {V(WB+4*(k%NW)+2*h,2)}, v15 offset:{(16*m+8*h)*160+64*t}" for h in range(2)]
    def wmm(k):
        m, t = divmod(k, 3)
        return f"v_mfma_f32_32x32x16_bf16 {V(ACC+16*t,16)}, {V(O+4*m,4)}, {V(WB+4*(k%NW),4)}, {'0' if m == 0 else V(ACC+16*t,16)}"
    vq = ["g"] + order[:NPRE]
    rest = [(order[k], pql[k]) for k in range(NPRE, 10)]
    YL = 56
    rest += [("y0", f"global_load_dwordx4 {V(YL,4)}, v5, s[{P_WS}:{P_WS+1}] sc1")]
    def vissue(n):
        for _ in range(n):
            if rest:
                t, x = rest.pop(0); a(x); vq.append(t)
    def vwait(tags):
        last = max(vq.index(t) for t in tags)
        a(f"s_waitcnt vmcnt({len(vq)-1-last})")
    need = lambda hh: [5*(hh >> 2) + 4, 5*(hh >> 2) + (hh & 3)]
    vissue(2)
    vwait(["g"])
    DG = 88
    a("v_cvt_pk_bf16_f32 v11, v12, v12")
    a("v_and_b32 v12, 0xffff0000, v11")
    a("v_sub_f32 v12, 1.0, v12")
    a("v_and_b32 v11, 0xffff, v11")
    a("s_lshl_b32 s7, s5, 4")
    a("v_lshl_add_u32 v252, v7, 3, s7")
    a("v_sub_u32 v252, v6, v252")
    a("v_and_b32 v253, 1, v252")
    a("v_lshlrev_b32 v253, 4, v253")
    a("v_lshlrev_b32 v11, v253, v11")
    a("v_ashrrev_i32 v252, 1, v252")
    for x in range(4):
        a(f"v_cmp_eq_u32 vcc, {x}, v252")
        a(f"v_cndmask_b32 v{DG+x}, 0, v11, vcc")
    vwait(need(0))
    for x in mm(0): au(x)
    for x in rdA1(3): au(x)
    kdone = 0
    for hh in range(9):
        ms = []
        vissue(2 if hh < 2 else 1)
        if hh + 1 < 8:
            vwait(need(hh+1))
            ms += [(x, []) for x in mm(hh+1)]
            if hh + 4 < 8: ms[-1] = (ms[-1][0], rdA1(hh+4))
        if hh == 4:
            assert not rest
            l = a.newlabel("Lp_y2")
            a(f"s_cmp_ge_u32 s{sW}, 2"); a(f"s_cbranch_scc1 {l}")
            a(f"global_load_dwordx4 {V(YL+4,4)}, v9, s[{P_WS}:{P_WS+1}] sc1")
            a.label(l)
        if hh == 8:
            a("s_waitcnt vmcnt(0)")
            au(f"ds_write_b128 v2, {V(YL,4)} offset:{YB}")
            a(f"s_cmp_lt_u32 s{sW}, 2")
            a("s_cselect_b64 exec, -1, 0")
            au(f"ds_write_b128 v2, {V(YL+4,4)} offset:{YB+8192}")
            a("s_mov_b64 exec, -1")
        klim = 3*((10*hh)//8)
        while kdone < klim:
            ms.append((wmm(kdone), wrd(kdone+NW) if kdone + NW < 30 else [])); kdone += 1
        fl = fin(hh) if hh < 8 else []
        fi = 0
        for i, (m, rd) in enumerate(ms):
            au(m)
            for x in rd: au(x)
            if i >= 1:
                n = -(-len(fl) // max(1, len(ms) - 1))
                for x in fl[fi:fi+n]: au(x)
                fi += n
        for x in fl[fi:]: au(x)
    assert kdone == 30
    au.drain()
    st.stamp(a, "gemm")
    srd(a, 48, P_OUT, 2621440)
    a(f"s_mul_i32 s7, s{sSB}, {64*1280}")
    a(f"s_mul_i32 s8, s{sCT}, 160")
    a("s_add_u32 s7, s7, s8")
    a(f"s_lshl_b32 s9, s{sW}, 8")
    a("s_barrier")
    lsk = a.newlabel("Lp_sk")
    a("s_cmp_ge_u32 s5, 2"); a(f"s_cbranch_scc1 {lsk}")
    for t in range(3): a(f"ds_read_b128 {V(16+4*t,4)}, v10 offset:{YB+4096*t}")
    for t in range(3):
        a(f"s_waitcnt lgkmcnt({2-t})")
        a(f"v_mfma_f32_32x32x16_bf16 {V(ACC+16*t,16)}, {V(DG,4)}, {V(16+4*t,4)}, {V(ACC+16*t,16)}")
    a.label(lsk)
    for t in range(3):
        a(f"s_add_u32 m0, s9, {RB+min(t,1)*TS}")
        for r in range(16):
            a(f"ds_write_addtid_b32 v{ACC+16*t+r} offset:{r*PL + (TS if t == 2 else 0)}")
    a("s_waitcnt lgkmcnt(0)")
    a("s_barrier")
    st.stamp(a, "Bd")
    lsk = a.newlabel("Lp_sk")
    for k in range(2):
        if k == 1:
            a(f"s_cmp_ge_u32 s{sW}, 2"); a(f"s_cbranch_scc1 {lsk}")
        R = 16 + 32*k
        for p in range(4):
            for h in range(2):
                a(f"ds_read_b128 {V(R+8*p+4*h,4)}, v{FA+2*k+1} offset:{RB+512*p+16*h}")
        a("s_waitcnt lgkmcnt(4)")
        for i in range(0, 8, 2): a(f"v_pk_add_f32 {V(R+i,2)}, {V(R+i,2)}, {V(R+8+i,2)}")
        a("s_waitcnt lgkmcnt(0)")
        for i in range(0, 8, 2): a(f"v_pk_add_f32 {V(R+16+i,2)}, {V(R+16+i,2)}, {V(R+24+i,2)}")
        for i in range(0, 8, 2): a(f"v_pk_add_f32 {V(R+i,2)}, {V(R+i,2)}, {V(R+16+i,2)}")
        for i in range(4): a(f"v_cvt_pk_bf16_f32 v{R+i}, v{R+2*i}, v{R+2*i+1}")
        a(f"buffer_store_dwordx4 {V(R,4)}, v{FA+2*k}, s[48:51], s7 offen")
    a.label(lsk)
```

```python
from common import *
import stab
TROW = 2064
T_Z = 24 * TROW
DB = 56 * TROW + 1024
KSTR = 2112; KCH = 4 * KSTR
XB = 0
KB = 51200
UB = KB + 5 * KCH
USTR = 4640
SLAB = 143344
UNITS = [4, 512, 6, 1792, 1, 260, 1024, 2, 7, None, 5, 256, 772, 258, 3, 516, 2048, 0, 1536, 768, 1280, 262]
HS, RS, ZW = 33, 69, 767
def unit_row(u):
    k = u >> 1
    return 8*(k >> 2) + 4*(u & 1) + (k & 3)

def tables_text():
    _, addr = stab.cost(UNITS, HS, RS, ZW)
    t = ".p2align 8\nL_tab_band:\n"
    b = stab.band_table().reshape(-1).view("uint32")
    for i in range(0, len(b), 8):
        t += "    .long " + ", ".join(hex(int(x)) for x in b[i:i+8]) + "\n"
    t += "L_tab_src:\n"
    addr = [4*x for x in addr]
    for i in range(0, len(addr), 16):
        t += "    .short " + ", ".join(str(x) for x in addr[i:i+16]) + "\n"
    return t

def cmul(a, t, x, m):
    a(f"v_pk_mul_f32 {V(t,2)}, {V(x,2)}, {V(m,2)} op_sel:[0,0] op_sel_hi:[0,1]")
    a(f"v_pk_fma_f32 {V(t,2)}, {V(x,2)}, {V(m,2)}, {V(t,2)} op_sel:[1,1,0] op_sel_hi:[1,0,1] neg_lo:[0,1,0]")

TO = 39
CNT = {"W": 2, "x": 0, "o": 0}
def do_touches(a, seq, opt, regs=None):
    if opt.get("notouch"): return 0
    w, x, o = regs or (TW, TX, TO)
    n = 0
    for t in seq.split():
        if t == "W":
            a(f"v_add_u32 v{w}, {'s59' if CNT['W'] == 5 else 64*3840}, v{w}")
            a(f"global_load_dword v255, v{w}, s[{P_WQKV}:{P_WQKV+1}]")
        elif t == "x":
            a(f"global_load_dword v255, v{x}, s[{P_U}:{P_U+1}] offset:{(0, 256, 384)[CNT['x']]}")
        elif t == "o":
            a(f"v_min_u32 v{o}, 819196, v{o}")
            a(f"global_load_dword v255, v{o}, s[{P_WO}:{P_WO+1}]"); a(f"v_add_u32 v{o}, 15360, v{o}")
        else:
            a(f"s_waitcnt vmcnt({t})"); continue
        CNT[t] += 1; n += 1
    assert CNT["W"] <= 10 and CNT["x"] <= 3
    return n
def w7(a, sW, fn):
    l = a.newlabel("Ls_w7")
    a(f"s_cmp_lg_u32 s{sW}, 7")
    a(f"s_cbranch_scc1 {l}")
    fn()
    a.label(l)

def slab_issue(a, p0, p1):
    for p in range(p0, p1):
        a(f"s_mov_b32 m0, {SLAB + 1024*p}")
        a(f"s_movk_i32 s9, {10240*(p & 3) + 128*(p >> 2)}")
        a("buffer_load_dwordx4 v18, s[52:55], s9 offen lds")

def role_s_pro(a, st, sJ, sW, opt):
    a("v_and_b32 v1, 63, v0")
    for r in range(2, 9): a(f"v_mov_b32 v{r}, 0")
    a(f"s_mul_i32 s4, s{sJ}, 1920")
    a(f"s_lshl_b32 s5, s{sW}, 8")
    a("s_add_u32 s4, s4, s5")
    a("v_lshl_add_u32 v42, v1, 1, s4")
    a(f"s_mul_i32 s7, s{sW}, 0xAAAC")
    a("s_lshr_b32 s6, s7, 16")
    a(f"s_mul_i32 s8, s{sJ}, 10")
    a("s_lshl_b32 s9, s6, 1")
    a("s_add_u32 s9, s9, s8")
    a("v_mov_b32 v43, s9")
    a("s_and_b32 s12, s2, 6")
    a("s_lshl_b32 s12, s12, 3")
    a("s_bfe_u32 s13, s2, 0x40003")
    a("s_add_u32 s12, s12, s13")
    a("s_lshl_b32 s12, s12, 6")
    a("s_and_b32 s13, s2, 1")
    a("s_add_u32 s12, s12, s13")
    a("s_mul_i32 s12, s12, 640")
    a("v_lshrrev_b32 v18, 3, v1")
    a("v_mul_u32_u24 v18, 1152, v18")
    a("v_lshl_add_u32 v18, v1, 4, v18")
    a("v_add_u32 v18, s12, v18")
    a("s_waitcnt lgkmcnt(0)")
    st.stamp(a, "karg")
    lz = a.newlabel("Ls_nz")
    a(f"s_and_b32 s14, s{sJ}, 15")
    a(f"s_xor_b32 s9, s{sW}, 7")
    a("s_or_b32 s14, s14, s9")
    a(f"s_cbranch_scc1 {lz}")
    a(f"s_lshl_b32 s9, s{sJ}, 7")
    a(f"s_add_u32 s9, s9, {WS_CNT}")
    a("v_lshl_add_u32 v20, v1, 8, s9")
    a("s_mov_b64 exec, 0xff")
    a(f"global_store_dword v20, v2, s[{P_WS}:{P_WS+1}] sc1")
    a("s_mov_b64 exec, -1")
    a(f"s_mul_i32 s9, s{sJ}, 420")
    a("s_add_u32 s9, s9, 2880")
    a("v_lshl_add_u32 v20, v1, 4, s9")
    a("s_mov_b32 exec_hi, 0x0fffffff")
    for i in range(7):
        a(f"global_store_dwordx4 v20, v[2:5], s[{P_WS}:{P_WS+1}] offset:{960*i-2880} sc1")
    a("s_mov_b32 exec_hi, -1")
    a.label(lz)
    ploads(a, 2, 42, 43)
    srd(a, 52, P_U, 2621440)
    def slab_loop():
        a("s_setprio 2")
        lp = a.newlabel("Ls_sl")
        a(f"s_mov_b32 s12, {SLAB}")
        a("s_mov_b32 s13, 0")
        a.label(lp)
        for p in range(4):
            a(f"s_add_u32 m0, s12, {1024*p}")
            a(f"s_add_u32 s9, s13, {10240*p}")
            a("buffer_load_dwordx4 v18, s[52:55], s9 offen lds")
        a("s_add_u32 s12, s12, 4096")
        a("s_add_u32 s13, s13, 128")
        a("s_cmp_lg_u32 s13, 640")
        a(f"s_cbranch_scc1 {lp}")
    w7(a, sW, slab_loop)

def ploads(a, base, va, vld):
    PB, PC, PARE, PAIM, PLDT = 2, 4, 6, 7, 8
    a(f"global_load_short_d16_hi v{base+PLDT-2}, v{vld}, s[{P_LDT}:{P_LDT+1}]")
    for reg, p in ((PARE, P_ARE), (PAIM, P_AIM), (PB, P_BRE), (PB+1, P_BIM), (PC, P_CRE), (PC+1, P_CIM)):
        a(f"global_load_short_d16_hi v{base+reg-2}, v{va}, s[{p}:{p+1}]")

def role_s(a, st, sJ, sCT, sW, opt={}):
    vT, vL = 0, 1
    PB, PC, PARE, PAIM, PLDT = 2, 4, 6, 7, 8
    EA = 34
    vTR, vFL = 40, 41
    ACC = 48
    BAND = 200
    u0 = UNITS.index(0)
    lpc = a.newlabel("Ls_pc")
    a("s_getpc_b64 s[64:65]")
    a.label(lpc)
    touches = lambda seq: do_touches(a, seq, opt)
    a(f"s_lshr_b32 s49, s{sJ}, 4")
    def tabloads():
        a(f"v_lshlrev_b32 v46, 2, v{vT}")
        a(f"v_add_u32 v46, L_tab_src-{lpc}, v46")
        a(f"global_load_dwordx2 {V(EA,2)}, v46, s[64:65]")
    def bandloads():
        a(f"v_lshlrev_b32 v46, 4, v{vL}")
        a(f"v_add_u32 v46, L_tab_band-{lpc}+2048, v46")
        for t in range(6):
            a(f"global_load_dwordx4 {V(BAND+4*t,4)}, v46, s[64:65] offset:{1024*t-2048}")
    L7 = a.newlabel("Ls_slab"); LC = a.newlabel("Ls_common")
    touch_setup(a)
    a(f"v_add_u32 v{TW}, {64*3840}, v{TW}")
    for r in list(range(10, 18)) + list(range(ACC, ACC+16)): a(f"v_mov_b32 v{r}, 0")
    a("s_add_u32 s7, s7, 0x5556")
    a("s_lshr_b32 s7, s7, 16")
    a("s_min_u32 s7, s7, 4")
    a("s_lshl_b32 s9, s7, 1")
    a("s_add_u32 s9, s9, s8")
    a("v_mov_b32 v44, s9")
    a("v_add_u32 v42, 128, v42")
    a(f"s_lshr_b32 s10, 0x92, s{sW}")
    a("s_and_b32 s10, s10, 1")
    a("s_mul_i32 s13, s48, 51200")
    a("s_add_u32 s13, s13, s50")
    a(f"v_add_u32 v{TO}, s13, v66")
    a("s_lshl_b32 s9, s50, 1")
    a("s_sub_u32 s9, 640, s9")
    a(f"v_add_u32 v{TX}, s9, v{TX}")
    a("s_mul_i32 s59, s50, 3840")
    a(f"s_sub_u32 s59, {64*3840}, s59")
    a(f"v_mov_b32 v46, 0")
    a(f"v_mov_b32 v47, {LCNT}")
    a("ds_write_b32 v47, v46")
    a(f"v_and_b32 v46, 31, v{vL}")
    a(f"v_lshrrev_b32 v47, 5, v{vL}")
    a(f"v_mad_u32_u24 v9, v47, {HS}, v46")
    a(f"v_mul_u32_u24 v46, {TROW}, v46")
    a(f"v_lshl_add_u32 v46, v47, 4, v46")
    a(f"v_add_u32 v{vTR}, s5, v46")
    a(f"s_mul_i32 s9, s{sJ}, 80")
    a(f"s_add_u32 s9, s9, {WS_UT}")
    for k in range(3):
        a(f"v_add_u32 v64, {512*k}, v{vT}")
        a("v_min_u32 v64, 1279, v64")
        a("v_mul_u32_u24 v65, 13108, v64")
        a("v_lshrrev_b32 v65, 16, v65")
        a("v_mul_u32_u24 v67, 10160, v65")
        a("v_lshl_add_u32 v67, v64, 4, v67")
        a(f"v_add_u32 v{24+k}, s9, v67")
        a("v_mul_u32_u24 v67, 5, v65")
        a("v_sub_u32 v64, v64, v67")
        a(f"v_mul_u32_u24 v64, {USTR}, v64")
        a("v_lshl_add_u32 v64, v65, 4, v64")
        a(f"v_add_u32 v{27+k}, {UB+480}, v64")
    a(f"v_and_b32 v30, 7, v{vL}")
    a("v_lshlrev_b32 v31, 11, v30")
    a(f"v_add_u32 v31, {WS_CNT+1792}, v31")
    a("v_lshlrev_b32 v30, 2, v30")
    a("s_mov_b32 s56, 0")
    a(f"s_add_u32 s57, s5, {T_Z}")
    a(f"v_lshrrev_b32 v64, 4, v{vL}")
    a(f"v_bfe_u32 v65, v{vL}, 2, 2")
    a("v_lshl_add_u32 v65, v64, 3, v65")
    a(f"v_and_b32 v67, 3, v{vL}")
    a("v_lshlrev_b32 v67, 3, v67")
    a("v_lshl_add_u32 v65, v65, 7, v67")
    a(f"v_add_u32 v22, {SLAB}, v65")
    a("v_mul_u32_u24 v64, 10240, v64")
    a(f"v_and_b32 v67, 15, v{vL}")
    a("v_lshl_add_u32 v64, v67, 4, v64")
    a("s_lshl_b32 s9, s50, 3")
    a("s_add_u32 s9, s9, s51")
    a(f"s_add_u32 s9, s9, {WS_UT+2048}")
    a("v_add_u32 v19, s9, v64")
    P1 = opt.get("p1", "start")
    def p1loads():
        ploads(a, 10, 42, 44)
        a(f"global_load_short_d16_hi v17, v43, s[{P_DSK}:{P_DSK+1}]")
    a("s_mov_b32 m0, s57")
    a("v_mov_b32 v46, 0x3f80")
    a("ds_write_addtid_b32 v46")
    a(f"s_cmp_eq_u32 s{sW}, 7")
    a(f"s_cbranch_scc1 {L7}")
    if P1 == "early":
        p1loads(); a("s_waitcnt vmcnt(8)")
    else:
        a("s_waitcnt vmcnt(0)")
        if P1 == "start": p1loads()
    a.label(L7)
    a("s_waitcnt vmcnt(20)")
    st.stamp(a, "params")
    Z1, Z8, Z256, DT, WW = 128, 130, 132, 134, 136
    T0 = 140
    def setup(o):
        B, C, AR, AI, LD_ = PB+o, PC+o, PARE+o, PAIM+o, PLDT+o
        sq = lambda t, x: [f"v_mul_f32 v{t}, v{x}, v{x}", f"v_mul_f32 v{t+1}, v{x}, v{x+1}", f"v_fma_f32 v{t}, -v{x+1}, v{x+1}, v{t}", f"v_add_f32 v{t+1}, v{t+1}, v{t+1}"]
        return [f"v_mul_f32 v{DT}, {LOG2E}, v{LD_}", f"v_exp_f32 v{DT}, v{DT}",
            f"v_mul_f32 v{T0}, v{C}, v{B}", f"v_mul_f32 v{T0+1}, v{C}, v{B+1}",
            f"v_cvt_pk_bf16_f32 v{DT}, v{DT}, v{DT}",
            f"v_fma_f32 v{T0}, -v{C+1}, v{B+1}, v{T0}", f"v_and_b32 v{DT}, 0xffff0000, v{DT}", f"v_fmac_f32 v{T0+1}, v{C+1}, v{B}",
            f"v_mul_f32 v{AR}, v{DT}, v{AR}", f"v_mul_f32 v{AI}, v{DT}, v{AI}",
            f"v_mul_f32 v{WW}, v{DT}, v{T0}", f"v_mul_f32 v{WW+1}, v{DT}, v{T0+1}",
            f"v_mul_f32 v{AR}, {LOG2E}, v{AR}", f"v_mul_f32 v{AI}, {INV2PI}, v{AI}",
            f"v_exp_f32 v{T0}, v{AR}", f"v_rndne_f32 v{T0+2}, v{AI}", f"v_sub_f32 v{AI}, v{AI}, v{T0+2}",
            f"v_cos_f32 v{Z1}, v{AI}", f"v_sin_f32 v{Z1+1}, v{AI}",
            f"v_mul_f32 v{AR}, 0x43800000, v{AR}", f"v_mul_f32 v{AI}, 0x43800000, v{AI}",
            f"v_mul_f32 v{Z1}, v{Z1}, v{T0}", f"v_mul_f32 v{Z1+1}, v{Z1+1}, v{T0}",
            f"v_exp_f32 v{T0+2}, v{AR}",
            f"v_cos_f32 v{Z256}, v{AI}", f"v_sin_f32 v{Z256+1}, v{AI}",
            ] + sq(Z8, Z1) + [f"v_mul_f32 v{Z256}, v{Z256}, v{T0+2}", f"v_mul_f32 v{Z256+1}, v{Z256+1}, v{T0+2}"] + sq(T0, Z8) + sq(Z8, T0)
    for x in setup(0): a(x)
    LK = a.newlabel("Ls_kgen")
    a(f"s_cmp_lg_u32 s{sW}, 7")
    a(f"s_cbranch_scc1 {LK}")
    l = a.newlabel("Ls_nf")
    a("s_cmp_lg_u32 s14, 0")
    a(f"s_cbranch_scc1 {l}")
    a("v_mov_b32 v21, 1")
    a("s_lshl_b64 exec, 1, s49")
    a(f"global_store_dword v30, v21, s[{P_DBG}:{P_DBG+1}] sc1")
    a("s_mov_b64 exec, -1")
    a.label(l)
    n = touches(opt.get("tA", "W"))
    a(f"s_waitcnt vmcnt({n})")
    st.stamp(a, "slab")
    au = Auto(a)
    RG = 64; NR = 12
    def trr(u):
        for h in range(2): au(f"ds_read_b64_tr_b16 {V(RG+4*(u%NR)+2*h,2)}, v22 offset:{512*h+4096*(u>>2)+32*(u&3)}")
    for u in range(6): trr(u)
    for u in range(20):
        if u + 6 < 20: trr(u+6)
        au(f"global_store_dwordx4 v19, {V(RG+4*(u%NR),4)}, s[{P_WS}:{P_WS+1}] offset:{256*u-2048} sc1")
        if u == opt.get("ubar", 19): a("s_barrier")
    a("v_mov_b32 v46, 0")
    a("s_movk_i32 s11, 3072")
    a(f"v_min_u32 v47, 9, v{vL}")
    a(f"v_mul_u32_u24 v47, s11, v47")
    a(f"v_add_u32 v47, {DB+4*ZW}, v47")
    a("ds_write_b32 v47, v46")
    flags_issue(a, 30, 32)
    nB = touches(opt.get("tB", "W W"))
    a("s_mov_b32 s56, 1")
    def pt7():
        flags_wait(a, 30, 32, nB)
        a("v_mov_b32 v21, 1")
        a("s_bitcmp1_b32 s2, 0")
        a("s_cselect_b32 exec_lo, 0xf0, 15")
        a("s_mov_b32 exec_hi, 0")
        a(f"global_atomic_add v31, v21, s[{P_WS}:{P_WS+1}] sc1")
        a("s_mov_b64 exec, -1")
        tabloads(); bandloads()
        touches(opt.get("tC", "W x W"))
    a.label(LK)
    def kst(n):
        if opt.get("kst") is None: return
        l = a.newlabel("Lks")
        a(f"s_cmp_lg_u32 s56, {opt['kst']}"); a(f"s_cbranch_scc1 {l}"); st.stamp(a, n); a.label(l)
    kst("k0")
    CV = 176; FR = 64
    class Pipe:
        def __init__(s): s.pc = None; s.pw = None; s.n = 0; s.m0 = None; s.extra = []
        def step(s, entry):
            w = s.pw
            if s.pc is not None:
                src, off, neg = s.pc
                r = CV + (s.n % 4); s.n += 1
                a(f"v_cvt_pk_bf16_f32 v{r}, v{src}, {'-' if neg else ''}v{src+1}")
                s.pw = (r, off, neg)
            else: s.pw = None
            if w:
                if s.m0 != w[2]:
                    a(f"s_mov_b32 m0, s{5 if w[2] else 57}"); s.m0 = w[2]
                a(f"ds_write_addtid_b32 v{w[0]} offset:{w[1]}")
                if s.extra: a(s.extra.pop(0))
            s.pc = entry
        def drain(s):
            s.step(None); s.step(None)
    p = Pipe()
    uo = lambda pp: unit_row(UNITS.index(pp)) * TROW
    Wreg = {0: WW}
    p.step((WW, uo(0), True))
    for k in range(1, 8):
        Wreg[k] = 144 + 2*k
        cmul(a, Wreg[k], Wreg[k-1], Z1); p.step((Wreg[k], uo(k), True))
    rot = [160, 162, 164, 166]; ri = 0
    for base, cnt in ((0, 8), (4, 3), (2, 1), (6, 1)):
        src = Wreg[base]
        for e in range(1, cnt+1):
            d = rot[ri % 4]; ri += 1
            cmul(a, d, src, Z256); p.step((d, uo(base + 256*e), True)); src = d
    kst("k2")
    if P1 == "mid":
        l = a.newlabel("Ls_mid")
        a("s_cmp_lg_u32 s56, 0"); a(f"s_cbranch_scc1 {l}"); p1loads(); a.label(l)
    p.step((Z8, TROW, False))
    src = Z8
    rdA = [f"ds_read_b128 {V(FR+8*ks,4)}, v{vTR} offset:{32*ks}" for ks in range(8)]
    rdB = [f"ds_read_b128 {V(FR+8*ks+4,4)}, v{vTR} offset:{T_Z+32*ks}" for ks in range(8)]
    HO = opt.get("hoistA", 1)
    for q in range(2, 32):
        d = rot[ri % 4]; ri += 1
        if HO and q >= 5 and (q - 5) % 3 == 0 and rdA: p.extra.append(rdA.pop(0))
        cmul(a, d, src, Z8); p.step((d, q*TROW, False)); src = d
        if q == opt.get("q7", 14): w7(a, sW, pt7)
    p.drain()
    kst("k3")
    a("s_barrier")
    au = Auto(a)
    if HO: au.q = [set()]*0
    for k in range(8):
        if not HO: au(rdA[k])
        au(rdB[k])
    l = a.newlabel("Ls_r0")
    a("s_cmp_lg_u32 s56, 0")
    a(f"s_cbranch_scc1 {l}")
    a("s_waitcnt vmcnt(0)")
    lo, hi = ("exec_hi", "exec_lo") if u0 & 1 else ("exec_lo", "exec_hi")
    a(f"s_xor_b32 {lo}, s10, 1")
    a(f"s_mov_b32 {hi}, 0")
    a(f"v_mov_b32 v{ACC+(u0>>1)}, v17")
    a("s_mov_b64 exec, -1")
    tabloads()
    a(f"s_cmp_lt_u32 s{sW}, 5")
    a(f"s_cbranch_scc1 {l}")
    bandloads()
    a.label(l)
    kst("k3b")
    a("s_mul_i32 s9, s6, 6144")
    a("s_mul_i32 s11, s10, 3072")
    a("s_add_u32 s9, s9, s11")
    a(f"s_add_u32 s9, s9, {DB}")
    a(f"v_lshl_add_u32 v{vFL}, v9, 2, s9")
    su = setup(8); si = 8
    for x in su[:si]: a(x)
    for ks in range(8):
        au(f"v_mfma_f32_32x32x16_bf16 {V(ACC,16)}, {V(FR+8*ks,4)}, {V(FR+8*ks+4,4)}, {V(ACC,16)}")
        for x in su[si:si+4]: a(x)
        si += 4
    for x in su[si:]: a(x)
    kst("k4")
    lnf = a.newlabel("Ls_noflush")
    a("s_or_b32 s9, s10, s56")
    a(f"s_cbranch_scc0 {lnf}")
    for k in range(11):
        a(f"ds_write_b32 v{vFL}, v{ACC+k} offset:{4*RS*k}")
    for k in range(11):
        a(f"v_mov_b32 v{ACC+k}, 0")
    a.label(lnf)
    a("s_mov_b32 s6, s7")
    a("s_xor_b32 s56, s56, 1")
    a(f"s_cbranch_scc1 {LK}")
    st.stamp(a, "kgen")
    def after7():
        touches(opt.get("tE", "x W"))
        a("s_lshl_b32 s9, s49, 11")
        a(f"s_add_u32 s9, s9, {WS_CNT+1792}")
        a("v_mov_b32 v20, s9")
        poll(a, 20, 21, 64)
        a("s_setprio 0")
    w7(a, sW, after7)
    a("s_waitcnt vmcnt(0)")
    st.stamp(a, "upoll")
    a(f"v_and_b32 v{EA+2}, 0xffff, v{EA+1}")
    a(f"v_lshrrev_b32 v{EA+1}, 16, v{EA}")
    a(f"v_and_b32 v{EA}, 0xffff, v{EA}")
    for k in range(3): a(f"v_add_u32 v{EA+k}, {DB}, v{EA+k}")
    st.stamp(a, "gather")
    a(f"v_mul_u32_u24 v13, 2185, v{vT}")
    a("v_lshrrev_b32 v13, 16, v13")
    a(f"v_mul_u32_u24 v13, {USTR-480}, v13")
    a(f"v_lshl_add_u32 v13, v{vT}, 4, v13")
    for r in range(20, 24): a(f"v_mov_b32 v{r}, 0")
    a(f"v_and_b32 v14, 15, v{vL}")
    a(f"v_lshrrev_b32 v15, 4, v{vL}")
    a("v_and_b32 v16, 3, v14")
    a("v_sub_u32 v16, 3, v16")
    a(f"v_mul_u32_u24 v16, {KSTR}, v16")
    a("v_lshrrev_b32 v17, 2, v14")
    a("v_sub_u32 v17, 3, v17")
    a("v_lshl_add_u32 v16, v17, 3, v16")
    a(f"v_add_u32 v16, {KB}, v16")
    a(f"v_add_u32 v13, {UB}, v13")
    a("v_lshlrev_b32 v17, 5, v14")
    a("v_and_b32 v18, 1, v15")
    a("v_lshl_add_u32 v18, v18, 9, v17")
    a("v_and_b32 v19, 2, v15")
    a("v_lshl_add_u32 v18, v19, 3, v18")
    a("v_lshl_add_u32 v17, v15, 4, v17")
    a(f"v_add_u32 v17, {UB}, v17")
    a("s_waitcnt lgkmcnt(0)")
    a("s_barrier")
    st.stamp(a, "B1")
    for k in range(3):
        a(f"global_load_dwordx4 {V(128+4*k,4)}, v{24+k}, s[{P_WS}:{P_WS+1}] sc1")
    ER = 64
    for c in range(5):
        for k in range(3):
            a(f"ds_read2st64_b32 {V(ER+6*c+2*k,2)}, v{EA+k} offset0:{24*c} offset1:{24*c+12}")
    a(f"v_cmp_gt_u32 vcc, 150, v{vT}")
    a("s_and_saveexec_b64 s[12:13], vcc")
    a(f"ds_write_b128 v13, v[20:23]")
    a("s_mov_b64 exec, s[12:13]")
    a(f"s_add_u32 m0, s5, {KB}")
    a("s_waitcnt lgkmcnt(1)")
    for c in range(5):
        b = ER + 6*c
        for k in range(3):
            a(f"v_add_f32 v{b+2*k}, v{b+2*k}, v{b+2*k+1}")
        a(f"v_cvt_pk_bf16_f32 v{b+1}, v{b}, v{b+2}")
        a(f"v_cvt_pk_bf16_f32 v{b+3}, v{b+2}, v{b+4}")
        o = c*KCH
        a(f"ds_write_addtid_b32 v{b+1} offset:{o}")
        a(f"ds_write_addtid_b32 v{b+3} offset:{o+KSTR}")
        a(f"ds_write_addtid_b32 v{b+1} offset:{o+2*KSTR-4}")
        a(f"ds_write_addtid_b32 v{b+3} offset:{o+3*KSTR-4}")
    for k in range(3):
        a(f"s_waitcnt vmcnt({2-k})")
        a(f"ds_write_b128 v{27+k}, {V(128+4*k,4)}")
    w7(a, sW, lambda: touches(opt.get("tD", "W x W")))
    LD = a.newlabel("Ls_dil"); LE = a.newlabel("Ls_end")
    a(f"s_cmp_ge_u32 s{sW}, 5")
    a(f"s_cbranch_scc1 {LD}")
    n0 = st.n
    vA, vB, vX = 2, 3, 4
    a(f"s_mul_i32 s9, s{sW}, {KCH}")
    a("v_lshl_add_u32 v2, v15, 4, v16")
    a(f"v_add_u32 v{vA}, s9, v2")
    a(f"s_mul_i32 s9, s{sW}, {USTR}")
    a(f"v_add_u32 v{vB}, s9, v17")
    a(f"s_mul_i32 s9, s{sW}, 10240")
    a(f"s_add_u32 s9, s9, {XB}")
    a(f"v_lshl_add_u32 v{vX}, v{vL}, 4, s9")
    srd(a, 52, P_WS, 2621440, WS_YT)
    a(f"s_mul_i32 s9, s{sJ}, 5")
    a(f"s_add_u32 s9, s9, s{sW}")
    a("s_lshl_b32 s56, s9, 12")
    a("s_waitcnt lgkmcnt(0)")
    a("s_barrier")
    st.stamp(a, "B2")
    CA = 24; AF = 56; BF = 128; NB = 12
    au = Auto(a)
    Areg = lambda x: AF + 4*(x + 7)
    def rdA(x):
        off = 64*(9 - x) if x <= 9 else 1120
        return [f"ds_read_b64 {V(Areg(x),2)}, v{vA} offset:{off}", f"ds_read_b64 {V(Areg(x)+2,2)}, v{vA} offset:{off+8}"]
    rdB = lambda m: f"ds_read_b128 {V(BF+4*(m % NB),4)}, v{vB} offset:{64*m}"
    groups = []
    for m in range(64):
        g = []
        if m < 8:
            g += rdA(-m) + rdA(8-m)
            if m == 7: g += rdA(9) + rdA(10)
        g.append(rdB(m)); groups.append(g)
    seen = set()
    def mf(i, x, m):
        c = V(CA+4*i, 4) if i in seen else "0"
        seen.add(i)
        return f"v_mfma_f32_16x16x32_bf16 {V(CA+4*i,4)}, {V(Areg(x),4)}, {V(BF+4*(m % NB),4)}, {c}"
    def fin_pair(i, em):
        b = CA + 4*i
        for k in range(4): em(f"v_cvt_pk_bf16_f32 v{b+k}, v{b+2*k}, v{b+2*k+1}")
        em(f"v_permlane16_swap_b32 v{b}, v{b+2}")
        em(f"v_permlane16_swap_b32 v{b+1}, v{b+3}")
        em(f"buffer_store_dwordx4 {V(b,4)}, v18, s[52:55], s56 offen offset:{512*i} sc1")
    flat = [x for g in groups for x in g]
    gend = []; n = 0
    for g in groups: n += len(g); gend.append(n)
    ni = 0
    for _ in range(gend[2]): au(flat[ni]); ni += 1
    for m in range(64):
        j, r = m >> 3, m & 7
        ms = [mf(j, -r, m)]
        if j < 7: ms.append(mf(j+1, 8-r, m))
        if r == 7 and j < 6: ms.append(mf(j+2, 9, m))
        if r == 7 and j < 4: ms.append(mf(j+4, 10, m))
        lim = gend[min(63, m + NB - 2)]
        for x in ms:
            au(x)
            for _ in range(3 if m < 8 else 1):
                if ni < lim: au(flat[ni]); ni += 1
        if m == 24: fin_pair(0, au)
    assert ni == len(flat)
    st.stamp(a, "conv")
    a("s_barrier")
    st.stamp(a, "B3")
    au = Auto(a)
    R = 56
    for t in range(10): au(f"ds_read_b128 {V(R+4*t,4)}, v{vX} offset:{1024*t}")
    for i in range(2, 8):
        for t in ([i-2] + ([i+2] if i >= 4 else [])):
            au(f"v_pk_add_f32 {V(CA+4*i,2)}, {V(CA+4*i,2)}, {V(R+4*t,2)}")
            au(f"v_pk_add_f32 {V(CA+4*i+2,2)}, {V(CA+4*i+2,2)}, {V(R+4*t+2,2)}")
        if i & 1: fin_pair(i-1, au)
    a("s_lshl_b32 s57, s49, 11")
    a(f"s_add_u32 s57, s57, {WS_CNT+256}")
    a("s_and_b32 s9, s49, 3")
    a("s_lshl_b32 s9, s9, 3")
    a("s_lshr_b32 s11, s49, 2")
    a("s_add_u32 s9, s9, s11")
    a("s_mov_b32 s56, 4")
    a("s_lshl_b32 s58, 0x55, s9")
    if opt.get("b4", 1) == 1: a("s_barrier")
    a(f"s_branch {LE}")
    a.label(LD)
    st.n = n0; st.names = st.names[:n0]
    a("s_setprio 1")
    for k, r in enumerate((TW, TX, TO)): a(f"v_mov_b32 v{226+k}, v{r}")
    a("v_lshl_add_u32 v16, v15, 3, v16")
    a(f"v_lshlrev_b32 v19, 4, v{vL}")
    a(f"v_add_u32 v19, {XB}, v19")
    a(f"s_cmp_eq_u32 s{sW}, 6")
    a("s_movk_i32 s56, 0x198")
    a("s_cselect_b32 s56, 0x3ba, s56")
    a(f"s_cmp_eq_u32 s{sW}, 7")
    a("s_cselect_b32 s56, 0x425c, s56")
    a("s_waitcnt lgkmcnt(0)")
    a("s_barrier")
    st.stamp(a, "B2")
    w7(a, sW, lambda: do_touches(a, opt.get("t4", "o o o o"), opt, (226, 227, 228)))
    LU = a.newlabel("Ls_unit"); L3 = a.newlabel("Ls_u3"); LN = a.newlabel("Ls_un")
    a.label(LU)
    a("s_bitcmp1_b32 s56, 3")
    a("s_cselect_b32 s11, 8, 1")
    a("s_and_b32 s9, s56, 15")
    a("s_sub_u32 s9, s9, s11")
    a(f"s_mul_i32 s12, s9, {KCH}")
    a("v_add_u32 v2, s12, v16")
    a(f"s_mul_i32 s12, s9, {USTR}")
    a("v_add_u32 v3, s12, v17")
    a("s_mul_i32 s12, s9, 10240")
    a("v_add_u32 v4, s12, v19")
    a("s_cmp_eq_u32 s11, 1")
    a(f"s_cbranch_scc1 {L3}")
    TP = 24; WN = 48; BX = 96; OP = 128; DA = 144
    def unit(types, d0, nd, nJ, toff, tlen, tbase, xoff):
        au = Auto(a)
        npair = len(types)//2
        rdW = lambda J: [f"ds_read_b128 {V(WN+8*J+4*k,4)}, v3 offset:{512*J+432+16*k}" for k in range(2)]
        def rdT(di): return [f"ds_read_b64 {V(TP+4*(di*npair+(ti>>1))+2*(ti&1),2)}, v2 offset:{2*(toff+tlen*ti+tbase-16*(d0+di))}" for ti in range(len(types))]
        def box(J): return [f"v_mfma_f32_16x16x32_bf16 {V(BX+16*(J&1)+4*ti,4)}, {V(WN+8*J+(0 if stab.W0[ty] == -24 else 4),4)}, {V(BAND+4*ty,4)}, 0" for ti, ty in enumerate(types)]
        def cvt(J): return [f"v_cvt_pk_bf16_f32 v{OP+8*(J&1)+k}, v{BX+16*(J&1)+2*k}, v{BX+16*(J&1)+2*k+1}" for k in range(2*len(types))]
        seen = set()
        def main(J):
            L = []
            for pi in range(npair):
                for di in range(nd):
                    i = J + d0 + di
                    if i > 7: continue
                    acc = DA + 4*(i - d0)
                    c = V(acc, 4) if i in seen else "0"
                    seen.add(i)
                    L.append(f"v_mfma_f32_16x16x32_bf16 {V(acc,4)}, {V(OP+8*(J&1)+4*pi,4)}, {V(TP+4*(di*npair+pi),4)}, {c}")
            return L
        later = [x for di in range(nd) for x in rdT(di)] + [x for J in range(3, nJ) for x in rdW(J)]
        for J in range(3):
            for x in rdW(J): au(x)
        li = 0
        def emit(ms, fill, nread=2):
            nonlocal li
            fi = 0
            for x in ms:
                au(x)
                for _ in range(nread):
                    if li < len(later): au(later[li]); li += 1
                for _ in range(2):
                    if fi < len(fill): au(fill[fi]); fi += 1
            for x in fill[fi:]: au(x)
        emit(box(0), [])
        emit(box(1), [])
        for x in cvt(0): au(x)
        for J in range(nJ):
            emit(main(J), cvt(J+1) if J+1 < nJ else [])
            if J + 2 < nJ: emit(box(J+2), [])
            if J >= 1: au(f"ds_write_b128 v4, {V(DA+4*(J-1),4)} offset:{xoff+1024*(J-1)}")
        au(f"ds_write_b128 v4, {V(DA+4*(nJ-1),4)} offset:{xoff+1024*(nJ-1)}")
        assert li == len(later)
    unit([0,1,2,3], 2, 3, 6, 608, 64, 64, 0)
    w7(a, sW, lambda: do_touches(a, opt.get("t5", ""), opt, (226, 227, 228)))
    a(f"s_branch {LN}")
    a.label(L3)
    unit([4,5], 4, 4, 4, 864, 80, 112, 6144)
    a.label(LN)
    a("s_lshr_b32 s56, s56, 4")
    a(f"s_cbranch_scc1 {LU}")
    a(f"s_sub_u32 s57, s{sW}, 5")
    wo_setup(a, 2, 57, sCT, 52, 56)
    a("s_waitcnt lgkmcnt(0)")
    st.stamp(a, "conv")
    a("s_barrier")
    st.stamp(a, "B3")
    if opt.get("b4", 1): a("s_barrier")
    lp = a.newlabel("Ls_wo")
    a("s_mov_b32 s57, 9")
    a.label(lp)
    for t in range(4): a(wo_piece(2, 52, 56, t, 3))
    a(f"s_add_u32 s56, s56, {960*12}")
    a("s_sub_u32 s57, s57, 1")
    a("s_cmp_lg_u32 s57, 0")
    a(f"s_cbranch_scc1 {lp}")
    a("s_setprio 0")
    a("s_mov_b32 s56, 0")
    a.label(LE)
```

```python
from asmlib import *
P_U, P_ARE, P_AIM, P_BRE, P_BIM, P_CRE, P_CIM, P_LDT = 16, 18, 20, 22, 24, 26, 28, 30
P_DSK, P_BX, P_WQKV, P_WO, P_GATE, P_OUT, P_DBG, P_WS = 32, 34, 36, 38, 40, 42, 44, 46
WS_KV = 0
WS_CNT = 131072
WS_G = 65536
WS_PQ = 1 << 20
WS_YT = 4 << 20
WS_UT = 10 << 20
WS_STAMP = 8 << 20
LOG2E = "0x3fb8aa3b"
INV2PI = "0.15915494"

def load_kernargs(a):
    a("s_load_dwordx16 s[16:31], s[0:1], 0")
    a("s_load_dwordx16 s[32:47], s[0:1], 64")

def srd(a, d, base, nbytes, off=0):
    if off:
        a(f"s_add_u32 s{d}, s{base}, {off}")
        a(f"s_addc_u32 s{d+1}, s{base+1}, 0")
    else:
        a(f"s_mov_b32 s{d}, s{base}")
        a(f"s_mov_b32 s{d+1}, s{base+1}")
    a(f"s_mov_b32 s{d+2}, {nbytes}")
    a(f"s_mov_b32 s{d+3}, 0x20000")

class Stamps:
    op = "s_memtime"
    def __init__(self, on, first=70):
        self.on = on; self.first = first; self.n = 0; self.names = []; self.skip = set()
    def stamp(self, a, name):
        if not self.on or name in self.skip: return
        assert self.n < 13, self.names
        a(f"{Stamps.op} s[{self.first+2*self.n}:{self.first+2*self.n+1}]")
        self.names.append(name); self.n += 1
    def flush(self, a, slot_sreg, wave_sreg, vt=2):
        if not self.on: return
        a("s_waitcnt vmcnt(0) lgkmcnt(0)")
        a(f"{Stamps.op} s[{self.first+2*self.n}:{self.first+2*self.n+1}]")
        a("s_memrealtime s[62:63]")
        a("s_waitcnt lgkmcnt(0)")
        self.names.append("end"); self.n += 1
        a(f"s_lshl_b32 s61, s{slot_sreg}, 3")
        a(f"s_add_u32 s61, s61, s{wave_sreg}")
        a("s_lshl_b32 s61, s61, 6")
        a(f"s_add_u32 s61, s61, {WS_STAMP}")
        a(f"v_mov_b32 v{vt}, s61")
        a("s_mov_b64 exec, 1")
        for i in range(self.n):
            a(f"v_mov_b32 v{vt+1}, s{self.first+2*i}")
            a(f"global_store_dword v{vt}, v{vt+1}, s[{P_WS}:{P_WS+1}] offset:{4*i}")
        a(f"v_mov_b32 v{vt+1}, s68")
        a(f"global_store_dword v{vt}, v{vt+1}, s[{P_WS}:{P_WS+1}] offset:56")
        a(f"v_mov_b32 v{vt+1}, s62")
        a(f"global_store_dword v{vt}, v{vt+1}, s[{P_WS}:{P_WS+1}] offset:60")
        a("s_waitcnt vmcnt(0)")
    def start(self, a):
        if not self.on: return
        a("s_memrealtime s[68:69]")
        self.stamp(a, "start")

def code_prefetch(a, n, wave):
    if not n: return
    l = a.newlabel("Lpf")
    a(f"s_cmp_lg_u32 s60, {wave}")
    a(f"s_cbranch_scc1 {l}")
    a("s_getpc_b64 s[4:5]")
    a.label(l + "_pc")
    a("s_lshr_b32 s6, s2, 3")
    a("s_lshl_b32 s6, s6, 7")
    a("v_lshl_add_u32 v2, v1, 12, s6")
    a(f"v_min_u32 v2, L_code_end-{l}_pc-4, v2")
    a(f"s_mov_b64 exec, {(1 << n) - 1}")
    a("global_load_dword v255, v2, s[4:5]")
    a("s_mov_b64 exec, -1")
    a.label(l)

WOB = 51200
LCNT = 163836
SPIN = 0x20000

def flags_issue(a, vaddr, vdst):
    a(f"global_load_dword v{vdst}, v{vaddr}, s[{P_DBG}:{P_DBG+1}] sc1")
def flags_wait(a, vaddr, vdst, first=0):
    lp = a.newlabel("Lfl"); lo = a.newlabel("Lfo")
    a(f"s_mov_b32 s13, {SPIN}")
    if first:
        a(f"s_waitcnt vmcnt({first})")
        a(f"v_cmp_eq_u32 vcc, 0, v{vdst}")
        a(f"s_cbranch_vccz {lo}")
    a.label(lp)
    a("s_waitcnt vmcnt(0)")
    a(f"v_cmp_eq_u32 vcc, 0, v{vdst}")
    a(f"s_cbranch_vccz {lo}")
    flags_issue(a, vaddr, vdst)
    a("s_sub_u32 s13, s13, 1")
    a("s_cmp_lg_u32 s13, 0")
    a(f"s_cbranch_scc1 {lp}")
    a.label(lo)
def signal(a, s_n, s_off, s_mask, t):
    l = a.newlabel("Lsg")
    a(f"v_mov_b32 v{t}, {LCNT}")
    a(f"v_mov_b32 v{t+1}, 1")
    a(f"v_mov_b32 v{t+3}, s{s_off}")
    a(f"v_and_b32 v{t+4}, 28, v1")
    a(f"v_add_u32 v{t+4}, v{t+4}, v1")
    a(f"v_lshlrev_b32 v{t+4}, 8, v{t+4}")
    a(f"v_add_u32 v{t+4}, {WS_CNT+512}, v{t+4}")
    a("s_waitcnt vmcnt(0)")
    a(f"s_cmp_eq_u32 s{s_n}, 0")
    a(f"s_cbranch_scc1 {l}")
    a("s_mov_b64 exec, 1")
    a(f"ds_add_rtn_u32 v{t+2}, v{t}, v{t+1}")
    a("s_waitcnt lgkmcnt(0)")
    a(f"v_cmp_eq_u32 vcc, s{s_n}, v{t+2}")
    a(f"s_cbranch_vccz {l}")
    a(f"global_atomic_add v{t+2}, v{t+3}, v{t+1}, s[{P_WS}:{P_WS+1}] sc0 sc1")
    a("s_waitcnt vmcnt(0)")
    a(f"v_cmp_eq_u32 vcc, 15, v{t+2}")
    a(f"s_cbranch_vccz {l}")
    a(f"s_mov_b32 exec_lo, s{s_mask}")
    a(f"global_atomic_add v{t+4}, v{t+1}, s[{P_WS}:{P_WS+1}] sc1")
    a.label(l)
    a("s_mov_b64 exec, -1")
def poll(a, vaddr, vdst, target):
    lp = a.newlabel("Lpoll")
    a(f"s_mov_b32 s13, {SPIN}")
    a("s_mov_b64 exec, 1")
    a.label(lp)
    a(f"global_load_dword v{vdst}, v{vaddr}, s[{P_WS}:{P_WS+1}] sc1")
    a("s_sub_u32 s13, s13, 1")
    a("s_cselect_b32 s12, 0, -1")
    a("s_waitcnt vmcnt(0)")
    a(f"v_cmp_ne_u32 vcc, {target}, v{vdst}")
    a("s_and_b32 s12, s12, vcc_lo")
    a(f"s_cbranch_scc1 {lp}")
    a("s_mov_b64 exec, -1")
TW, TX = 37, 38
def touch_setup_w(a):
    a("s_bfe_u32 s48, s2, 0x40003")
    a("v_min_u32 v64, 59, v1")
    a("v_mul_u32_u24 v65, 52, v64")
    a("v_lshrrev_b32 v65, 8, v65")
    a("v_mul_u32_u24 v66, 640, v65")
    a("v_lshl_add_u32 v66, v64, 7, v66")
    a("s_and_b32 s50, s2, 1")
    a(f"s_mul_i32 s12, s50, {5*64*3840+640}")
    a("s_mul_i32 s13, s48, 15360")
    a("s_add_u32 s13, s13, s12")
    a(f"v_add_u32 v{TW}, s13, v66")
def touch_setup_x(a):
    a("s_mul_i32 s50, s50, 640")
    a("v_and_b32 v64, 31, v1")
    a("v_mul_u32_u24 v64, 1280, v64")
    a("v_lshrrev_b32 v65, 5, v1")
    a("v_lshl_add_u32 v64, v65, 7, v64")
    a("s_and_b32 s12, s2, 6")
    a("s_lshl_b32 s12, s12, 3")
    a("s_add_u32 s12, s12, s48")
    a("s_mul_i32 s51, s12, 40960")
    a("s_add_u32 s12, s51, s50")
    a(f"v_add_u32 v{TX}, s12, v64")
def wo_setup(a, vd, s_idx, s_ct, srd_base, s_m0):
    a(f"v_mul_u32_u24 v{vd}, 26, v1")
    a(f"v_lshrrev_b32 v{vd}, 8, v{vd}")
    a(f"v_mul_u32_u24 v{vd}, 1120, v{vd}")
    a(f"v_lshl_add_u32 v{vd}, v1, 4, v{vd}")
    a(f"s_mul_i32 s8, s{s_idx}, 7680")
    a(f"s_mul_i32 s9, s{s_ct}, 160")
    a("s_add_u32 s8, s8, s9")
    a(f"v_add_u32 v{vd}, s8, v{vd}")
    srd(a, srd_base, P_WO, 819200)
    a(f"s_mul_i32 s{s_m0}, s{s_idx}, 960")
    a(f"s_add_u32 s{s_m0}, s{s_m0}, {WOB}")
def wo_piece(vd, srd_base, s_m0, t, n):
    return (f"s_add_u32 m0, s{s_m0}, {960*n*t}\ns_nop 0\nbuffer_load_dwordx4 v{vd}, s[{srd_base}:{srd_base+3}], 0 offen lds\n"
            f"v_add_u32 v{vd}, {7680*n}, v{vd}")
```

```python
from common import *
XSZ = 16384
SEGK = 10240; SEGV = 20480 + 16
STG = XSZ + 30720 + 32
RSTR = 6912
DUMP = 2 * RSTR

def interleave(a, main, fill, start=0, every=1):
    fi = 0
    for i, m in enumerate(main):
        a(m)
        if i >= start and (i - start) % every == 0 and fi < len(fill):
            a(fill[fi]); fi += 1
    for f in fill[fi:]: a(f)

def phi_ops(base, n, vL, tmp, pk=True):
    if pk:
        A = [f"v_pk_fma_f32 {V(tmp+i,2)}, {V(base+i,2)}, {V(vL,2)}, {V(vL,2)} op_sel_hi:[1,0,0] neg_lo:[0,0,1] neg_hi:[0,0,1]" for i in range(0, n, 2)]
        C = [f"v_pk_add_f32 {V(tmp+i,2)}, {V(tmp+i,2)}, {V(vL,2)} op_sel:[0,1] op_sel_hi:[1,1]" for i in range(0, n, 2)]
    else:
        A = [f"v_fma_f32 v{tmp+i}, v{base+i}, v{vL}, -v{vL}" for i in range(n)]
        C = [f"v_add_f32 v{tmp+i}, v{tmp+i}, v{vL+1}" for i in range(n)]
    B = [f"v_exp_f32_e64 v{tmp+i}, v{tmp+i} clamp" for i in range(n)] + [f"v_max_f32 v{tmp+i}, v{tmp+i}, v{base+i}" for i in range(n)]
    return A, B, C
def phi4(a, base, n, vL, tmp, pk=True):
    for L in phi_ops(base, n, vL, tmp, pk):
        for x in L: a(x)

def role_g(a, st, sRB, sG, sW, sCT, opt):
    LEAD = "B"
    vT, vL = 0, 1
    LQ = a.newlabel("Lg_q"); LE = a.newlabel("Lg_end")
    a(f"v_and_b32 v2, 15, v{vL}")
    a(f"v_lshrrev_b32 v3, 4, v{vL}")
    def common_addr():
        a("v_lshrrev_b32 v4, 1, v2")
        a("v_xor_b32 v4, v4, v3")
        a("v_lshlrev_b32 v4, 4, v4")
        a("v_lshl_add_u32 v4, v2, 7, v4")
        a("v_lshrrev_b32 v5, 1, v3")
        a("v_lshlrev_b32 v5, 4, v5")
        a("v_and_b32 v6, 1, v3")
        a("v_lshl_add_u32 v5, v6, 2, v5")
        a("v_lshrrev_b32 v6, 2, v2")
        a("v_add_u32 v5, v5, v6")
        a("v_mul_u32_u24 v5, 160, v5")
        a("v_and_b32 v6, 3, v2")
        a("v_lshl_add_u32 v5, v6, 3, v5")
        a(f"v_add_u32 v5, {XSZ}, v5")
        a(f"v_mov_b32 v8, {LOG2E}")
        a("v_mov_b32 v9, 0x358637bd")
    def advance():
        a(f"s_add_u32 s12, s12, {STG}")
        a(f"s_cmp_eq_u32 s12, {3*STG}")
        a("s_cselect_b32 s12, 0, s12")
    lq = a.newlabel("Lg_qw")
    a(f"s_cmp_ge_u32 s{sW}, 4")
    a(f"s_cbranch_scc1 {lq}")
    if opt.get("tbar", 1): a("s_barrier")
    a(f"s_branch {LQ}")
    a.label(lq)

    n0 = st.n
    cA0, cA1, cB, cM = 10, 11, 12, 13
    aA0, aA1, aB, aM = 14, 15, 16, 17
    a(f"s_setprio {opt.get('qprio', 2)}")
    ACC = 32; F = [72, 100]
    dX, dW = 18, 20
    a(f"s_mul_i32 s4, s{sRB}, {128*1280}")
    a(f"s_and_b32 s5, s{sW}, 3")
    a(f"v_lshrrev_b32 v28, 3, v{vL}")
    a("v_mul_u32_u24 v28, 1280, v28")
    a("s_lshl_b32 s6, s5, 2")
    a("v_add_u32 v29, s6, v3")
    a(f"v_xor_b32 v29, v29, v{vL}")
    a("v_and_b32 v29, 7, v29")
    a("v_lshl_add_u32 v28, v29, 4, v28")
    a("s_mul_i32 s6, s5, 10240")
    a("s_add_u32 s6, s6, s4")
    a(f"v_add_u32 v{dX}, s6, v28")
    a("s_lshl_b32 s14, s5, 10")
    a(f"s_mul_i32 s7, s{sG}, 160")
    a("s_lshl_b32 s6, s5, 6")
    a("s_movk_i32 s8, 3840")
    for t in range(2):
        a(f"v_add_u32 v28, {'s6' if t == 0 else 256}, v{vL}")
        a("v_mul_u32_u24 v29, 6554, v28")
        a("v_lshrrev_b32 v29, 16, v29")
        a("v_mul_u32_u24 v30, 10, v29")
        a("v_sub_u32 v28, v28, v30")
        a("v_lshl_add_u32 v28, v28, 4, s7")
        a("v_lshrrev_b32 v30, 1, v29")
        a("v_xor_b32 v30, v30, v29")
        a("v_and_b32 v30, 4, v30")
        a("v_mul_u32_u24 v30, 3, v30")
        a("v_xor_b32 v29, v29, v30")
        a(f"v_mad_u32_u24 v{dW+t}, v29, s8, v28")
    a("s_lshr_b32 s6, s5, 1")
    a("s_mul_i32 s6, s6, 1280")
    a("s_and_b32 s7, s5, 1")
    a(f"s_mul_i32 s7, s7, {32*3840}")
    a("s_add_u32 s6, s6, s7")
    a(f"v_add_u32 v{dW+1}, s6, v{dW+1}")
    a("s_lshl_b32 s59, s5, 12")
    a("s_mov_b32 s15, s14"); a("s_and_b32 s56, s2, 1"); a(f"s_mul_i32 s57, s56, {5*64*3840}"); a("s_mul_i32 s56, s56, 640")
    a("s_waitcnt lgkmcnt(0)")
    st.stamp(a, "karg")
    srd(a, 48, P_U, 2621440)
    srd(a, 52, P_WQKV, 2457600)
    if opt.get("tbar", 1): a("s_barrier")
    def dmaX(t):
        return (f"s_add_u32 m0, s15, {4096*t}\ns_add_u32 s9, s56, {t*32*1280}\n"
                f"buffer_load_dwordx4 v{dX}, s[48:51], s9 offen lds")
    def dmaW(t):
        if t < 6:
            return (f"s_add_u32 m0, s15, {XSZ + 5120*t + (16 if t >= 4 else 0)}\ns_add_u32 s9, s57, {1280*(t >> 1) + 32*3840*(t & 1)}\n"
                    f"buffer_load_dwordx4 v{dW}, s[52:55], s9 offen lds")
        x = (f"s_add_u32 s9, s15, s59\ns_add_u32 m0, s9, {XSZ + 4096 + (20480 + 16 if t == 7 else 0)}\ns_add_u32 s9, s57, {2560 if t == 7 else 0}\n"
             f"buffer_load_dwordx4 v{dW+1}, s[52:55], s9 offen lds")
        if t == 7:
            l = a.newlabel("Lg_sk")
            x = f"s_cmp_ge_u32 s5, 2\ns_cbranch_scc1 {l}\n{x}\n{l}:"
        return x
    D2 = lambda: [dmaX(0), dmaW(0), dmaW(1), dmaX(1), dmaW(2), dmaW(3)]
    D1 = lambda: [dmaX(2), dmaW(4), dmaW(5), dmaX(3), dmaW(6), dmaW(7)]
    def nextstage():
        a("s_add_u32 s56, s56, 128"); a(f"s_add_u32 s57, s57, {64*3840}")
        a("s_cmp_eq_u32 s56, 1280"); a("s_cselect_b32 s56, 0, s56"); a("s_cselect_b32 s57, 0, s57")
    for x in D2() + D1(): a(x)
    if opt.get("probe"):
        st.stamp(a, "i0"); a("s_waitcnt vmcnt(10)"); st.stamp(a, "first"); a("s_waitcnt vmcnt(0)"); st.stamp(a, "s0")
    common_addr()
    a("s_lshl_b32 s8, s5, 12")
    a(f"v_add_u32 v{cA0}, s8, v4")
    a(f"v_xor_b32 v{cA1}, 64, v{cA0}")
    a(f"v_mov_b32 v{cB}, v5")
    a(f"v_lshl_add_u32 v{cM}, v6, 5, v5")
    for r in range(40): a(f"v_mov_b32 v{ACC+r}, 1.0")
    a(f"s_add_u32 s15, s15, {STG}"); nextstage()
    for x in D2() + D1(): a(x)
    a(f"s_add_u32 s15, s15, {STG}"); nextstage()
    if LEAD == "A":
        for x in D2(): a(x)
    def q_reads(f, ks):
        L = []
        aa = aA1 if ks else aA0
        o = ks*32*160
        L.append(f"ds_read_b128 {V(f,4)}, v{aa}")
        L.append(f"ds_read_b128 {V(f+4,4)}, v{aa} offset:2048")
        for ct in range(5):
            for h in range(2):
                L.append(f"ds_read_b64_tr_b16 {V(f+8+4*ct+2*h,2)}, v{aB if ct < 4 else aM} offset:{o+(40*ct if ct < 4 else 32)+h*1280}")
        if opt.get("noread"): return []
        return L
    def q_mfma(f):
        if opt.get("nomfma"): return ["s_nop 0"]*10
        return [f"v_mfma_f32_16x16x32_bf16 {V(ACC+8*ct+4*rt,4)}, {V(f+8+4*ct,4)}, {V(f+4*rt,4)}, {V(ACC+8*ct+4*rt,4)}" for ct in range(5) for rt in range(2)]
    def q_addr(): return [f"v_add_u32 v{d}, s12, v{c}" for d, c in ((aA0,cA0),(aB,cB),(aM,cM),(aA1,cA1))]
    def mix(m, r, d):
        out = []; ri = 0; di = 0
        n = len(m)
        for i, x in enumerate(m):
            while di < len(d) and di * n <= i * len(d):
                out.append(d[di]); di += 1
            out.append(x)
            for _ in range(2):
                if ri < len(r): out.append(r[ri]); ri += 1
        out += r[ri:] + d[di:]
        for x in out: a(x)
    a("s_mov_b32 s12, 0")
    for x in q_addr(): a(x)
    st.stamp(a, "pre")
    a(f"s_waitcnt vmcnt({17 if LEAD == 'A' else 11})")
    a("s_barrier")
    st.stamp(a, "B0")
    for x in q_reads(F[0], 0): a(x)
    def body(first, second, vm):
        a("s_waitcnt lgkmcnt(0)")
        mix(q_mfma(F[0]), q_reads(F[1], 1), first)
        if LEAD == "A":
            a("s_add_u32 s15, s12, s14"); nextstage()
        else:
            a("s_add_u32 s58, s12, s14")
        advance()
        for x in q_addr(): a(x)
        a(f"s_waitcnt vmcnt({vm}) lgkmcnt(0)")
        a("s_barrier")
        mix(q_mfma(F[1]), q_reads(F[0], 0), second)
        if LEAD != "A":
            a("s_mov_b32 s15, s58"); nextstage()
    GX, GW = 128, 148
    gl = []
    for i in range(5):
        gl.append(f"global_load_dwordx4 {V(GX+4*i,4)}, v28, s[{P_U}:{P_U+1}] offset:{256*i}")
        gl.append(f"global_load_dwordx4 {V(GW+4*i,4)}, v29, s[{P_GATE}:{P_GATE+1}] offset:{256*i}")
    a(f"s_mov_b32 s13, {7 if LEAD == 'A' else 8}")
    LL = a.newlabel("Lg_ql")
    a.label(LL)
    if opt.get("nodma"): body([], [], 0)
    elif LEAD == "A": body(D1(), D2(), 11)
    else: body(D2(), D1(), 6)
    a("s_sub_u32 s13, s13, 1")
    a("s_cmp_lg_u32 s13, 0")
    a(f"s_cbranch_scc1 {LL}")
    a(f"s_lshl_b32 s7, s{sG}, 4")
    a("s_lshl_b32 s8, s5, 2")
    a("s_add_u32 s7, s7, s8")
    a("s_mul_i32 s8, s7, 1280")
    a("s_add_u32 s8, s8, s4")
    a("v_mul_u32_u24 v28, 1280, v3")
    a("v_lshlrev_b32 v29, 4, v2")
    a("v_add3_u32 v28, v28, v29, s8")
    wo_setup(a, dX, 5, sCT, 52, 56)
    wp = [wo_piece(dX, 52, 56, t, 4) for t in range(27)]
    LEADs = LEAD
    def body8():
        a("s_waitcnt lgkmcnt(0)")
        mix(q_mfma(F[0]), q_reads(F[1], 1), gl)
        advance()
        for x in q_addr(): a(x)
        a("s_waitcnt vmcnt(10) lgkmcnt(0)")
        a("s_barrier")
        mix(q_mfma(F[1]), q_reads(F[0], 0), wp[:9])
    body8()
    a("s_waitcnt vmcnt(9) lgkmcnt(0)")
    a("v_mov_b32 v30, 0"); a("v_mov_b32 v31, 0")
    dots = [f"v_dot2_f32_bf16 v{30+(i&1)}, v{GX+i}, v{GW+i}, v{30+(i&1)}" for i in range(20)]
    dd = []
    for i in range(10): dd += dots[2*i:2*i+2] + wp[9+i:10+i]
    mix(q_mfma(F[0]), q_reads(F[1], 1), dd)
    a("s_nop 2")
    a("v_add_f32 v30, v30, v31")
    for sh in (1, 2, 4, 8):
        a(f"v_add_f32_dpp v30, v30, v30 row_shr:{sh} row_mask:0xf bank_mask:0xf")
    a(f"v_mul_f32 v30, 0xbfb8aa3b, v30")
    a("v_exp_f32 v30, v30")
    a("v_add_f32 v30, 1.0, v30")
    a("v_rcp_f32 v30, v30")
    a(f"s_lshl_b32 s8, s{sRB}, 7")
    a("s_add_u32 s8, s8, s7")
    a("s_lshl_b32 s8, s8, 2")
    a(f"s_add_u32 s8, s8, {WS_G}")
    a("v_lshl_add_u32 v31, v3, 2, s8")
    a("s_mov_b32 exec_lo, 0x80008000"); a("s_mov_b32 exec_hi, 0x80008000")
    a(f"global_store_dword v31, v30, s[{P_WS}:{P_WS+1}] sc1")
    a("s_mov_b64 exec, -1")
    a("s_waitcnt lgkmcnt(0)")
    a("s_barrier")
    a("s_setprio 0")
    mix(q_mfma(F[1]), [], wp[19:])
    st.stamp(a, "loop")
    srd(a, 48, P_WS, 2621440, WS_PQ)
    a(f"v_lshlrev_b32 v28, 4, v{vL}")
    a(f"s_lshl_b32 s6, s{sRB}, 2")
    a("s_add_u32 s6, s6, s5")
    a("s_mul_i32 s6, s6, 40960")
    a(f"s_mul_i32 s7, s{sG}, 5120")
    a("s_add_u32 s6, s6, s7")
    a("s_add_u32 s7, s6, 4096")
    TM = 72
    QB = opt.get("qbar", 3)
    for c0, c1 in ((0, QB), (QB, 5)):
        if c1 > c0: phi4(a, ACC+8*c0, 8*(c1-c0), 8, TM+8*c0, pk=(c0 > 0 or opt.get('qpk', 0)))
        for ct in range(c0, c1):
            t = TM + 8*ct
            for k in range(4): a(f"v_cvt_pk_bf16_f32 v{t+k}, v{t+2*k}, v{t+2*k+1}")
        for ct in range(c0, c1):
            t = TM + 8*ct
            a(f"v_permlane16_swap_b32 v{t}, v{t+2}")
            a(f"v_permlane16_swap_b32 v{t+1}, v{t+3}")
            so, off = (6, 1024*ct) if ct < 4 else (7, 0)
            if not opt.get("xnopq"): a(f"buffer_store_dwordx4 {V(t,4)}, v28, s[48:51], s{so} offen offset:{off} {opt.get('pqf', 'sc1')}")
        if c0 == 0:
            st.stamp(a, "epi"); a("s_barrier")
    st.stamp(a, "epi2")
    a(f"s_branch {LE}")

    ACC = 32; F = [112, 148]
    cA0, cA1, cB, cM = 10, 11, 12, 13
    aA0, aA1, aB, aM = 14, 15, 16, 17
    SC = 18
    a.label(LQ)
    st.n = n0; st.names = st.names[:n0]
    common_addr()
    a(f"s_and_b32 s5, s{sW}, 1")
    a(f"s_lshr_b32 s6, s{sW}, 1")
    a(f"v_and_b32 v28, 7, v{vL}")
    a("v_lshlrev_b32 v28, 2, v28")
    a("v_mov_b32 v184, 0")
    a(f"v_mov_b32 v30, {LCNT}")
    a("ds_write_b32 v30, v184")
    a("s_waitcnt lgkmcnt(0)")
    st.stamp(a, "karg")
    if opt.get("probe"):
        st.stamp(a, "i0"); st.stamp(a, "first"); st.stamp(a, "s0")
    a(f"s_mul_i32 s8, s{sG}, 6720")
    a(f"s_add_u32 s52, s{P_WS}, s8")
    a(f"s_addc_u32 s53, s{P_WS+1}, 0")
    a("s_mov_b32 s54, 6720")
    a("s_mov_b32 s55, 0x20000")
    a("s_lshl_b32 s8, s6, 13")
    a(f"v_add_u32 v{cA0}, s8, v4")
    a(f"v_xor_b32 v{cA1}, 64, v{cA0}")
    a("s_mul_i32 s8, s5, 80")
    a(f"s_add_u32 s8, s8, {SEGK}")
    a(f"v_add_u32 v{cB}, s8, v5")
    a("v_cmp_lt_u32 vcc, 1, v6")
    a(f"v_mov_b32 v30, 64")
    a(f"v_mov_b32 v31, {SEGV-SEGK-16}")
    a("v_cndmask_b32 v30, v30, v31, vcc")
    a(f"v_add_u32 v{cM}, v{cB}, v30")
    a("v_cmp_gt_u32 s[10:11], 8, v2")
    a("v_cndmask_b32 v30, 0, 1.0, s[10:11]")
    for rt in range(4):
        for ct in range(5):
            for j in range(4):
                src = "1.0" if ct < 2 else ("v30" if ct == 2 else "0")
                a(f"v_mov_b32 v{ACC+20*rt+4*ct+j}, {src}")
    pairs = [(0,2),(0,3),(1,2),(1,3),(1,4),(2,3),(2,4)]
    a(f"s_mul_i32 s8, s6, {RSTR}")
    a("s_mul_i32 s9, s5, 3360")
    a("s_add_u32 s8, s8, s9")
    a(f"v_lshlrev_b32 v31, 2, v{vL}")
    a(f"v_add_u32 v31, {DUMP}, v31")
    T = 112
    for kt in range(3):
        a(f"v_add_u32 v30, {16*kt}, v2")
        a(f"v_mul_u32_u24 v{T+kt}, 13, v30")
        a(f"v_lshrrev_b32 v{T+kt}, 8, v{T+kt}")
        a(f"v_mul_u32_u24 v{T+4+kt}, 1600, v{T+kt}")
        a(f"v_lshl_add_u32 v{T+4+kt}, v30, 2, v{T+4+kt}")
        a(f"v_add_u32 v{T+4+kt}, s8, v{T+4+kt}")
    for vt in range(2, 5):
        a(f"v_lshl_add_u32 v30, v3, 2, {16*vt-20}")
        a(f"v_mul_u32_u24 v{T+8+vt}, 13, v30")
        a(f"v_lshrrev_b32 v{T+8+vt}, 8, v{T+8+vt}")
        a(f"v_mul_u32_u24 v{T+16+vt}, 20, v{T+8+vt}")
        a(f"v_sub_u32 v{T+16+vt}, v30, v{T+16+vt}")
        a(f"v_mul_u32_u24 v{T+16+vt}, 80, v{T+16+vt}")
        a(f"v_add_u32 v{T+8+vt}, -1, v{T+8+vt}")
    for i, (kt, vt) in enumerate(pairs):
        a(f"v_cmp_eq_u32 vcc, v{T+kt}, v{T+8+vt}")
        a(f"v_add_u32 v30, v{T+4+kt}, v{T+16+vt}")
        a(f"v_cndmask_b32 v{SC+i}, v31, v30, vcc")
    for kt in range(3):
        a(f"v_lshl_add_u32 v30, v3, 2, v{T+kt}")
        a("v_cmp_gt_u32 vcc, 2, v30")
        a(f"v_add_u32 v30, 1600, v{T+4+kt}")
        a(f"v_cndmask_b32 v{SC+7+kt}, v31, v30, vcc")
    def kv_reads(f, ks):
        L = []
        aa = aA1 if ks else aA0
        o = ks*32*160
        bo = [(aB, 0), (aB, 32), (aM, 0), (aB, SEGV-SEGK+16), (aB, SEGV-SEGK+48)]
        L.append(f"ds_read_b128 {V(f,4)}, v{aa}")
        for ct in range(5):
            for h in range(2):
                L.append(f"ds_read_b64_tr_b16 {V(f+16+4*ct+2*h,2)}, v{bo[ct][0]} offset:{o+bo[ct][1]+h*1280}")
        for rt in range(1, 4):
            L.append(f"ds_read_b128 {V(f+4*rt,4)}, v{aa} offset:{2048*rt}")
        if opt.get("noread"): return []
        return L
    def kv_mfma(f):
        if opt.get("nomfma"): return ["s_nop 0"]*20
        return [f"v_mfma_f32_16x16x32_bf16 {V(ACC+20*rt+4*ct,4)}, {V(f+4*rt,4)}, {V(f+16+4*ct,4)}, {V(ACC+20*rt+4*ct,4)}" for rt in range(4) for ct in range(5)]
    def kv_addr(): return [f"v_add_u32 v{d}, s12, v{c}" for d, c in ((aA0,cA0),(aB,cB),(aM,cM),(aA1,cA1))]
    a("s_mov_b32 s12, 0"); a("s_mov_b32 s13, 9")
    for x in kv_addr(): a(x)
    st.stamp(a, "pre")
    a("s_waitcnt lgkmcnt(0)")
    a("s_barrier")
    st.stamp(a, "B0")
    for x in kv_reads(F[0], 0): a(x)
    LL = a.newlabel("Lg_kvl")
    a.label(LL)
    a("s_waitcnt lgkmcnt(0)")
    m = kv_mfma(F[0])
    interleave(a, m[:16], kv_reads(F[1], 1))
    advance()
    interleave(a, m[16:], kv_addr())
    a("s_waitcnt lgkmcnt(0)")
    a("s_barrier")
    interleave(a, kv_mfma(F[1]), kv_reads(F[0], 0))
    a("s_sub_u32 s13, s13, 1")
    a("s_cmp_lg_u32 s13, 0")
    a(f"s_cbranch_scc1 {LL}")
    a("s_waitcnt lgkmcnt(0)")
    interleave(a, kv_mfma(F[0]), kv_reads(F[1], 1))
    flags_issue(a, 28, 184)
    a("s_waitcnt lgkmcnt(0)")
    a("s_barrier")
    a("s_setprio 3")
    P = 188
    TM = 112
    ONE = 132
    KD = 32
    def tailops(rt):
        b = ACC + 20*rt
        L = [f"v_cndmask_b32 v{TM+8+j}, v{b+8+j}, v{TM+8+j}, s[10:11]" for j in range(4)]
        for ct in range(5):
            s_ = TM + 4*ct if ct < 3 else b + 4*ct
            d = P + 8*ct + 2*rt
            L += [f"v_cvt_pk_bf16_f32 v{d}, v{s_}, v{s_+1}", f"v_cvt_pk_bf16_f32 v{d+1}, v{s_+2}, v{s_+3}"]
        return L
    def kvm(kp):
        L = []
        for i, (kt, vt) in enumerate(pairs):
            c = "0" if kp == 0 else V(KD+4*i, 4)
            L.append(f"v_mfma_f32_16x16x32_bf16 {V(KD+4*i,4)}, {V(P+8*vt+4*kp,4)}, {V(P+8*kt+4*kp,4)}, {c}")
        for kt in range(3):
            c = "0" if kp == 0 else V(KD+28+4*kt, 4)
            L.append(f"v_mfma_f32_16x16x32_bf16 {V(KD+28+4*kt,4)}, {V(ONE,4)}, {V(P+8*kt+4*kp,4)}, {c}")
        return L
    def weave(ms, vs, per):
        vi = 0
        for m in ms:
            a(m)
            cost = 0
            while vi < len(vs) and cost < per:
                a(vs[vi]); cost += 2 if "v_exp" in vs[vi] else 1; vi += 1
        for x in vs[vi:]: a(x)
    m = kv_mfma(F[1])
    if opt.get("epo", 1):
        for x in m[:7]: a(x)
        A, B, C = phi_ops(ACC, 12, 8, TM, pk=False)
        weave(m[7:], [f"v_mov_b32 v{ONE+j}, 0x3f803f80" for j in range(4)] + A + B, opt.get("per", 3))
        st.stamp(a, "loop")
        for x in phi_ops(ACC, 12, 8, TM)[2] + tailops(0): a(x)
        phi4(a, ACC+20, 12, 8, TM)
        for x in tailops(1): a(x)
        A, B, C = phi_ops(ACC+40, 12, 8, TM)
        for x in A: a(x)
        weave(kvm(0), B, 3)
        for x in C + tailops(2): a(x)
        phi4(a, ACC+60, 12, 8, TM)
        for x in tailops(3): a(x)
        for x in kvm(1): a(x)
    else:
        for x in m: a(x)
        st.stamp(a, "loop")
        for j in range(4): a(f"v_mov_b32 v{ONE+j}, 0x3f803f80")
        for rt in range(4):
            phi4(a, ACC+20*rt, 12, 8, TM)
            for x in tailops(rt): a(x)
        for x in kvm(0) + kvm(1): a(x)
    for i in range(7):
        a(f"ds_write2_b32 v{SC+i}, v{KD+4*i}, v{KD+4*i+1} offset0:0 offset1:20")
        a(f"ds_write2_b32 v{SC+i}, v{KD+4*i+2}, v{KD+4*i+3} offset0:40 offset1:60")
    for kt in range(3):
        a(f"ds_write_b32 v{SC+7+kt}, v{KD+28+4*kt}")
    a(f"v_lshlrev_b32 v2, 2, v{vT}")
    a("v_add_u32 v3, 4096, v2")
    flags_wait(a, 28, 184)
    st.stamp(a, "epi")
    a("s_waitcnt lgkmcnt(0)")
    a("s_barrier")
    for i in range(7):
        a(f"ds_read2st64_b32 {V(4+2*i,2)}, v2 offset0:{4*i} offset1:{4*i+27}")
    for i in range(7):
        a(f"s_waitcnt lgkmcnt({6-i})")
        a(f"v_add_f32 v{4+2*i}, v{4+2*i}, v{5+2*i}")
        if not opt.get("xnoat"): a(f"buffer_atomic_add_f32 v{4+2*i}, v{2 + (i >> 2)}, s[52:55], 0 offen offset:{1024*(i&3)}")
    st.stamp(a, "epi2")
    a.label(LE)
    a("s_setprio 0")
    a(f"s_lshl_b32 s57, s{sG}, 11")
    a(f"s_add_u32 s57, s57, {WS_CNT}")
    a("s_mov_b32 s58, -1")
    a("s_mov_b32 s56, 7")
```

```python
from common import *
YB = 0; KVB = 12288; RB = 12288
PL = 2176; TS = 16*PL + 16
def role_p2(a, st, sSB, sCT, sW, opt):
    vT, vL = 0, 1
    SP = opt.get("sigpos", 2)
    def sig(k):
        if SP == k:
            signal(a, 56, 57, 58, 116); st.stamp(a, "sig")
    A2 = 56
    for r in range(A2, A2+32): a(f"v_mov_b32 v{r}, 0")
    sig(0)
    a(f"s_and_b32 s4, s{sW}, 1")
    a(f"s_lshr_b32 s5, s{sW}, 1")
    a(f"v_lshlrev_b32 v2, 4, v{vT}")
    a(f"s_lshl_b32 s6, s{sSB}, 1")
    a("s_add_u32 s6, s6, s4")
    a("s_mul_i32 s7, s6, 40960")
    a("s_mul_i32 s8, s5, 10240")
    a("s_add_u32 s7, s7, s8")
    a(f"s_and_b32 s14, s{sCT}, {1 if opt.get('par', 0) else 0}")
    a("s_lshl_b32 s15, s14, 1")
    a("s_sub_u32 s15, 1, s15")
    a("s_mul_i32 s8, s14, 5120")
    a("s_add_u32 s7, s7, s8")
    a(f"s_add_u32 s7, s7, {WS_PQ+2048}")
    a(f"v_lshl_add_u32 v3, v{vL}, 4, s7")
    a("s_mul_i32 s8, s15, 5120")
    a("v_add_u32 v4, s8, v3")
    a(f"v_and_b32 v6, 31, v{vL}")
    a(f"v_lshrrev_b32 v7, 5, v{vL}")
    a("s_lshl_b32 s7, s6, 7")
    a(f"s_add_u32 s7, s7, {WS_G}")
    a("v_lshl_add_u32 v8, v6, 2, s7")
    a(f"v_lshrrev_b32 v10, 3, v{vL}")
    a(f"v_lshrrev_b32 v20, 4, v{vL}")
    a(f"s_lshl_b32 s7, s{sW}, 2")
    a("v_add_u32 v11, s7, v20")
    a(f"v_xor_b32 v11, v11, v{vL}")
    a("v_and_b32 v11, 7, v11")
    a("v_lshlrev_b32 v11, 4, v11")
    a("v_lshl_add_u32 v10, v10, 12, v11")
    a(f"s_mul_i32 s7, s{sCT}, {80*4096}")
    a(f"s_lshl_b32 s8, s{sSB}, 7")
    a("s_add_u32 s7, s7, s8")
    a(f"s_add_u32 s7, s7, {WS_YT}")
    a(f"s_lshl_b32 s8, s{sW}, 15")
    a("s_add_u32 s8, s8, s7")
    a("v_add_u32 v5, s8, v10")
    a("v_add_u32 v9, 0x40000, v5")
    srd(a, 48, P_WS, 53760, WS_KV)
    sig(1)
    a("v_lshrrev_b32 v16, 3, v6")
    a(f"v_and_b32 v21, 3, v{vL}")
    a("v_lshl_add_u32 v16, v16, 2, v21")
    a("v_bfe_u32 v17, v6, 2, 1")
    a("v_lshl_add_u32 v16, v16, 1, v17")
    a("v_min_u32 v16, 20, v16")
    a("v_mul_u32_u24 v16, 40, v16")
    a("s_lshl_b32 s9, s5, 1")
    a("s_add_u32 s9, s9, s14")
    a("s_mul_i32 s7, s9, 3360")
    a("v_add_u32 v14, s7, v16")
    a("v_lshl_add_u32 v13, v7, 4, v14")
    a("s_mul_i32 s7, s15, 3360")
    a("v_add_u32 v220, s7, v13")
    a("v_add_u32 v221, s7, v14")
    a(f"v_bfe_u32 v16, v{vL}, 2, 2")
    a("v_lshl_add_u32 v16, v16, 1, v7")
    a("v_mul_u32_u24 v16, 160, v16")
    a("v_lshl_add_u32 v16, v21, 3, v16")
    a("s_mul_i32 s7, s9, 12800")
    a(f"s_add_u32 s7, s7, {WOB}")
    a("v_add_u32 v16, s7, v16")
    a("v_and_b32 v17, 1, v20")
    a("v_lshl_add_u32 v15, v17, 5, v16")
    a("s_movk_i32 s7, 2560")
    a("v_mad_u32_u24 v252, v17, s7, v16")
    a("s_mul_i32 s7, s15, 12800")
    a("v_add_u32 v222, s7, v15")
    a("v_add_u32 v223, s7, v252")
    a("s_sub_u32 s7, s7, 10240")
    a("v_mul_lo_u32 v253, v17, s7")
    a("v_add_u32 v253, v253, v16")
    a("s_cmp_lt_u32 s5, 2")
    a("s_cselect_b64 vcc, -1, 0")
    a("v_mov_b32 v18, s5")
    a("v_cndmask_b32 v17, v17, v18, vcc")
    a("v_lshl_add_u32 v17, v17, 1, v7")
    a("s_lshl_b32 s7, s4, 2")
    a("v_add_u32 v17, s7, v17")
    a(f"v_and_b32 v18, 15, v{vL}")
    a("v_add_u32 v18, 64, v18")
    a("v_cndmask_b32 v18, v18, v6, vcc")
    a("v_bfe_u32 v16, v18, 1, 3")
    a("v_xor_b32 v16, v16, v17")
    a("v_lshlrev_b32 v16, 4, v16")
    a("v_lshl_add_u32 v10, v18, 7, v16")
    sig(2)
    FA = 224
    a(f"v_lshrrev_b32 v17, 3, v{vT}")
    a(f"v_and_b32 v18, 7, v{vT}")
    a("v_mul_u32_u24 v19, 1280, v17")
    a(f"v_lshl_add_u32 v{FA}, v18, 4, v19")
    a(f"s_and_b32 s7, s{sW}, 3")
    a(f"s_mul_i32 s7, s7, {4*PL}")
    a(f"s_lshr_b32 s8, s{sW}, 2")
    a("s_lshl_b32 s8, s8, 8")
    a("s_add_u32 s7, s7, s8")
    a("v_and_b32 v16, 3, v17")
    a(f"v_mul_u32_u24 v19, {PL}, v16")
    a("v_lshl_add_u32 v19, v7, 7, v19")
    a("v_lshrrev_b32 v16, 2, v18")
    a(f"v_mul_u32_u24 v16, {TS}, v16")
    a("v_add3_u32 v19, v19, v16, s7")
    a(f"v_lshl_add_u32 v{FA+1}, v21, 5, v19")
    a(f"v_bfe_u32 v17, v{vL}, 2, 3")
    a("v_mul_u32_u24 v19, 1280, v17")
    a("v_lshl_add_u32 v19, v21, 3, v19")
    a(f"s_mul_i32 s7, s{sW}, 10240")
    a("s_add_u32 s7, s7, 128")
    a(f"v_add_u32 v{FA+2}, s7, v19")
    a("s_and_b32 s7, s5, 1")
    a(f"s_mul_i32 s7, s7, {4*PL}")
    a("s_add_u32 s7, s7, s8")
    a("s_lshl_b32 s8, s4, 7")
    a("s_add_u32 s7, s7, s8")
    a(f"s_add_u32 s7, s7, {2*TS}")
    a("v_and_b32 v16, 3, v17")
    a(f"v_mul_u32_u24 v19, {PL}, v16")
    a("v_lshrrev_b32 v16, 2, v17")
    a("v_lshl_add_u32 v19, v16, 6, v19")
    a("v_lshl_add_u32 v19, v21, 4, v19")
    a(f"v_add_u32 v{FA+3}, s7, v19")
    KA = 104
    a("s_lshr_b32 s7, s2, 3")
    a("s_mul_i32 s8, s7, 37")
    a("s_lshr_b32 s8, s8, 8")
    a("s_mul_i32 s8, s8, 7")
    a("s_sub_u32 s7, s7, s8")
    a("s_lshl_b32 s7, s7, 13")
    for i in range(7):
        a(f"v_add_u32 v{KA+i}, s7, v2")
        a("s_add_u32 s7, s7, 8192")
        a("s_cmp_eq_u32 s7, 57344")
        a("s_cselect_b32 s7, 0, s7")
    sig(3)
    st.stamp(a, "ready")
    a("s_barrier")
    WB = 228; NW = 6
    ops = []
    for m in range(10):
        ops += [("M", m, 0), ("M", m, 1)]
        if m >= 2 and m % 2 == 0: ops.append(("N", m-2))
    ops.append(("N", 8))
    def wrd(k):
        if k >= len(ops): return []
        o = ops[k]
        m = o[1]
        if o[0] == "M": return [f"ds_read_b64_tr_b16 {V(WB+4*(k%NW)+2*h,2)}, v{15 if m < 5 else 222} offset:{(16*(m%5)+8*h)*160+64*o[2]}" for h in range(2)]
        return [f"ds_read_b64_tr_b16 {V(WB+4*(k%NW)+2*h,2)}, v{252 if m < 4 else (253 if m == 4 else 223)} offset:{(16*(m%5)+8*h)*160+128}" for h in range(2)]
    for k in range(NW):
        for x in wrd(k): a(x)
    lsk = a.newlabel("Lp_np")
    a(f"s_cmp_lg_u32 s{sW}, 0")
    a(f"s_cbranch_scc1 {lsk}")
    a("s_and_b32 s7, s2, 31")
    a("s_and_b32 s8, s2, 28")
    a("s_add_u32 s7, s7, s8")
    a("s_lshl_b32 s7, s7, 8")
    a(f"s_add_u32 s7, s7, {WS_CNT+512}")
    a("v_mov_b32 v16, s7")
    poll(a, 16, 17, 9)
    a.label(lsk)
    a("s_barrier")
    st.stamp(a, "go")
    KL = 176
    a(f"global_load_dword v12, v8, s[{P_WS}:{P_WS+1}] sc1")
    PT = 0
    for i in range(7):
        a(f"buffer_load_dwordx4 {V(KL+4*i,4)}, v{KA+i}, s[48:51], 0 offen sc1")
        if i == 0 and opt.get("p2bar0", 1): a("s_barrier")
    if opt.get("p2bar", 1): a("s_barrier")
    PQ = 16
    order = [4, 0, 1, 2, 3, 9, 5, 6, 7, 8]
    NPRE = opt.get("npre", 4)
    pql = [f"global_load_dwordx4 {V(PQ+4*i,4)}, v{3+i//5}, s[{P_WS}:{P_WS+1}] offset:{1024*(i%5)-2048} sc1" for i in order]
    for x in pql[:NPRE]: a(x)
    NX = NPRE
    if PT > 1: ptouch(114); NX += 1
    for i in range(7): a(f"v_lshrrev_b32 v{KA+i}, 1, v{KA+i}")
    DG = 88; DG1 = 216
    a(f"s_waitcnt vmcnt({7+NX})")
    a("v_cvt_pk_bf16_f32 v11, v12, v12")
    a("v_and_b32 v12, 0xffff0000, v11")
    a("v_sub_f32 v12, 1.0, v12")
    a("v_and_b32 v11, 0xffff, v11")
    a("v_and_b32 v112, 1, v6")
    a("v_lshlrev_b32 v112, 4, v112")
    a("v_lshlrev_b32 v11, v112, v11")
    a("v_lshrrev_b32 v112, 1, v6")
    a("v_lshlrev_b32 v113, 2, v7")
    a("v_sub_u32 v112, v112, v113")
    a("s_and_b32 s7, s5, 1")
    a("s_lshl_b32 s7, s7, 3")
    a("v_subrev_u32 v113, s7, v112")
    for x in range(4):
        a(f"v_cmp_eq_u32 vcc, {x}, v113")
        a(f"v_cmp_eq_u32 s[10:11], {8+x}, v112")
        a(f"v_cndmask_b32 v{DG+x}, 0, v11, vcc")
        a(f"v_cndmask_b32 v{DG1+x}, 0, v11, s[10:11]")
    for i in range(7):
        a(f"s_waitcnt vmcnt({NX+6-i})")
        a(f"v_cvt_pk_bf16_f32 v{KL+4*i}, v{KL+4*i}, v{KL+4*i+1}")
        a(f"v_cvt_pk_bf16_f32 v{KL+4*i+1}, v{KL+4*i+2}, v{KL+4*i+3}")
        a(f"ds_write_b64 v{KA+i}, {V(KL+4*i,2)} offset:{KVB}")
    a("s_waitcnt lgkmcnt(0)")
    st.stamp(a, "kv")
    a("s_barrier")
    st.stamp(a, "Ba")
    if opt.get("yprio"):
        l = a.newlabel("Lp_pr"); a(f"s_cmp_lt_u32 s{sW}, 4"); a(f"s_cbranch_scc1 {l}"); a("s_setprio 1"); a.label(l)
    A1 = 92
    OD = [104, 120]
    O = 136
    ACC = 176
    au = Auto(a)
    def rdA1(hh): return [f"ds_read_b64 {V(A1+4*(hh%3),2)}, v{13 if hh < 4 else 220} offset:{KVB+840*(hh&3)}", f"ds_read_b64 {V(A1+4*(hh%3)+2,2)}, v{13 if hh < 4 else 220} offset:{KVB+840*(hh&3)+8}"]
    for x in rdA1(0): au(x)
    a("s_mov_b32 exec_hi, 0")
    for hh in (0, 1, 4, 5): au(f"ds_read_b64 {V(A2+4*hh+2*(hh&1),2)}, v{14 if hh < 4 else 221} offset:{KVB+840*(hh&3)+32}")
    a("s_not_b64 exec, exec")
    for hh in (2, 3, 6, 7): au(f"ds_read_b64 {V(A2+4*hh+2*(hh&1),2)}, v{14 if hh < 4 else 221} offset:{KVB+840*(hh&3)+32}")
    a("s_mov_b64 exec, -1")
    for x in rdA1(1) + rdA1(2): au(x)
    def mm(hh):
        q, j = hh >> 2, hh & 3
        d = OD[hh & 1]
        return [f"v_mfma_f32_32x32x16_bf16 {V(d,16)}, {V(A2+4*hh,4)}, {V(PQ+20*q+16,4)}, 0",
                f"v_mfma_f32_32x32x16_bf16 {V(d,16)}, {V(A1+4*(hh%3),4)}, {V(PQ+20*q+4*j,4)}, {V(d,16)}"]
    def fin(hh):
        d = OD[hh & 1]
        L = [f"v_add_f32 v{d+10}, 0x358637bd, v{d+10}", f"v_rcp_f32 v{d+10}, v{d+10}", f"v_mul_f32 v{d+10}, v{d+10}, v12"]
        for r in range(5):
            L += [f"v_mul_f32 v{d+2*r}, v{d+2*r}, v{d+10}", f"v_mul_f32 v{d+2*r+1}, v{d+2*r+1}, v{d+10}"]
        L += [f"v_cvt_pk_bf16_f32 v{O+5*hh+r}, v{d+2*r}, v{d+2*r+1}" for r in range(5)]
        return L
    def wmm(k):
        o = ops[k]; w = V(WB+4*(k % NW), 4)
        if o[0] == "M":
            _, m, t = o
            L = [f"v_mfma_f32_32x32x16_bf16 {V(ACC+16*t,16)}, {V(O+4*m,4)}, {w}, {'0' if m == 0 else V(ACC+16*t,16)}"]
            post = wrd(k+NW)
            if t == 1 and m & 1: post = post + [f"v_permlane16_swap_b32 v{O+4*m-4+i}, v{O+4*m+i}" for i in range(4)]
            return [(L[0], post)]
        m = o[1]
        L = [f"v_mfma_f32_16x16x32_bf16 {V(ACC+32+4*u,4)}, {V(O+4*(m+u),4)}, {w}, {'0' if m == 0 else V(ACC+32+4*u,4)}" for u in range(2)]
        return [(L[0] + "\n" + L[1], wrd(k+NW))]
    vq = list(order[:NPRE]) + (['t'] if PT > 1 else [])
    rest = [(order[k], pql[k]) for k in range(NPRE, 10)]
    YL = 56
    rest += [("y0", f"global_load_dwordx4 {V(YL,4)}, v5, s[{P_WS}:{P_WS+1}] sc1")]
    def vissue(n):
        for _ in range(n):
            if rest:
                t, x = rest.pop(0); vq.append(t); a(x if not opt.get('xnoload') else 's_nop 0')
    def vwait(tags):
        last = max(vq.index(t) for t in tags)
        if not opt.get("xnowait"): a(f"s_waitcnt vmcnt({len(vq)-1-last})")
    need = lambda hh: [5*(hh >> 2) + 4, 5*(hh >> 2) + (hh & 3)]
    vissue(opt.get("v0", 0))
    vwait(need(0))
    for x in mm(0): au(x)
    carry = []
    if opt.get("lag", 1): carry += rdA1(3)
    else:
        for x in rdA1(3): au(x)
    kdone = 0
    for hh in range(9):
        ms = []
        if opt.get("hst") and hh in (0, 2, 4, 6, 8): st.stamp(a, f"h{hh}")
        vissue(opt.get('vi', [1, 2, 2, 2, 0, 0, 0, 0, 0])[hh])
        if hh + 1 < 8:
            vwait(need(hh+1))
            ms += [(x, []) for x in mm(hh+1)]
            if hh + 4 < 8: ms[-1] = (ms[-1][0], rdA1(hh+4))
        if hh == 4:
            assert not rest
            l = a.newlabel("Lp_y2")
            a(f"s_cmp_ge_u32 s{sW}, 2"); a(f"s_cbranch_scc1 {l}")
            a(f"global_load_dwordx4 {V(YL+4,4)}, v9, s[{P_WS}:{P_WS+1}] sc1")
            a.label(l)
        if hh == opt.get("hy", 6):
            a("s_waitcnt vmcnt(0)")
            au(f"ds_write_b128 v2, {V(YL,4)} offset:{YB}")
            a(f"s_cmp_lt_u32 s{sW}, 2")
            a("s_cselect_b64 exec, -1, 0")
            au(f"ds_write_b128 v2, {V(YL+4,4)} offset:{YB+8192}")
            a("s_mov_b64 exec, -1")
        if hh == opt.get("hb", 7):
            l = a.newlabel("Lp_yb")
            a(f"s_cmp_lt_u32 s{sW}, 4"); a(f"s_cbranch_scc1 {l}")
            k = max(i for i, d in enumerate(au.q) if not d) if any(not d for d in au.q) else None
            if k is not None: a(f"s_waitcnt lgkmcnt({min(15, len(au.q)-1-k)})")
            a("s_barrier")
            if opt.get("ypr", 1): a("s_setprio 2")
            a.label(l)
        mlim = (10*hh)//8
        while kdone < len(ops) and (ops[kdone][0] == "N" or ops[kdone][1] < mlim):
            ms += wmm(kdone); kdone += 1
        fl = fin(hh) if hh < 8 and not opt.get("xnofin") else []
        if opt.get("xnord"): ms = [(m, [x for x in rd if x.startswith("v_")]) for m, rd in ms]
        if opt.get("xnoswap"): ms = [(m, [x for x in rd if not x.startswith("v_")]) for m, rd in ms]
        if opt.get("xno16"): ms = [(m if "16x16" not in m else "s_nop 0", rd) for m, rd in ms]
        if opt.get("lag", 1):
            ms2 = []
            for m, rd in ms:
                if "16x16" in m:
                    pre = [x for x in carry if x.startswith("v_")]
                    if pre: m = "\n".join(pre + [m]); carry[:] = [x for x in carry if not x.startswith("v_")]
                ms2.append((m, list(carry))); carry[:] = rd
            ms = ms2
        if opt.get("burst"):
            late = []
            for m, rd in ms:
                if "16x16" in m:
                    for x in late: au(x)
                    late = []
                au(m)
                for x in rd:
                    if x.startswith("v_"): late.append(x)
                    else: au(x)
            for x in late + fl: au(x)
            continue
        fi = 0
        for i, (m, rd) in enumerate(ms):
            au(m)
            for x in rd: au(x)
            if i >= 1:
                n = -(-len(fl) // max(1, len(ms) - 1))
                for x in fl[fi:fi+n]: au(x)
                fi += n
        for x in fl[fi:]: au(x)
    assert kdone == len(ops)
    for x in carry: au(x)
    au.drain()
    st.stamp(a, "gemm")
    srd(a, 48, P_OUT, 2621440)
    a(f"s_mul_i32 s7, s{sSB}, {64*1280}")
    a(f"s_mul_i32 s8, s{sCT}, 160")
    a("s_add_u32 s7, s7, s8")
    a(f"s_lshl_b32 s9, s{sW}, 8")
    lsk = a.newlabel("Lp_sk"); l2 = a.newlabel("Lp_y16")
    a("s_cmp_ge_u32 s5, 2"); a(f"s_cbranch_scc1 {l2}")
    a("s_barrier")
    for t in range(2): a(f"ds_read_b128 {V(16+4*t,4)}, v10 offset:{YB+4096*t}")
    for t in range(2):
        a(f"s_waitcnt lgkmcnt({1-t})")
        a(f"v_mfma_f32_32x32x16_bf16 {V(ACC+16*t,16)}, {V(DG,4)}, {V(16+4*t,4)}, {V(ACC+16*t,16)}")
    a(f"s_branch {lsk}")
    a.label(l2)
    a("s_cmp_eq_u32 s5, 3"); a(f"s_cbranch_scc1 {lsk}")
    a(f"ds_read_b128 v[16:19], v10 offset:{YB}")
    for i in range(4): a(f"v_permlane16_swap_b32 v{DG+i}, v{DG1+i}")
    a("s_waitcnt lgkmcnt(0)")
    a(f"v_mfma_f32_16x16x32_bf16 {V(ACC+32,4)}, {V(DG,4)}, v[16:19], {V(ACC+32,4)}")
    a(f"v_mfma_f32_16x16x32_bf16 {V(ACC+36,4)}, {V(DG1,4)}, v[16:19], {V(ACC+36,4)}")
    a.label(lsk)
    for t in range(3):
        if t < 2: a(f"s_add_u32 m0, s9, {RB+t*TS}")
        for r in range(16 if t < 2 else 8):
            a(f"ds_write_addtid_b32 v{ACC+16*t+r} offset:{r*PL + (TS if t == 2 else 0)}")
    a("s_waitcnt lgkmcnt(0)")
    a("s_barrier")
    st.stamp(a, "Bd")
    au = Auto(a)
    R = 16; R2 = 48
    for p in range(4):
        for h in range(2):
            au(f"ds_read_b128 {V(R+8*p+4*h,4)}, v{FA+1} offset:{RB+512*p+16*h}")
    a("s_mov_b32 exec_hi, 0")
    for p in range(4): au(f"ds_read_b128 {V(R2+4*p,4)}, v{FA+3} offset:{RB+512*p}")
    a("s_mov_b32 exec_hi, -1")
    for i in range(0, 8, 2): au(f"v_pk_add_f32 {V(R+i,2)}, {V(R+i,2)}, {V(R+8+i,2)}")
    for i in range(0, 8, 2): au(f"v_pk_add_f32 {V(R+16+i,2)}, {V(R+16+i,2)}, {V(R+24+i,2)}")
    for i in range(0, 8, 2): au(f"v_pk_add_f32 {V(R+i,2)}, {V(R+i,2)}, {V(R+16+i,2)}")
    for i in range(4): au(f"v_cvt_pk_bf16_f32 v{R+i}, v{R+2*i}, v{R+2*i+1}")
    au(f"buffer_store_dwordx4 {V(R,4)}, v{FA}, s[48:51], s7 offen {opt.get('of', '')}")
    for i in (0, 2): au(f"v_pk_add_f32 {V(R2+i,2)}, {V(R2+i,2)}, {V(R2+4+i,2)}")
    for i in (0, 2): au(f"v_pk_add_f32 {V(R2+8+i,2)}, {V(R2+8+i,2)}, {V(R2+12+i,2)}")
    for i in (0, 2): au(f"v_pk_add_f32 {V(R2+i,2)}, {V(R2+i,2)}, {V(R2+8+i,2)}")
    for i in range(2): au(f"v_cvt_pk_bf16_f32 v{R2+i}, v{R2+2*i}, v{R2+2*i+1}")
    a("s_mov_b32 exec_hi, 0")
    au(f"buffer_store_dwordx2 {V(R2,2)}, v{FA+2}, s[48:51], s7 offen {opt.get('of', '')}")
    a("s_mov_b64 exec, -1")
```

```python
from common import *
import stab
TROW = 2064
T_Z = 24 * TROW
DB = 56 * TROW + 1024
KSTR = 2112; KCH = 4 * KSTR
XB = 0
KB = 51200
UB = KB + 5 * KCH
USTR = 4640
SLAB = 143344
UNITS = [4, 512, 6, 1792, 1, 260, 1024, 2, 7, None, 5, 256, 772, 258, 3, 516, 2048, 0, 1536, 768, 1280, 262]
HS, RS, ZW = 33, 69, 767
def unit_row(u):
    k = u >> 1
    return 8*(k >> 2) + 4*(u & 1) + (k & 3)

def tables_text():
    _, addr = stab.cost(UNITS, HS, RS, ZW)
    t = ".p2align 8\nL_tab_band:\n"
    b = stab.band_table().reshape(-1).view("uint32")
    for i in range(0, len(b), 8):
        t += "    .long " + ", ".join(hex(int(x)) for x in b[i:i+8]) + "\n"
    t += "L_tab_src:\n"
    addr = [4*x for x in addr]
    for i in range(0, len(addr), 16):
        t += "    .short " + ", ".join(str(x) for x in addr[i:i+16]) + "\n"
    return t

def cmul(a, t, x, m):
    a(f"v_pk_mul_f32 {V(t,2)}, {V(x,2)}, {V(m,2)} op_sel:[0,0] op_sel_hi:[0,1]")
    a(f"v_pk_fma_f32 {V(t,2)}, {V(x,2)}, {V(m,2)}, {V(t,2)} op_sel:[1,1,0] op_sel_hi:[1,0,1] neg_lo:[0,1,0]")

TO = 39
CNT = {"W": 2, "x": 0, "o": 0}
def do_touches(a, seq, opt, regs=None):
    if opt.get("notouch"): return 0
    w, x, o = regs or (TW, TX, TO)
    n = 0
    for t in seq.split():
        if t == "W":
            a(f"v_add_u32 v{w}, {'s59' if CNT['W'] == 5 else 64*3840}, v{w}")
            a(f"global_load_dword v255, v{w}, s[{P_WQKV}:{P_WQKV+1}]")
        elif t == "x":
            a(f"global_load_dword v255, v{x}, s[{P_U}:{P_U+1}] offset:{(0, 256, 384)[CNT['x']]}")
        elif t == "o":
            a(f"v_min_u32 v{o}, 819196, v{o}")
            a(f"global_load_dword v255, v{o}, s[{P_WO}:{P_WO+1}]"); a(f"v_add_u32 v{o}, 15360, v{o}")
        else:
            a(f"s_waitcnt vmcnt({t})"); continue
        CNT[t] += 1; n += 1
    assert CNT["W"] <= 10 and CNT["x"] <= 3
    return n
def w7(a, sW, fn):
    l = a.newlabel("Ls_w7")
    a(f"s_cmp_lg_u32 s{sW}, 7")
    a(f"s_cbranch_scc1 {l}")
    fn()
    a.label(l)

def slab_issue(a, p0, p1):
    for p in range(p0, p1):
        a(f"s_mov_b32 m0, {SLAB + 1024*p}")
        a(f"s_movk_i32 s9, {10240*(p & 3) + 128*(p >> 2)}")
        a("buffer_load_dwordx4 v18, s[52:55], s9 offen lds")

def role_s_pro(a, st, sJ, sW, opt):
    for r in range(2, 9): a(f"v_mov_b32 v{r}, 0")
    a(f"s_mul_i32 s4, s{sJ}, 1920")
    a(f"s_lshl_b32 s5, s{sW}, 8")
    a("s_add_u32 s4, s4, s5")
    a("v_lshl_add_u32 v42, v1, 1, s4")
    a(f"s_mul_i32 s7, s{sW}, 0xAAAC")
    a("s_lshr_b32 s6, s7, 16")
    a(f"s_mul_i32 s8, s{sJ}, 10")
    a("s_lshl_b32 s9, s6, 1")
    a("s_add_u32 s9, s9, s8")
    a("v_mov_b32 v43, s9")
    a("s_and_b32 s12, s2, 6")
    a("s_lshl_b32 s12, s12, 3")
    a("s_bfe_u32 s13, s2, 0x40003")
    a("s_add_u32 s12, s12, s13")
    a("s_lshl_b32 s12, s12, 6")
    a("s_and_b32 s13, s2, 1")
    a("s_add_u32 s12, s12, s13")
    a("s_mul_i32 s12, s12, 640")
    a("v_lshrrev_b32 v18, 3, v1")
    a("v_mul_u32_u24 v18, 1152, v18")
    a("v_lshl_add_u32 v18, v1, 4, v18")
    a("v_add_u32 v18, s12, v18")
    a("s_waitcnt lgkmcnt(0)")
    st.stamp(a, "karg")
    lz = a.newlabel("Ls_nz")
    a(f"s_and_b32 s14, s{sJ}, 15")
    a(f"s_xor_b32 s9, s{sW}, 7")
    a("s_or_b32 s14, s14, s9")
    a(f"s_cbranch_scc1 {lz}")
    a(f"s_lshl_b32 s9, s{sJ}, 7")
    a(f"s_add_u32 s9, s9, {WS_CNT}")
    a("v_lshl_add_u32 v20, v1, 8, s9")
    a("s_mov_b64 exec, 0xff")
    a(f"global_store_dword v20, v2, s[{P_WS}:{P_WS+1}] sc1")
    a("s_mov_b64 exec, -1")
    a(f"s_mul_i32 s9, s{sJ}, 420")
    a("s_add_u32 s9, s9, 2880")
    a("v_lshl_add_u32 v20, v1, 4, s9")
    a("s_mov_b32 exec_hi, 0x0fffffff")
    for i in range(7):
        a(f"global_store_dwordx4 v20, v[2:5], s[{P_WS}:{P_WS+1}] offset:{960*i-2880} sc1")
    a("s_mov_b32 exec_hi, -1")
    a.label(lz)
    ploads(a, 2, 42, 43)
    srd(a, 52, P_U, 2621440)
    def slab_loop():
        a("s_setprio 2")
        lp = a.newlabel("Ls_sl")
        a(f"s_mov_b32 s12, {SLAB}")
        a("s_mov_b32 s13, 0")
        a.label(lp)
        for p in range(4):
            a(f"s_add_u32 m0, s12, {1024*p}")
            a(f"s_add_u32 s9, s13, {10240*p}")
            a("buffer_load_dwordx4 v18, s[52:55], s9 offen lds")
        a("s_add_u32 s12, s12, 4096")
        a("s_add_u32 s13, s13, 128")
        a("s_cmp_lg_u32 s13, 640")
        a(f"s_cbranch_scc1 {lp}")
    w7(a, sW, slab_loop)

def ploads(a, base, va, vld):
    PB, PC, PARE, PAIM, PLDT = 2, 4, 6, 7, 8
    a(f"global_load_short_d16_hi v{base+PLDT-2}, v{vld}, s[{P_LDT}:{P_LDT+1}]")
    for reg, p in ((PARE, P_ARE), (PAIM, P_AIM), (PB, P_BRE), (PB+1, P_BIM), (PC, P_CRE), (PC+1, P_CIM)):
        a(f"global_load_short_d16_hi v{base+reg-2}, v{va}, s[{p}:{p+1}]")

def role_s(a, st, sJ, sCT, sW, opt={}):
    vT, vL = 0, 1
    PB, PC, PARE, PAIM, PLDT = 2, 4, 6, 7, 8
    EA = 34
    vTR, vFL = 40, 41
    ACC = 48
    BAND = 200
    u0 = UNITS.index(0)
    lpc = a.newlabel("Ls_pc")
    a("s_getpc_b64 s[64:65]")
    a.label(lpc)
    touches = lambda seq: do_touches(a, seq, opt)
    a(f"s_lshr_b32 s49, s{sJ}, 4")
    def tabloads():
        a(f"v_lshlrev_b32 v46, 2, v{vT}")
        a(f"v_add_u32 v46, L_tab_src-{lpc}, v46")
        a(f"global_load_dwordx2 {V(EA,2)}, v46, s[64:65]")
    def bandloads():
        a(f"v_lshlrev_b32 v46, 4, v{vL}")
        a(f"v_add_u32 v46, L_tab_band-{lpc}+2048, v46")
        for t in range(6):
            a(f"global_load_dwordx4 {V(BAND+4*t,4)}, v46, s[64:65] offset:{1024*t-2048}")
    L7 = a.newlabel("Ls_slab"); LC = a.newlabel("Ls_common")
    touch_setup_x(a)
    a(f"v_add_u32 v{TW}, {64*3840}, v{TW}")
    for r in list(range(10, 18)) + list(range(ACC, ACC+16)): a(f"v_mov_b32 v{r}, 0")
    a("s_add_u32 s7, s7, 0x5556")
    a("s_lshr_b32 s7, s7, 16")
    a("s_min_u32 s7, s7, 4")
    a("s_lshl_b32 s9, s7, 1")
    a("s_add_u32 s9, s9, s8")
    a("v_mov_b32 v44, s9")
    a("v_add_u32 v42, 128, v42")
    a(f"s_lshr_b32 s10, 0x92, s{sW}")
    a("s_and_b32 s10, s10, 1")
    a("s_mul_i32 s13, s48, 51200")
    a("s_add_u32 s13, s13, s50")
    a(f"v_add_u32 v{TO}, s13, v66")
    a("s_lshl_b32 s9, s50, 1")
    a("s_sub_u32 s9, 640, s9")
    a(f"v_add_u32 v{TX}, s9, v{TX}")
    a("s_mul_i32 s59, s50, 3840")
    a(f"s_sub_u32 s59, {64*3840}, s59")
    a(f"v_mov_b32 v46, 0")
    a(f"v_mov_b32 v47, {LCNT}")
    a("ds_write_b32 v47, v46")
    a(f"v_and_b32 v46, 31, v{vL}")
    a(f"v_lshrrev_b32 v47, 5, v{vL}")
    a(f"v_mad_u32_u24 v9, v47, {HS}, v46")
    a(f"v_mul_u32_u24 v46, {TROW}, v46")
    a(f"v_lshl_add_u32 v46, v47, 4, v46")
    a(f"v_add_u32 v{vTR}, s5, v46")
    a(f"s_mul_i32 s9, s{sJ}, 80")
    a(f"s_add_u32 s9, s9, {WS_UT}")
    for k in range(3):
        a(f"v_add_u32 v64, {512*k}, v{vT}")
        a("v_min_u32 v64, 1279, v64")
        a("v_mul_u32_u24 v65, 13108, v64")
        a("v_lshrrev_b32 v65, 16, v65")
        a("v_mul_u32_u24 v67, 10160, v65")
        a("v_lshl_add_u32 v67, v64, 4, v67")
        a(f"v_add_u32 v{24+k}, s9, v67")
        a("v_mul_u32_u24 v67, 5, v65")
        a("v_sub_u32 v64, v64, v67")
        a(f"v_mul_u32_u24 v64, {USTR}, v64")
        a("v_lshl_add_u32 v64, v65, 4, v64")
        a(f"v_add_u32 v{27+k}, {UB+480}, v64")
    a(f"v_and_b32 v30, 7, v{vL}")
    a("v_lshlrev_b32 v31, 11, v30")
    a(f"v_add_u32 v31, {WS_CNT+1792}, v31")
    a("v_lshlrev_b32 v30, 2, v30")
    a("s_mov_b32 s56, 0")
    a(f"s_add_u32 s57, s5, {T_Z}")
    a(f"v_lshrrev_b32 v64, 4, v{vL}")
    a(f"v_bfe_u32 v65, v{vL}, 2, 2")
    a("v_lshl_add_u32 v65, v64, 3, v65")
    a(f"v_and_b32 v67, 3, v{vL}")
    a("v_lshlrev_b32 v67, 3, v67")
    a("v_lshl_add_u32 v65, v65, 7, v67")
    a(f"v_add_u32 v22, {SLAB}, v65")
    a("v_mul_u32_u24 v64, 10240, v64")
    a(f"v_and_b32 v67, 15, v{vL}")
    a("v_lshl_add_u32 v64, v67, 4, v64")
    a("s_lshl_b32 s9, s50, 3")
    a("s_add_u32 s9, s9, s51")
    a(f"s_add_u32 s9, s9, {WS_UT+2048}")
    a("v_add_u32 v19, s9, v64")
    P1 = opt.get("p1", "early")
    def p1loads():
        ploads(a, 10, 42, 44)
        a(f"global_load_short_d16_hi v17, v43, s[{P_DSK}:{P_DSK+1}]")
    a("s_mov_b32 m0, s57")
    a("v_mov_b32 v46, 0x3f80")
    a("ds_write_addtid_b32 v46")
    a(f"s_cmp_eq_u32 s{sW}, 7")
    a(f"s_cbranch_scc1 {L7}")
    if P1 == "early":
        p1loads(); a("s_waitcnt vmcnt(8)")
    else:
        a("s_waitcnt vmcnt(0)")
        if P1 == "start": p1loads()
    a.label(L7)
    a("s_waitcnt vmcnt(20)")
    st.stamp(a, "params")
    Z1, Z8, Z256, DT, WW = 128, 130, 132, 134, 136
    T0 = 140
    def setup(o):
        B, C, AR, AI, LD_ = PB+o, PC+o, PARE+o, PAIM+o, PLDT+o
        sq = lambda t, x: [f"v_mul_f32 v{t}, v{x}, v{x}", f"v_mul_f32 v{t+1}, v{x}, v{x+1}", f"v_fma_f32 v{t}, -v{x+1}, v{x+1}, v{t}", f"v_add_f32 v{t+1}, v{t+1}, v{t+1}"]
        return [f"v_mul_f32 v{DT}, {LOG2E}, v{LD_}", f"v_exp_f32 v{DT}, v{DT}",
            f"v_mul_f32 v{T0}, v{C}, v{B}", f"v_mul_f32 v{T0+1}, v{C}, v{B+1}",
            f"v_cvt_pk_bf16_f32 v{DT}, v{DT}, v{DT}",
            f"v_fma_f32 v{T0}, -v{C+1}, v{B+1}, v{T0}", f"v_and_b32 v{DT}, 0xffff0000, v{DT}", f"v_fmac_f32 v{T0+1}, v{C+1}, v{B}",
            f"v_mul_f32 v{AR}, v{DT}, v{AR}", f"v_mul_f32 v{AI}, v{DT}, v{AI}",
            f"v_mul_f32 v{WW}, v{DT}, v{T0}", f"v_mul_f32 v{WW+1}, v{DT}, v{T0+1}",
            f"v_mul_f32 v{AR}, {LOG2E}, v{AR}", f"v_mul_f32 v{AI}, {INV2PI}, v{AI}",
            f"v_exp_f32 v{T0}, v{AR}", f"v_rndne_f32 v{T0+2}, v{AI}", f"v_sub_f32 v{AI}, v{AI}, v{T0+2}",
            f"v_cos_f32 v{Z1}, v{AI}", f"v_sin_f32 v{Z1+1}, v{AI}",
            f"v_mul_f32 v{AR}, 0x43800000, v{AR}", f"v_mul_f32 v{AI}, 0x43800000, v{AI}",
            f"v_mul_f32 v{Z1}, v{Z1}, v{T0}", f"v_mul_f32 v{Z1+1}, v{Z1+1}, v{T0}",
            f"v_exp_f32 v{T0+2}, v{AR}",
            f"v_cos_f32 v{Z256}, v{AI}", f"v_sin_f32 v{Z256+1}, v{AI}",
            ] + sq(Z8, Z1) + [f"v_mul_f32 v{Z256}, v{Z256}, v{T0+2}", f"v_mul_f32 v{Z256+1}, v{Z256+1}, v{T0+2}"] + sq(T0, Z8) + sq(Z8, T0)
    for x in setup(0): a(x)
    LK = a.newlabel("Ls_kgen")
    a(f"s_cmp_lg_u32 s{sW}, 7")
    a(f"s_cbranch_scc1 {LK}")
    l = a.newlabel("Ls_nf")
    a("s_cmp_lg_u32 s14, 0")
    a(f"s_cbranch_scc1 {l}")
    a("v_mov_b32 v21, 1")
    a("s_lshl_b64 exec, 1, s49")
    a(f"global_store_dword v30, v21, s[{P_DBG}:{P_DBG+1}] sc1")
    a("s_mov_b64 exec, -1")
    a.label(l)
    n = touches(opt.get("tA", "W W"))
    a(f"s_waitcnt vmcnt({n})")
    st.stamp(a, "slab")
    au = Auto(a)
    RG = 64; NR = 12
    def trr(u):
        for h in range(2): au(f"ds_read_b64_tr_b16 {V(RG+4*(u%NR)+2*h,2)}, v22 offset:{512*h+4096*(u>>2)+32*(u&3)}")
    for u in range(6): trr(u)
    for u in range(20):
        if u + 6 < 20: trr(u+6)
        au(f"global_store_dwordx4 v19, {V(RG+4*(u%NR),4)}, s[{P_WS}:{P_WS+1}] offset:{256*u-2048} sc1")
        if u == opt.get("ubar", 19): a("s_barrier")
    a("v_mov_b32 v46, 0")
    a("s_movk_i32 s11, 3072")
    a(f"v_min_u32 v47, 9, v{vL}")
    a(f"v_mul_u32_u24 v47, s11, v47")
    a(f"v_add_u32 v47, {DB+4*ZW}, v47")
    a("ds_write_b32 v47, v46")
    flags_issue(a, 30, 32)
    nB = touches(opt.get("tB", "W W"))
    a("s_mov_b32 s56, 1")
    def pt7():
        flags_wait(a, 30, 32, nB)
        a("v_mov_b32 v21, 1")
        a("s_bitcmp1_b32 s2, 0")
        a("s_cselect_b32 exec_lo, 0xf0, 15")
        a("s_mov_b32 exec_hi, 0")
        a(f"global_atomic_add v31, v21, s[{P_WS}:{P_WS+1}] sc1")
        a("s_mov_b64 exec, -1")
        tabloads(); bandloads()
        touches(opt.get("tC", "x W x"))
    a.label(LK)
    def kst(n):
        if opt.get("kst") is None: return
        l = a.newlabel("Lks")
        a(f"s_cmp_lg_u32 s56, {opt['kst']}"); a(f"s_cbranch_scc1 {l}"); st.stamp(a, n); a.label(l)
    kst("k0")
    CV = 176; FR = 64
    class Pipe:
        def __init__(s): s.pc = None; s.pw = None; s.n = 0; s.m0 = None; s.extra = []
        def step(s, entry):
            w = s.pw
            if s.pc is not None:
                src, off, neg = s.pc
                r = CV + (s.n % 4); s.n += 1
                a(f"v_cvt_pk_bf16_f32 v{r}, v{src}, {'-' if neg else ''}v{src+1}")
                s.pw = (r, off, neg)
            else: s.pw = None
            if w:
                if s.m0 != w[2]:
                    a(f"s_mov_b32 m0, s{5 if w[2] else 57}"); s.m0 = w[2]
                a(f"ds_write_addtid_b32 v{w[0]} offset:{w[1]}")
                if s.extra: a(s.extra.pop(0))
            s.pc = entry
        def drain(s):
            s.step(None); s.step(None)
    p = Pipe()
    uo = lambda pp: unit_row(UNITS.index(pp)) * TROW
    Wreg = {0: WW}
    p.step((WW, uo(0), True))
    for k in range(1, 8):
        Wreg[k] = 144 + 2*k
        cmul(a, Wreg[k], Wreg[k-1], Z1); p.step((Wreg[k], uo(k), True))
    rot = [160, 162, 164, 166]; ri = 0
    for base, cnt in ((0, 8), (4, 3), (2, 1), (6, 1)):
        src = Wreg[base]
        for e in range(1, cnt+1):
            d = rot[ri % 4]; ri += 1
            cmul(a, d, src, Z256); p.step((d, uo(base + 256*e), True)); src = d
    kst("k2")
    if P1 == "mid":
        l = a.newlabel("Ls_mid")
        a("s_cmp_lg_u32 s56, 0"); a(f"s_cbranch_scc1 {l}"); p1loads(); a.label(l)
    p.step((Z8, TROW, False))
    src = Z8
    rdA = [f"ds_read_b128 {V(FR+8*ks,4)}, v{vTR} offset:{32*ks}" for ks in range(8)]
    rdB = [f"ds_read_b128 {V(FR+8*ks+4,4)}, v{vTR} offset:{T_Z+32*ks}" for ks in range(8)]
    HO = opt.get("hoistA", 1)
    for q in range(2, 32):
        d = rot[ri % 4]; ri += 1
        if HO and q >= 5 and (q - 5) % 3 == 0 and rdA: p.extra.append(rdA.pop(0))
        cmul(a, d, src, Z8); p.step((d, q*TROW, False)); src = d
        if q == opt.get("q7", 14): w7(a, sW, pt7)
    p.drain()
    kst("k3")
    a("s_barrier")
    au = Auto(a)
    if HO: au.q = [set()]*0
    for k in range(8):
        if not HO: au(rdA[k])
        au(rdB[k])
    l = a.newlabel("Ls_r0")
    a("s_cmp_lg_u32 s56, 0")
    a(f"s_cbranch_scc1 {l}")
    a("s_waitcnt vmcnt(0)")
    lo, hi = ("exec_hi", "exec_lo") if u0 & 1 else ("exec_lo", "exec_hi")
    a(f"s_xor_b32 {lo}, s10, 1")
    a(f"s_mov_b32 {hi}, 0")
    a(f"v_mov_b32 v{ACC+(u0>>1)}, v17")
    a("s_mov_b64 exec, -1")
    tabloads()
    a(f"s_cmp_lt_u32 s{sW}, 5")
    a(f"s_cbranch_scc1 {l}")
    bandloads()
    a.label(l)
    kst("k3b")
    a("s_mul_i32 s9, s6, 6144")
    a("s_mul_i32 s11, s10, 3072")
    a("s_add_u32 s9, s9, s11")
    a(f"s_add_u32 s9, s9, {DB}")
    a(f"v_lshl_add_u32 v{vFL}, v9, 2, s9")
    su = setup(8); si = 8
    for x in su[:si]: a(x)
    for ks in range(8):
        au(f"v_mfma_f32_32x32x16_bf16 {V(ACC,16)}, {V(FR+8*ks,4)}, {V(FR+8*ks+4,4)}, {V(ACC,16)}")
        for x in su[si:si+4]: a(x)
        si += 4
    for x in su[si:]: a(x)
    kst("k4")
    lnf = a.newlabel("Ls_noflush")
    a("s_or_b32 s9, s10, s56")
    a(f"s_cbranch_scc0 {lnf}")
    for k in range(11):
        a(f"ds_write_b32 v{vFL}, v{ACC+k} offset:{4*RS*k}")
    for k in range(11):
        a(f"v_mov_b32 v{ACC+k}, 0")
    a.label(lnf)
    a("s_mov_b32 s6, s7")
    a("s_xor_b32 s56, s56, 1")
    a(f"s_cbranch_scc1 {LK}")
    st.stamp(a, "kgen")
    def after7():
        touches(opt.get("tE", "W W"))
        a("s_lshl_b32 s9, s49, 11")
        a(f"s_add_u32 s9, s9, {WS_CNT+1792}")
        a("v_mov_b32 v20, s9")
        poll(a, 20, 21, 64)
        a("s_setprio 0")
    w7(a, sW, after7)
    a("s_waitcnt vmcnt(0)")
    st.stamp(a, "upoll")
    a(f"v_and_b32 v{EA+2}, 0xffff, v{EA+1}")
    a(f"v_lshrrev_b32 v{EA+1}, 16, v{EA}")
    a(f"v_and_b32 v{EA}, 0xffff, v{EA}")
    for k in range(3): a(f"v_add_u32 v{EA+k}, {DB}, v{EA+k}")
    st.stamp(a, "gather")
    a(f"v_mul_u32_u24 v13, 2185, v{vT}")
    a("v_lshrrev_b32 v13, 16, v13")
    a(f"v_mul_u32_u24 v13, {USTR-480}, v13")
    a(f"v_lshl_add_u32 v13, v{vT}, 4, v13")
    for r in range(20, 24): a(f"v_mov_b32 v{r}, 0")
    a(f"v_and_b32 v14, 15, v{vL}")
    a(f"v_lshrrev_b32 v15, 4, v{vL}")
    a("v_and_b32 v16, 3, v14")
    a("v_sub_u32 v16, 3, v16")
    a(f"v_mul_u32_u24 v16, {KSTR}, v16")
    a("v_lshrrev_b32 v17, 2, v14")
    a("v_sub_u32 v17, 3, v17")
    a("v_lshl_add_u32 v16, v17, 3, v16")
    a(f"v_add_u32 v16, {KB}, v16")
    a(f"v_add_u32 v13, {UB}, v13")
    a("v_lshlrev_b32 v17, 5, v14")
    a("v_and_b32 v18, 1, v15")
    a("v_lshl_add_u32 v18, v18, 9, v17")
    a("v_and_b32 v19, 2, v15")
    a("v_lshl_add_u32 v18, v19, 3, v18")
    a("v_lshl_add_u32 v17, v15, 4, v17")
    a(f"v_add_u32 v17, {UB}, v17")
    a("s_waitcnt lgkmcnt(0)")
    a("s_barrier")
    st.stamp(a, "B1")
    for k in range(3):
        a(f"global_load_dwordx4 {V(128+4*k,4)}, v{24+k}, s[{P_WS}:{P_WS+1}] sc1")
    ER = 64
    for c in range(5):
        for k in range(3):
            a(f"ds_read2st64_b32 {V(ER+6*c+2*k,2)}, v{EA+k} offset0:{24*c} offset1:{24*c+12}")
    a(f"v_cmp_gt_u32 vcc, 150, v{vT}")
    a("s_and_saveexec_b64 s[12:13], vcc")
    a(f"ds_write_b128 v13, v[20:23]")
    a("s_mov_b64 exec, s[12:13]")
    a(f"s_add_u32 m0, s5, {KB}")
    a("s_waitcnt lgkmcnt(1)")
    for c in range(5):
        b = ER + 6*c
        for k in range(3):
            a(f"v_add_f32 v{b+2*k}, v{b+2*k}, v{b+2*k+1}")
        a(f"v_cvt_pk_bf16_f32 v{b+1}, v{b}, v{b+2}")
        a(f"v_cvt_pk_bf16_f32 v{b+3}, v{b+2}, v{b+4}")
        o = c*KCH
        a(f"ds_write_addtid_b32 v{b+1} offset:{o}")
        a(f"ds_write_addtid_b32 v{b+3} offset:{o+KSTR}")
        a(f"ds_write_addtid_b32 v{b+1} offset:{o+2*KSTR-4}")
        a(f"ds_write_addtid_b32 v{b+3} offset:{o+3*KSTR-4}")
    for k in range(3):
        a(f"s_waitcnt vmcnt({2-k})")
        a(f"ds_write_b128 v{27+k}, {V(128+4*k,4)}")
    w7(a, sW, lambda: touches(opt.get("tD", "x W")))
    LD = a.newlabel("Ls_dil"); LE = a.newlabel("Ls_end")
    a(f"s_cmp_ge_u32 s{sW}, 5")
    a(f"s_cbranch_scc1 {LD}")
    n0 = st.n
    vA, vB, vX = 2, 3, 4
    a(f"s_mul_i32 s9, s{sW}, {KCH}")
    a("v_lshl_add_u32 v2, v15, 4, v16")
    a(f"v_add_u32 v{vA}, s9, v2")
    a(f"s_mul_i32 s9, s{sW}, {USTR}")
    a(f"v_add_u32 v{vB}, s9, v17")
    a(f"s_mul_i32 s9, s{sW}, 10240")
    a(f"s_add_u32 s9, s9, {XB}")
    a(f"v_lshl_add_u32 v{vX}, v{vL}, 4, s9")
    srd(a, 52, P_WS, 2621440, WS_YT)
    a(f"s_mul_i32 s9, s{sJ}, 5")
    a(f"s_add_u32 s9, s9, s{sW}")
    a("s_lshl_b32 s56, s9, 12")
    a("s_waitcnt lgkmcnt(0)")
    a("s_barrier")
    st.stamp(a, "B2")
    CA = 24; AF = 56; BF = 128; NB = 12
    au = Auto(a)
    Areg = lambda x: AF + 4*(x + 7)
    def rdA(x):
        off = 64*(9 - x) if x <= 9 else 1120
        return [f"ds_read_b64 {V(Areg(x),2)}, v{vA} offset:{off}", f"ds_read_b64 {V(Areg(x)+2,2)}, v{vA} offset:{off+8}"]
    rdB = lambda m: f"ds_read_b128 {V(BF+4*(m % NB),4)}, v{vB} offset:{64*m}"
    groups = []
    for m in range(64):
        g = []
        if m < 8:
            g += rdA(-m) + rdA(8-m)
            if m == 7: g += rdA(9) + rdA(10)
        g.append(rdB(m)); groups.append(g)
    seen = set()
    def mf(i, x, m):
        c = V(CA+4*i, 4) if i in seen else "0"
        seen.add(i)
        return f"v_mfma_f32_16x16x32_bf16 {V(CA+4*i,4)}, {V(Areg(x),4)}, {V(BF+4*(m % NB),4)}, {c}"
    def fin_pair(i, em):
        b = CA + 4*i
        for k in range(4): em(f"v_cvt_pk_bf16_f32 v{b+k}, v{b+2*k}, v{b+2*k+1}")
        em(f"v_permlane16_swap_b32 v{b}, v{b+2}")
        em(f"v_permlane16_swap_b32 v{b+1}, v{b+3}")
        em(f"buffer_store_dwordx4 {V(b,4)}, v18, s[52:55], s56 offen offset:{512*i} sc1")
    flat = [x for g in groups for x in g]
    gend = []; n = 0
    for g in groups: n += len(g); gend.append(n)
    ni = 0
    for _ in range(gend[2]): au(flat[ni]); ni += 1
    for m in range(64):
        j, r = m >> 3, m & 7
        ms = [mf(j, -r, m)]
        if j < 7: ms.append(mf(j+1, 8-r, m))
        if r == 7 and j < 6: ms.append(mf(j+2, 9, m))
        if r == 7 and j < 4: ms.append(mf(j+4, 10, m))
        lim = gend[min(63, m + NB - 2)]
        for x in ms:
            au(x)
            for _ in range(3 if m < 8 else 1):
                if ni < lim: au(flat[ni]); ni += 1
        if m == 24: fin_pair(0, au)
    assert ni == len(flat)
    st.stamp(a, "conv")
    a("s_barrier")
    st.stamp(a, "B3")
    au = Auto(a)
    R = 56
    for t in range(10): au(f"ds_read_b128 {V(R+4*t,4)}, v{vX} offset:{1024*t}")
    for i in range(2, 8):
        for t in ([i-2] + ([i+2] if i >= 4 else [])):
            au(f"v_pk_add_f32 {V(CA+4*i,2)}, {V(CA+4*i,2)}, {V(R+4*t,2)}")
            au(f"v_pk_add_f32 {V(CA+4*i+2,2)}, {V(CA+4*i+2,2)}, {V(R+4*t+2,2)}")
        if i & 1: fin_pair(i-1, au)
    a("s_lshl_b32 s57, s49, 11")
    a(f"s_add_u32 s57, s57, {WS_CNT+256}")
    a("s_and_b32 s9, s49, 3")
    a("s_lshl_b32 s9, s9, 3")
    a("s_lshr_b32 s11, s49, 2")
    a("s_add_u32 s9, s9, s11")
    a("s_mov_b32 s56, 4")
    a("s_lshl_b32 s58, 0x55, s9")
    if opt.get("b4", 1) == 1: a("s_barrier")
    a(f"s_branch {LE}")
    a.label(LD)
    st.n = n0; st.names = st.names[:n0]
    a("s_setprio 1")
    for k, r in enumerate((TW, TX, TO)): a(f"v_mov_b32 v{226+k}, v{r}")
    a("v_lshl_add_u32 v16, v15, 3, v16")
    a(f"v_lshlrev_b32 v19, 4, v{vL}")
    a(f"v_add_u32 v19, {XB}, v19")
    a(f"s_cmp_eq_u32 s{sW}, 6")
    a("s_movk_i32 s56, 0x198")
    a("s_cselect_b32 s56, 0x3ba, s56")
    a(f"s_cmp_eq_u32 s{sW}, 7")
    a("s_cselect_b32 s56, 0x425c, s56")
    a(f"s_mul_i32 s57, s{sW}, 12")
    a("s_add_u32 s57, s57, 9")
    wo_setup(a, 5, 57, sCT, 52, 58)
    a("s_waitcnt lgkmcnt(0)")
    a("s_barrier")
    st.stamp(a, "B2")
    w7(a, sW, lambda: do_touches(a, opt.get("t4", "o o o o"), opt, (226, 227, 228)))
    LU = a.newlabel("Ls_unit"); L3 = a.newlabel("Ls_u3"); LN = a.newlabel("Ls_un")
    a.label(LU)
    a("s_bitcmp1_b32 s56, 3")
    a("s_cselect_b32 s11, 8, 1")
    a("s_and_b32 s9, s56, 15")
    a("s_sub_u32 s9, s9, s11")
    a(f"s_mul_i32 s12, s9, {KCH}")
    a("v_add_u32 v2, s12, v16")
    a(f"s_mul_i32 s12, s9, {USTR}")
    a("v_add_u32 v3, s12, v17")
    a("s_mul_i32 s12, s9, 10240")
    a("v_add_u32 v4, s12, v19")
    for t in range(4): a(wo_piece(5, 52, 58, t, 1))
    a("s_add_u32 s58, s58, 3840")
    a("s_cmp_eq_u32 s11, 1")
    a(f"s_cbranch_scc1 {L3}")
    TP = 24; WN = 48; BX = 96; OP = 128; DA = 144
    def unit(types, d0, nd, nJ, toff, tlen, tbase, xoff):
        au = Auto(a)
        npair = len(types)//2
        rdW = lambda J: [f"ds_read_b128 {V(WN+8*J+4*k,4)}, v3 offset:{512*J+432+16*k}" for k in range(2)]
        def rdT(di): return [f"ds_read_b64 {V(TP+4*(di*npair+(ti>>1))+2*(ti&1),2)}, v2 offset:{2*(toff+tlen*ti+tbase-16*(d0+di))}" for ti in range(len(types))]
        def box(J): return [f"v_mfma_f32_16x16x32_bf16 {V(BX+16*(J&1)+4*ti,4)}, {V(WN+8*J+(0 if stab.W0[ty] == -24 else 4),4)}, {V(BAND+4*ty,4)}, 0" for ti, ty in enumerate(types)]
        def cvt(J): return [f"v_cvt_pk_bf16_f32 v{OP+8*(J&1)+k}, v{BX+16*(J&1)+2*k}, v{BX+16*(J&1)+2*k+1}" for k in range(2*len(types))]
        seen = set()
        def main(J):
            L = []
            for pi in range(npair):
                for di in range(nd):
                    i = J + d0 + di
                    if i > 7: continue
                    acc = DA + 4*(i - d0)
                    c = V(acc, 4) if i in seen else "0"
                    seen.add(i)
                    L.append(f"v_mfma_f32_16x16x32_bf16 {V(acc,4)}, {V(OP+8*(J&1)+4*pi,4)}, {V(TP+4*(di*npair+pi),4)}, {c}")
            return L
        later = [x for di in range(nd) for x in rdT(di)] + [x for J in range(3, nJ) for x in rdW(J)]
        for J in range(3):
            for x in rdW(J): au(x)
        li = 0
        def emit(ms, fill, nread=2):
            nonlocal li
            fi = 0
            for x in ms:
                au(x)
                for _ in range(nread):
                    if li < len(later): au(later[li]); li += 1
                for _ in range(2):
                    if fi < len(fill): au(fill[fi]); fi += 1
            for x in fill[fi:]: au(x)
        emit(box(0), [])
        emit(box(1), [])
        for x in cvt(0): au(x)
        for J in range(nJ):
            emit(main(J), cvt(J+1) if J+1 < nJ else [])
            if J + 2 < nJ: emit(box(J+2), [])
            if J >= 1: au(f"ds_write_b128 v4, {V(DA+4*(J-1),4)} offset:{xoff+1024*(J-1)}")
        au(f"ds_write_b128 v4, {V(DA+4*(nJ-1),4)} offset:{xoff+1024*(nJ-1)}")
        assert li == len(later)
    unit([0,1,2,3], 2, 3, 6, 608, 64, 64, 0)
    w7(a, sW, lambda: do_touches(a, opt.get("t5", ""), opt, (226, 227, 228)))
    a(f"s_branch {LN}")
    a.label(L3)
    unit([4,5], 4, 4, 4, 864, 80, 112, 6144)
    a.label(LN)
    a("s_lshr_b32 s56, s56, 4")
    a(f"s_cbranch_scc1 {LU}")
    a(f"s_sub_u32 s57, s{sW}, 5")
    wo_setup(a, 2, 57, sCT, 52, 56)
    a("s_waitcnt lgkmcnt(0)")
    st.stamp(a, "conv")
    a("s_barrier")
    st.stamp(a, "B3")
    if opt.get("b4", 1): a("s_barrier")
    lp = a.newlabel("Ls_wo")
    a("s_mov_b32 s57, 23")
    a.label(lp)
    a(wo_piece(2, 52, 56, 0, 3))
    a(f"s_add_u32 s56, s56, {960*3}")
    a("s_sub_u32 s57, s57, 1")
    a("s_cmp_lg_u32 s57, 0")
    a(f"s_cbranch_scc1 {lp}")
    a("s_setprio 0")
    a("s_mov_b32 s56, 0")
    a.label(LE)
```

```python
import sys
from common import *
from role_g import role_g
from role_s import role_s, role_s_pro, tables_text
from role_p2 import role_p2
diag = len(sys.argv) > 2 and sys.argv[2] == "diag"
opt = eval(sys.argv[3]) if len(sys.argv) > 3 else {}
NAME = "gated_mix__ssm_conv_s4__linear_attn_block__prompt_kernel"
HDR = open("gated_mix__ssm_conv_s4__linear_attn_block__prompt.s.ref").read().split("; Override launch")[0]
if opt.get('rt'): Stamps.op = 's_memrealtime'
a = Asm(); stg = Stamps(diag); sts = Stamps(diag)
stg.skip = set(opt.get("skipg", ["karg", "done"])); sts.skip = set(opt.get("skips", ["karg", "gather", "conv", "slab", "params"]))
stg.start(a)
if diag: sts.names.append("start"); sts.n = 1
a("s_cmp_ge_u32 s2, 256")
a("s_cbranch_scc1 L_end")
load_kernargs(a)
a("v_lshrrev_b32 v1, 6, v0")
a("v_readfirstlane_b32 s60, v1")
a("v_and_b32 v1, 63, v0")
code_prefetch(a, opt.get("pf1", 9), 3)
touch_setup_w(a)
a("s_and_b32 s3, s2, 128")
a("s_xor_b32 s4, s60, 1")
a("s_or_b32 s3, s3, s4")
a("s_cbranch_scc1 L_nt")
a(f"v_add_u32 v38, {64*3840}, v{TW}")
a("s_waitcnt lgkmcnt(0)")
a(f"global_load_dword v255, v{TW}, s[{P_WQKV}:{P_WQKV+1}]")
a(f"global_load_dword v255, v38, s[{P_WQKV}:{P_WQKV+1}]")
a.label("L_nt")
a("s_lshr_b32 s3, s2, 3")
a("s_and_b32 s62, s2, 1")
a("s_lshl_b32 s62, s62, 2")
a("s_and_b32 s4, s3, 3")
a("s_add_u32 s62, s62, s4")
a("s_cmp_lt_u32 s3, 16")
a("s_cbranch_scc1 L_g")
a("s_and_b32 s61, s2, 7")
a("s_lshl_b32 s61, s61, 4")
a("s_and_b32 s4, s3, 15")
a("s_add_u32 s61, s61, s4")
role_s_pro(a, sts, 61, 60, opt)
a("s_branch L_s")
a.label("L_g")
a("s_and_b32 s61, s2, 6")
a("s_lshl_b32 s61, s61, 1")
a("s_lshr_b32 s4, s3, 2")
a("s_add_u32 s61, s61, s4")
role_g(a, stg, 61, 62, 60, 62, opt)
a("s_branch L_p2")
a.label("L_s")
role_s(a, sts, 61, 62, 60, opt)
a.label("L_p2")
assert stg.n == sts.n, (stg.names, sts.names)
n0 = stg.n
stg.stamp(a, "done")
a("s_and_b32 s61, s2, 6")
a("s_lshl_b32 s61, s61, 2")
a("s_lshr_b32 s4, s2, 5")
a("s_add_u32 s61, s61, s4")
role_p2(a, stg, 61, 62, 60, opt)
stg.flush(a, 2, 60)
a.label("L_end")
a("s_endpgm")
txt = HDR
if opt.get("list", diag):
    txt += f"; @launch kernel={NAME} grid=(256,1,1) block=(512,1,1) lds=163840\n"
else:
    txt += "; @launch grid=(256,1,1) block=(512,1,1) lds=163840\n"
txt += '.amdgcn_target "amdgcn-amd-amdhsa--gfx950"\n.text\n' + kernel_text(NAME, a, 256) + tables_text() + "L_code_end:\n"
txt += '.section .rodata,"a"\n' + descriptor(NAME, 256, 100)
if diag:
    txt += "; stampsG: " + ",".join(stg.names) + "|np.arange(128)\n"
    txt += "; stampsS: " + ",".join(sts.names + stg.names[n0:]) + "|np.arange(128,256)\n"
open(sys.argv[1], "w").write(txt)
```

```python
import sys
from common import *
from role_g import role_g
from role_s import role_s, role_s_pro, tables_text
from role_p2 import role_p2
diag = len(sys.argv) > 2 and sys.argv[2] == "diag"
opt = eval(sys.argv[3]) if len(sys.argv) > 3 else {}
NAME = "gated_mix__ssm_conv_s4__linear_attn_block__prompt_kernel"
HDR = open("gated_mix__ssm_conv_s4__linear_attn_block__prompt.s.ref").read().split("; Override launch")[0]
if opt.get('rt'): Stamps.op = 's_memrealtime'
a = Asm(); stg = Stamps(diag); sts = Stamps(diag)
stg.skip = set(opt.get("skipg", ["karg", "done"])); sts.skip = set(opt.get("skips", ["karg", "gather", "conv", "slab", "params"]))
stg.start(a)
if diag: sts.names.append("start"); sts.n = 1
a("s_cmp_ge_u32 s2, 256")
a("s_cbranch_scc1 L_end")
load_kernargs(a)
a("v_lshrrev_b32 v1, 6, v0")
a("v_readfirstlane_b32 s60, v1")
a("v_and_b32 v1, 63, v0")
code_prefetch(a, opt.get("pf1", 9), 3)
touch_setup_w(a)
a("s_and_b32 s3, s2, 128")
a("s_xor_b32 s4, s60, 1")
a("s_or_b32 s3, s3, s4")
a("s_cbranch_scc1 L_nt")
a(f"v_add_u32 v38, {64*3840}, v{TW}")
a("s_waitcnt lgkmcnt(0)")
a(f"global_load_dword v255, v{TW}, s[{P_WQKV}:{P_WQKV+1}]")
a(f"global_load_dword v255, v38, s[{P_WQKV}:{P_WQKV+1}]")
a.label("L_nt")
a("s_lshr_b32 s3, s2, 3")
a("s_and_b32 s62, s2, 1")
a("s_lshl_b32 s62, s62, 2")
a("s_and_b32 s4, s3, 3")
a("s_add_u32 s62, s62, s4")
a("s_cmp_lt_u32 s3, 16")
a("s_cbranch_scc1 L_g")
a("s_and_b32 s61, s2, 7")
a("s_lshl_b32 s61, s61, 4")
a("s_and_b32 s4, s3, 15")
a("s_add_u32 s61, s61, s4")
role_s_pro(a, sts, 61, 60, opt)
a("s_branch L_s")
a.label("L_g")
a("s_and_b32 s61, s2, 6")
a("s_lshl_b32 s61, s61, 1")
a("s_lshr_b32 s4, s3, 2")
a("s_add_u32 s61, s61, s4")
role_g(a, stg, 61, 62, 60, 62, opt)
a("s_branch L_p2")
a.label("L_s")
role_s(a, sts, 61, 62, 60, opt)
a.label("L_p2")
assert stg.n == sts.n, (stg.names, sts.names)
n0 = stg.n
stg.stamp(a, "done")
a("s_and_b32 s61, s2, 6")
a("s_lshl_b32 s61, s61, 2")
a("s_lshr_b32 s4, s2, 5")
a("s_add_u32 s61, s61, s4")
role_p2(a, stg, 61, 62, 60, opt)
if opt.get("dbgout"):
    a("s_waitcnt vmcnt(0) lgkmcnt(0)")
    stg.stamp(a, "end")
    a("s_waitcnt lgkmcnt(0)")
    a("s_and_b32 s4, s2, 127"); a("s_xor_b32 s4, s4, 8"); a("s_or_b32 s4, s4, s60"); a("s_cbranch_scc1 L_end")
    a("s_lshr_b32 s4, s2, 7"); a("s_lshl_b32 s4, s4, 4"); a("s_add_u32 s4, s4, 32"); a("v_mov_b32 v2, s4")
    a("s_mov_b64 exec, 1")
    for k in range(4):
        a(f"s_sub_u32 s5, s{70+2*(2*k+1)}, s70"); a(f"s_sub_u32 s6, s{70+2*(2*k+2)}, s70"); a("s_mul_i32 s5, s5, 10000"); a("s_add_u32 s5, s5, s6")
        a("v_mov_b32 v3, s5"); a(f"global_store_dword v2, v3, s[{P_DBG}:{P_DBG+1}] offset:{4*k}")
    a("s_waitcnt vmcnt(0)")
    print(stg.names, sts.names)
else:
    stg.flush(a, 2, 60)
a.label("L_end")
a("s_endpgm")
txt = HDR
if opt.get("list", diag):
    txt += f"; @launch kernel={NAME} grid=(256,1,1) block=(512,1,1) lds=163840\n"
else:
    txt += "; @launch grid=(256,1,1) block=(512,1,1) lds=163840\n"
txt += '.amdgcn_target "amdgcn-amd-amdhsa--gfx950"\n.text\n' + kernel_text(NAME, a, 256) + tables_text() + "L_code_end:\n"
txt += '.section .rodata,"a"\n' + descriptor(NAME, 256, 100)
if diag:
    txt += "; stampsG: " + ",".join(stg.names) + "|np.arange(128)\n"
    txt += "; stampsS: " + ",".join(sts.names + stg.names[n0:]) + "|np.arange(128,256)\n"
open(sys.argv[1], "w").write(txt)
```

```python
from common import *
import stab
TROW = 2064
T_Z = 24 * TROW
DB = 56 * TROW + 1024
KSTR = 2112; KCH = 4 * KSTR
XB = 0
KB = 51200
UB = KB + 5 * KCH
USTR = 4640
SLAB = 143344
UNITS = [4, 512, 6, 1792, 1, 260, 1024, 2, 7, None, 5, 256, 772, 258, 3, 516, 2048, 0, 1536, 768, 1280, 262]
HS, RS, ZW = 33, 69, 767
def unit_row(u):
    k = u >> 1
    return 8*(k >> 2) + 4*(u & 1) + (k & 3)

def tables_text():
    _, addr = stab.cost(UNITS, HS, RS, ZW)
    t = ".p2align 8\nL_tab_band:\n"
    b = stab.band_table().reshape(-1).view("uint32")
    for i in range(0, len(b), 8):
        t += "    .long " + ", ".join(hex(int(x)) for x in b[i:i+8]) + "\n"
    t += "L_tab_src:\n"
    addr = [4*x for x in addr]
    for i in range(0, len(addr), 16):
        t += "    .short " + ", ".join(str(x) for x in addr[i:i+16]) + "\n"
    return t

def cmul(a, t, x, m):
    a(f"v_pk_mul_f32 {V(t,2)}, {V(x,2)}, {V(m,2)} op_sel:[0,0] op_sel_hi:[0,1]")
    a(f"v_pk_fma_f32 {V(t,2)}, {V(x,2)}, {V(m,2)}, {V(t,2)} op_sel:[1,1,0] op_sel_hi:[1,0,1] neg_lo:[0,1,0]")

TO = 39
CNT = {"W": 2, "x": 0, "o": 0}
def do_touches(a, seq, opt, regs=None):
    if opt.get("notouch"): return 0
    w, x, o = regs or (TW, TX, TO)
    n = 0
    for t in seq.split():
        if t == "W":
            a(f"v_add_u32 v{w}, {'s59' if CNT['W'] == 5 else 64*3840}, v{w}")
            a(f"global_load_dword v255, v{w}, s[{P_WQKV}:{P_WQKV+1}]")
        elif t == "x":
            a(f"global_load_dword v255, v{x}, s[{P_U}:{P_U+1}] offset:{(0, 256, 384)[CNT['x']]}")
        elif t == "o":
            a(f"v_min_u32 v{o}, 819196, v{o}")
            a(f"global_load_dword v255, v{o}, s[{P_WO}:{P_WO+1}]"); a(f"v_add_u32 v{o}, 15360, v{o}")
        else:
            a(f"s_waitcnt vmcnt({t})"); continue
        CNT[t] += 1; n += 1
    assert CNT["W"] <= 10 and CNT["x"] <= 3
    return n
def w7(a, sW, fn):
    l = a.newlabel("Ls_w7")
    a(f"s_cmp_lg_u32 s{sW}, 7")
    a(f"s_cbranch_scc1 {l}")
    fn()
    a.label(l)

def slab_issue(a, p0, p1):
    for p in range(p0, p1):
        a(f"s_mov_b32 m0, {SLAB + 1024*p}")
        a(f"s_movk_i32 s9, {10240*(p & 3) + 128*(p >> 2)}")
        a("buffer_load_dwordx4 v18, s[52:55], s9 offen lds")

def role_s_pro(a, st, sJ, sW, opt):
    for r in range(2, 9): a(f"v_mov_b32 v{r}, 0")
    a(f"s_mul_i32 s4, s{sJ}, 1920")
    a(f"s_lshl_b32 s5, s{sW}, 8")
    a("s_add_u32 s4, s4, s5")
    a("v_lshl_add_u32 v42, v1, 1, s4")
    a(f"s_mul_i32 s7, s{sW}, 0xAAAC")
    a("s_lshr_b32 s6, s7, 16")
    a(f"s_mul_i32 s8, s{sJ}, 10")
    a("s_lshl_b32 s9, s6, 1")
    a("s_add_u32 s9, s9, s8")
    a("v_mov_b32 v43, s9")
    a("s_and_b32 s12, s2, 6")
    a("s_lshl_b32 s12, s12, 3")
    a("s_bfe_u32 s13, s2, 0x40003")
    a("s_add_u32 s12, s12, s13")
    a("s_lshl_b32 s12, s12, 6")
    a("s_and_b32 s13, s2, 1")
    a("s_add_u32 s12, s12, s13")
    a("s_mul_i32 s12, s12, 640")
    a("v_lshrrev_b32 v18, 3, v1")
    a("v_mul_u32_u24 v18, 1152, v18")
    a("v_lshl_add_u32 v18, v1, 4, v18")
    a("v_add_u32 v18, s12, v18")
    a("s_waitcnt lgkmcnt(0)")
    st.stamp(a, "karg")
    lz = a.newlabel("Ls_nz")
    a(f"s_and_b32 s14, s{sJ}, 15")
    a(f"s_xor_b32 s9, s{sW}, 7")
    a("s_or_b32 s14, s14, s9")
    a(f"s_cbranch_scc1 {lz}")
    a(f"s_lshl_b32 s9, s{sJ}, 7")
    a(f"s_add_u32 s9, s9, {WS_CNT}")
    a("v_lshl_add_u32 v20, v1, 8, s9")
    a("s_mov_b64 exec, 0xff")
    a(f"global_store_dword v20, v2, s[{P_WS}:{P_WS+1}] sc1")
    a("s_mov_b64 exec, -1")
    a(f"s_mul_i32 s9, s{sJ}, 420")
    a("s_add_u32 s9, s9, 2880")
    a("v_lshl_add_u32 v20, v1, 4, s9")
    a("s_mov_b32 exec_hi, 0x0fffffff")
    for i in range(7):
        a(f"global_store_dwordx4 v20, v[2:5], s[{P_WS}:{P_WS+1}] offset:{960*i-2880} sc1")
    a("s_mov_b32 exec_hi, -1")
    a.label(lz)
    ploads(a, 2, 42, 43)
    srd(a, 52, P_U, 2621440)
    def slab_loop():
        a("s_setprio 2")
        lp = a.newlabel("Ls_sl")
        a(f"s_mov_b32 s12, {SLAB}")
        a("s_mov_b32 s13, 0")
        a.label(lp)
        for p in range(4):
            a(f"s_add_u32 m0, s12, {1024*p}")
            a(f"s_add_u32 s9, s13, {10240*p}")
            a("buffer_load_dwordx4 v18, s[52:55], s9 offen lds")
        a("s_add_u32 s12, s12, 4096")
        a("s_add_u32 s13, s13, 128")
        a("s_cmp_lg_u32 s13, 640")
        a(f"s_cbranch_scc1 {lp}")
    w7(a, sW, slab_loop)

def ploads(a, base, va, vld):
    PB, PC, PARE, PAIM, PLDT = 2, 4, 6, 7, 8
    a(f"global_load_short_d16_hi v{base+PLDT-2}, v{vld}, s[{P_LDT}:{P_LDT+1}]")
    for reg, p in ((PARE, P_ARE), (PAIM, P_AIM), (PB, P_BRE), (PB+1, P_BIM), (PC, P_CRE), (PC+1, P_CIM)):
        a(f"global_load_short_d16_hi v{base+reg-2}, v{va}, s[{p}:{p+1}]")

def role_s(a, st, sJ, sCT, sW, opt={}):
    vT, vL = 0, 1
    PB, PC, PARE, PAIM, PLDT = 2, 4, 6, 7, 8
    EA = 34
    vTR, vFL = 40, 41
    ACC = 48
    BAND = 200
    u0 = UNITS.index(0)
    lpc = a.newlabel("Ls_pc")
    a("s_getpc_b64 s[64:65]")
    a.label(lpc)
    touches = lambda seq: do_touches(a, seq, opt)
    a(f"s_lshr_b32 s49, s{sJ}, 4")
    def tabloads():
        a(f"v_lshlrev_b32 v46, 2, v{vT}")
        a(f"v_add_u32 v46, L_tab_src-{lpc}, v46")
        a(f"global_load_dwordx2 {V(EA,2)}, v46, s[64:65]")
    def bandloads():
        a(f"v_lshlrev_b32 v46, 4, v{vL}")
        a(f"v_add_u32 v46, L_tab_band-{lpc}+2048, v46")
        for t in range(6):
            a(f"global_load_dwordx4 {V(BAND+4*t,4)}, v46, s[64:65] offset:{1024*t-2048}")
    L7 = a.newlabel("Ls_slab"); LC = a.newlabel("Ls_common")
    touch_setup_x(a)
    a(f"v_add_u32 v{TW}, {64*3840}, v{TW}")
    for r in list(range(10, 18)) + list(range(ACC, ACC+16)): a(f"v_mov_b32 v{r}, 0")
    a("s_add_u32 s7, s7, 0x5556")
    a("s_lshr_b32 s7, s7, 16")
    a("s_min_u32 s7, s7, 4")
    a("s_lshl_b32 s9, s7, 1")
    a("s_add_u32 s9, s9, s8")
    a("v_mov_b32 v44, s9")
    a("v_add_u32 v42, 128, v42")
    a(f"s_lshr_b32 s10, 0x92, s{sW}")
    a("s_and_b32 s10, s10, 1")
    a("s_mul_i32 s13, s48, 51200")
    a("s_add_u32 s13, s13, s50")
    a(f"v_add_u32 v{TO}, s13, v66")
    a("s_lshl_b32 s9, s50, 1")
    a("s_sub_u32 s9, 640, s9")
    a(f"v_add_u32 v{TX}, s9, v{TX}")
    a("s_mul_i32 s59, s50, 3840")
    a(f"s_sub_u32 s59, {64*3840}, s59")
    a(f"v_mov_b32 v46, 0")
    a(f"v_mov_b32 v47, {LCNT}")
    a("ds_write_b32 v47, v46")
    a(f"v_and_b32 v46, 31, v{vL}")
    a(f"v_lshrrev_b32 v47, 5, v{vL}")
    a(f"v_mad_u32_u24 v9, v47, {HS}, v46")
    a(f"v_mul_u32_u24 v46, {TROW}, v46")
    a(f"v_lshl_add_u32 v46, v47, 4, v46")
    a(f"v_add_u32 v{vTR}, s5, v46")
    a(f"s_mul_i32 s9, s{sJ}, 80")
    a(f"s_add_u32 s9, s9, {WS_UT}")
    for k in range(3):
        a(f"v_add_u32 v64, {512*k}, v{vT}")
        a("v_min_u32 v64, 1279, v64")
        a("v_mul_u32_u24 v65, 13108, v64")
        a("v_lshrrev_b32 v65, 16, v65")
        a("v_mul_u32_u24 v67, 10160, v65")
        a("v_lshl_add_u32 v67, v64, 4, v67")
        a(f"v_add_u32 v{24+k}, s9, v67")
        a("v_mul_u32_u24 v67, 5, v65")
        a("v_sub_u32 v64, v64, v67")
        a(f"v_mul_u32_u24 v64, {USTR}, v64")
        a("v_lshl_add_u32 v64, v65, 4, v64")
        a(f"v_add_u32 v{27+k}, {UB+480}, v64")
    a(f"v_and_b32 v30, 7, v{vL}")
    a("v_lshlrev_b32 v31, 11, v30")
    a(f"v_add_u32 v31, {WS_CNT+1792}, v31")
    a("v_lshlrev_b32 v30, 2, v30")
    a("s_mov_b32 s56, 0")
    a(f"s_add_u32 s57, s5, {T_Z}")
    a(f"v_lshrrev_b32 v64, 4, v{vL}")
    a(f"v_bfe_u32 v65, v{vL}, 2, 2")
    a("v_lshl_add_u32 v65, v64, 3, v65")
    a(f"v_and_b32 v67, 3, v{vL}")
    a("v_lshlrev_b32 v67, 3, v67")
    a("v_lshl_add_u32 v65, v65, 7, v67")
    a(f"v_add_u32 v22, {SLAB}, v65")
    a("v_mul_u32_u24 v64, 10240, v64")
    a(f"v_and_b32 v67, 15, v{vL}")
    a("v_lshl_add_u32 v64, v67, 4, v64")
    a("s_lshl_b32 s9, s50, 3")
    a("s_add_u32 s9, s9, s51")
    a(f"s_add_u32 s9, s9, {WS_UT+2048}")
    a("v_add_u32 v19, s9, v64")
    P1 = opt.get("p1", "early")
    def p1loads():
        ploads(a, 10, 42, 44)
        a(f"global_load_short_d16_hi v17, v43, s[{P_DSK}:{P_DSK+1}]")
    a("s_mov_b32 m0, s57")
    a("v_mov_b32 v46, 0x3f80")
    a("ds_write_addtid_b32 v46")
    a(f"s_cmp_eq_u32 s{sW}, 7")
    a(f"s_cbranch_scc1 {L7}")
    if P1 == "early":
        p1loads(); a("s_waitcnt vmcnt(8)")
    else:
        a("s_waitcnt vmcnt(0)")
        if P1 == "start": p1loads()
    a.label(L7)
    a("s_waitcnt vmcnt(20)")
    st.stamp(a, "params")
    Z1, Z8, Z256, DT, WW = 128, 130, 132, 134, 136
    T0 = 140
    def setup(o):
        B, C, AR, AI, LD_ = PB+o, PC+o, PARE+o, PAIM+o, PLDT+o
        sq = lambda t, x: [f"v_mul_f32 v{t}, v{x}, v{x}", f"v_mul_f32 v{t+1}, v{x}, v{x+1}", f"v_fma_f32 v{t}, -v{x+1}, v{x+1}, v{t}", f"v_add_f32 v{t+1}, v{t+1}, v{t+1}"]
        return [f"v_mul_f32 v{DT}, {LOG2E}, v{LD_}", f"v_exp_f32 v{DT}, v{DT}",
            f"v_mul_f32 v{T0}, v{C}, v{B}", f"v_mul_f32 v{T0+1}, v{C}, v{B+1}",
            f"v_cvt_pk_bf16_f32 v{DT}, v{DT}, v{DT}",
            f"v_fma_f32 v{T0}, -v{C+1}, v{B+1}, v{T0}", f"v_and_b32 v{DT}, 0xffff0000, v{DT}", f"v_fmac_f32 v{T0+1}, v{C+1}, v{B}",
            f"v_mul_f32 v{AR}, v{DT}, v{AR}", f"v_mul_f32 v{AI}, v{DT}, v{AI}",
            f"v_mul_f32 v{WW}, v{DT}, v{T0}", f"v_mul_f32 v{WW+1}, v{DT}, v{T0+1}",
            f"v_mul_f32 v{AR}, {LOG2E}, v{AR}", f"v_mul_f32 v{AI}, {INV2PI}, v{AI}",
            f"v_exp_f32 v{T0}, v{AR}", f"v_rndne_f32 v{T0+2}, v{AI}", f"v_sub_f32 v{AI}, v{AI}, v{T0+2}",
            f"v_cos_f32 v{Z1}, v{AI}", f"v_sin_f32 v{Z1+1}, v{AI}",
            f"v_mul_f32 v{AR}, 0x43800000, v{AR}", f"v_mul_f32 v{AI}, 0x43800000, v{AI}",
            f"v_mul_f32 v{Z1}, v{Z1}, v{T0}", f"v_mul_f32 v{Z1+1}, v{Z1+1}, v{T0}",
            f"v_exp_f32 v{T0+2}, v{AR}",
            f"v_cos_f32 v{Z256}, v{AI}", f"v_sin_f32 v{Z256+1}, v{AI}",
            ] + sq(Z8, Z1) + [f"v_mul_f32 v{Z256}, v{Z256}, v{T0+2}", f"v_mul_f32 v{Z256+1}, v{Z256+1}, v{T0+2}"] + sq(T0, Z8) + sq(Z8, T0)
    for x in setup(0): a(x)
    LK = a.newlabel("Ls_kgen")
    a(f"s_cmp_lg_u32 s{sW}, 7")
    a(f"s_cbranch_scc1 {LK}")
    l = a.newlabel("Ls_nf")
    a("s_cmp_lg_u32 s14, 0")
    a(f"s_cbranch_scc1 {l}")
    a("v_mov_b32 v21, 1")
    a("s_lshl_b64 exec, 1, s49")
    a(f"global_store_dword v30, v21, s[{P_DBG}:{P_DBG+1}] sc1")
    a("s_mov_b64 exec, -1")
    a.label(l)
    n = touches(opt.get("tA", "W W"))
    a(f"s_waitcnt vmcnt({n})")
    st.stamp(a, "slab")
    au = Auto(a)
    RG = 64; NR = 12
    def trr(u):
        for h in range(2): au(f"ds_read_b64_tr_b16 {V(RG+4*(u%NR)+2*h,2)}, v22 offset:{512*h+4096*(u>>2)+32*(u&3)}")
    for u in range(6): trr(u)
    for u in range(20):
        if u + 6 < 20: trr(u+6)
        au(f"global_store_dwordx4 v19, {V(RG+4*(u%NR),4)}, s[{P_WS}:{P_WS+1}] offset:{256*u-2048} sc1")
        if u == opt.get("ubar", 19): a("s_barrier")
    a("v_mov_b32 v46, 0")
    a("s_movk_i32 s11, 3072")
    a(f"v_min_u32 v47, 9, v{vL}")
    a(f"v_mul_u32_u24 v47, s11, v47")
    a(f"v_add_u32 v47, {DB+4*ZW}, v47")
    a("ds_write_b32 v47, v46")
    flags_issue(a, 30, 32)
    nB = touches(opt.get("tB", "W W"))
    a("s_mov_b32 s56, 1")
    def pt7():
        flags_wait(a, 30, 32, nB)
        a("v_mov_b32 v21, 1")
        a("s_bitcmp1_b32 s2, 0")
        a("s_cselect_b32 exec_lo, 0xf0, 15")
        a("s_mov_b32 exec_hi, 0")
        a(f"global_atomic_add v31, v21, s[{P_WS}:{P_WS+1}] sc1")
        a("s_mov_b64 exec, -1")
        tabloads(); bandloads()
        touches(opt.get("tC", "x W x W"))
    a.label(LK)
    def kst(n):
        if opt.get("kst") is None: return
        l = a.newlabel("Lks")
        a(f"s_cmp_lg_u32 s56, {opt['kst']}"); a(f"s_cbranch_scc1 {l}"); st.stamp(a, n); a.label(l)
    kst("k0")
    CV = 176; FR = 64
    class Pipe:
        def __init__(s): s.pc = None; s.pw = None; s.n = 0; s.m0 = None; s.extra = []
        def step(s, entry):
            w = s.pw
            if s.pc is not None:
                src, off, neg = s.pc
                r = CV + (s.n % 4); s.n += 1
                a(f"v_cvt_pk_bf16_f32 v{r}, v{src}, {'-' if neg else ''}v{src+1}")
                s.pw = (r, off, neg)
            else: s.pw = None
            if w:
                if s.m0 != w[2]:
                    a(f"s_mov_b32 m0, s{5 if w[2] else 57}"); s.m0 = w[2]
                a(f"ds_write_addtid_b32 v{w[0]} offset:{w[1]}")
                if s.extra: a(s.extra.pop(0))
            s.pc = entry
        def drain(s):
            s.step(None); s.step(None)
    p = Pipe()
    uo = lambda pp: unit_row(UNITS.index(pp)) * TROW
    Wreg = {0: WW}
    p.step((WW, uo(0), True))
    for k in range(1, 8):
        Wreg[k] = 144 + 2*k
        cmul(a, Wreg[k], Wreg[k-1], Z1); p.step((Wreg[k], uo(k), True))
    rot = [160, 162, 164, 166]; ri = 0
    for base, cnt in ((0, 8), (4, 3), (2, 1), (6, 1)):
        src = Wreg[base]
        for e in range(1, cnt+1):
            d = rot[ri % 4]; ri += 1
            cmul(a, d, src, Z256); p.step((d, uo(base + 256*e), True)); src = d
    kst("k2")
    if P1 == "mid":
        l = a.newlabel("Ls_mid")
        a("s_cmp_lg_u32 s56, 0"); a(f"s_cbranch_scc1 {l}"); p1loads(); a.label(l)
    p.step((Z8, TROW, False))
    src = Z8
    rdA = [f"ds_read_b128 {V(FR+8*ks,4)}, v{vTR} offset:{32*ks}" for ks in range(8)]
    rdB = [f"ds_read_b128 {V(FR+8*ks+4,4)}, v{vTR} offset:{T_Z+32*ks}" for ks in range(8)]
    HO = opt.get("hoistA", 1)
    for q in range(2, 32):
        d = rot[ri % 4]; ri += 1
        if HO and q >= 5 and (q - 5) % 3 == 0 and rdA: p.extra.append(rdA.pop(0))
        cmul(a, d, src, Z8); p.step((d, q*TROW, False)); src = d
        if q == opt.get("q7", 14): w7(a, sW, pt7)
    p.drain()
    kst("k3")
    a("s_barrier")
    au = Auto(a)
    if HO: au.q = [set()]*0
    for k in range(8):
        if not HO: au(rdA[k])
        au(rdB[k])
    l = a.newlabel("Ls_r0")
    a("s_cmp_lg_u32 s56, 0")
    a(f"s_cbranch_scc1 {l}")
    a("s_waitcnt vmcnt(0)")
    lo, hi = ("exec_hi", "exec_lo") if u0 & 1 else ("exec_lo", "exec_hi")
    a(f"s_xor_b32 {lo}, s10, 1")
    a(f"s_mov_b32 {hi}, 0")
    a(f"v_mov_b32 v{ACC+(u0>>1)}, v17")
    a("s_mov_b64 exec, -1")
    tabloads()
    a(f"s_cmp_lt_u32 s{sW}, 5")
    a(f"s_cbranch_scc1 {l}")
    bandloads()
    a.label(l)
    kst("k3b")
    a("s_mul_i32 s9, s6, 6144")
    a("s_mul_i32 s11, s10, 3072")
    a("s_add_u32 s9, s9, s11")
    a(f"s_add_u32 s9, s9, {DB}")
    a(f"v_lshl_add_u32 v{vFL}, v9, 2, s9")
    su = setup(8); si = 8
    for x in su[:si]: a(x)
    for ks in range(8):
        au(f"v_mfma_f32_32x32x16_bf16 {V(ACC,16)}, {V(FR+8*ks,4)}, {V(FR+8*ks+4,4)}, {V(ACC,16)}")
        for x in su[si:si+4]: a(x)
        si += 4
    for x in su[si:]: a(x)
    kst("k4")
    lnf = a.newlabel("Ls_noflush")
    a("s_or_b32 s9, s10, s56")
    a(f"s_cbranch_scc0 {lnf}")
    for k in range(11):
        a(f"ds_write_b32 v{vFL}, v{ACC+k} offset:{4*RS*k}")
    for k in range(11):
        a(f"v_mov_b32 v{ACC+k}, 0")
    a.label(lnf)
    a("s_mov_b32 s6, s7")
    a("s_xor_b32 s56, s56, 1")
    a(f"s_cbranch_scc1 {LK}")
    st.stamp(a, "kgen")
    def after7():
        touches(opt.get("tE", "W x W"))
        a("s_lshl_b32 s9, s49, 11")
        a(f"s_add_u32 s9, s9, {WS_CNT+1792}")
        a("v_mov_b32 v20, s9")
        poll(a, 20, 21, 64)
        a("s_setprio 0")
    w7(a, sW, after7)
    a("s_waitcnt vmcnt(0)")
    st.stamp(a, "upoll")
    a(f"v_and_b32 v{EA+2}, 0xffff, v{EA+1}")
    a(f"v_lshrrev_b32 v{EA+1}, 16, v{EA}")
    a(f"v_and_b32 v{EA}, 0xffff, v{EA}")
    for k in range(3): a(f"v_add_u32 v{EA+k}, {DB}, v{EA+k}")
    st.stamp(a, "gather")
    a(f"v_mul_u32_u24 v13, 2185, v{vT}")
    a("v_lshrrev_b32 v13, 16, v13")
    a(f"v_mul_u32_u24 v13, {USTR-480}, v13")
    a(f"v_lshl_add_u32 v13, v{vT}, 4, v13")
    for r in range(20, 24): a(f"v_mov_b32 v{r}, 0")
    a(f"v_and_b32 v14, 15, v{vL}")
    a(f"v_lshrrev_b32 v15, 4, v{vL}")
    a("v_and_b32 v16, 3, v14")
    a("v_sub_u32 v16, 3, v16")
    a(f"v_mul_u32_u24 v16, {KSTR}, v16")
    a("v_lshrrev_b32 v17, 2, v14")
    a("v_sub_u32 v17, 3, v17")
    a("v_lshl_add_u32 v16, v17, 3, v16")
    a(f"v_add_u32 v16, {KB}, v16")
    a(f"v_add_u32 v13, {UB}, v13")
    a("v_lshlrev_b32 v17, 5, v14")
    a("v_and_b32 v18, 1, v15")
    a("v_lshl_add_u32 v18, v18, 9, v17")
    a("v_and_b32 v19, 2, v15")
    a("v_lshl_add_u32 v18, v19, 3, v18")
    a("v_lshl_add_u32 v17, v15, 4, v17")
    a(f"v_add_u32 v17, {UB}, v17")
    a("s_waitcnt lgkmcnt(0)")
    a("s_barrier")
    st.stamp(a, "B1")
    for k in range(3):
        a(f"global_load_dwordx4 {V(128+4*k,4)}, v{24+k}, s[{P_WS}:{P_WS+1}] sc1")
    ER = 64
    for c in range(5):
        for k in range(3):
            a(f"ds_read2st64_b32 {V(ER+6*c+2*k,2)}, v{EA+k} offset0:{24*c} offset1:{24*c+12}")
    a(f"v_cmp_gt_u32 vcc, 150, v{vT}")
    a("s_and_saveexec_b64 s[12:13], vcc")
    a(f"ds_write_b128 v13, v[20:23]")
    a("s_mov_b64 exec, s[12:13]")
    a(f"s_add_u32 m0, s5, {KB}")
    a("s_waitcnt lgkmcnt(1)")
    for c in range(5):
        b = ER + 6*c
        for k in range(3):
            a(f"v_add_f32 v{b+2*k}, v{b+2*k}, v{b+2*k+1}")
        a(f"v_cvt_pk_bf16_f32 v{b+1}, v{b}, v{b+2}")
        a(f"v_cvt_pk_bf16_f32 v{b+3}, v{b+2}, v{b+4}")
        o = c*KCH
        a(f"ds_write_addtid_b32 v{b+1} offset:{o}")
        a(f"ds_write_addtid_b32 v{b+3} offset:{o+KSTR}")
        a(f"ds_write_addtid_b32 v{b+1} offset:{o+2*KSTR-4}")
        a(f"ds_write_addtid_b32 v{b+3} offset:{o+3*KSTR-4}")
    for k in range(3):
        a(f"s_waitcnt vmcnt({2-k})")
        a(f"ds_write_b128 v{27+k}, {V(128+4*k,4)}")
    w7(a, sW, lambda: touches(opt.get("tD", "o o o o")))
    LD = a.newlabel("Ls_dil"); LE = a.newlabel("Ls_end")
    a(f"s_cmp_ge_u32 s{sW}, 5")
    a(f"s_cbranch_scc1 {LD}")
    n0 = st.n
    vA, vB, vX = 2, 3, 4
    a(f"s_mul_i32 s9, s{sW}, {KCH}")
    a("v_lshl_add_u32 v2, v15, 4, v16")
    a(f"v_add_u32 v{vA}, s9, v2")
    a(f"s_mul_i32 s9, s{sW}, {USTR}")
    a(f"v_add_u32 v{vB}, s9, v17")
    a(f"s_mul_i32 s9, s{sW}, 10240")
    a(f"s_add_u32 s9, s9, {XB}")
    a(f"v_lshl_add_u32 v{vX}, v{vL}, 4, s9")
    srd(a, 52, P_WS, 2621440, WS_YT)
    a(f"s_mul_i32 s9, s{sJ}, 5")
    a(f"s_add_u32 s9, s9, s{sW}")
    a("s_lshl_b32 s56, s9, 12")
    a("s_waitcnt lgkmcnt(0)")
    a("s_barrier")
    st.stamp(a, "B2")
    CA = 24; AF = 56; BF = 128; NB = 12
    au = Auto(a)
    Areg = lambda x: AF + 4*(x + 7)
    def rdA(x):
        off = 64*(9 - x) if x <= 9 else 1120
        return [f"ds_read_b64 {V(Areg(x),2)}, v{vA} offset:{off}", f"ds_read_b64 {V(Areg(x)+2,2)}, v{vA} offset:{off+8}"]
    rdB = lambda m: f"ds_read_b128 {V(BF+4*(m % NB),4)}, v{vB} offset:{64*m}"
    groups = []
    for m in range(64):
        g = []
        if m < 8:
            g += rdA(-m) + rdA(8-m)
            if m == 7: g += rdA(9) + rdA(10)
        g.append(rdB(m)); groups.append(g)
    seen = set()
    def mf(i, x, m):
        c = V(CA+4*i, 4) if i in seen else "0"
        seen.add(i)
        return f"v_mfma_f32_16x16x32_bf16 {V(CA+4*i,4)}, {V(Areg(x),4)}, {V(BF+4*(m % NB),4)}, {c}"
    def fin_pair(i, em):
        b = CA + 4*i
        for k in range(4): em(f"v_cvt_pk_bf16_f32 v{b+k}, v{b+2*k}, v{b+2*k+1}")
        em(f"v_permlane16_swap_b32 v{b}, v{b+2}")
        em(f"v_permlane16_swap_b32 v{b+1}, v{b+3}")
        em(f"buffer_store_dwordx4 {V(b,4)}, v18, s[52:55], s56 offen offset:{512*i} sc1")
    flat = [x for g in groups for x in g]
    gend = []; n = 0
    for g in groups: n += len(g); gend.append(n)
    ni = 0
    for _ in range(gend[2]): au(flat[ni]); ni += 1
    for m in range(64):
        j, r = m >> 3, m & 7
        ms = [mf(j, -r, m)]
        if j < 7: ms.append(mf(j+1, 8-r, m))
        if r == 7 and j < 6: ms.append(mf(j+2, 9, m))
        if r == 7 and j < 4: ms.append(mf(j+4, 10, m))
        lim = gend[min(63, m + NB - 2)]
        for x in ms:
            au(x)
            for _ in range(3 if m < 8 else 1):
                if ni < lim: au(flat[ni]); ni += 1
        if m == 24: fin_pair(0, au)
    assert ni == len(flat)
    st.stamp(a, "conv")
    a("s_barrier")
    st.stamp(a, "B3")
    au = Auto(a)
    R = 56
    for t in range(10): au(f"ds_read_b128 {V(R+4*t,4)}, v{vX} offset:{1024*t}")
    for i in range(2, 8):
        for t in ([i-2] + ([i+2] if i >= 4 else [])):
            au(f"v_pk_add_f32 {V(CA+4*i,2)}, {V(CA+4*i,2)}, {V(R+4*t,2)}")
            au(f"v_pk_add_f32 {V(CA+4*i+2,2)}, {V(CA+4*i+2,2)}, {V(R+4*t+2,2)}")
        if i & 1: fin_pair(i-1, au)
    a("s_lshl_b32 s57, s49, 11")
    a(f"s_add_u32 s57, s57, {WS_CNT+256}")
    a("s_and_b32 s9, s49, 3")
    a("s_lshl_b32 s9, s9, 3")
    a("s_lshr_b32 s11, s49, 2")
    a("s_add_u32 s9, s9, s11")
    a("s_mov_b32 s56, 4")
    a("s_lshl_b32 s58, 0x55, s9")
    if opt.get("b4", 1) == 1: a("s_barrier")
    a(f"s_branch {LE}")
    a.label(LD)
    st.n = n0; st.names = st.names[:n0]
    a("s_setprio 1")
    for k, r in enumerate((TW, TX, TO)): a(f"v_mov_b32 v{226+k}, v{r}")
    a("v_lshl_add_u32 v16, v15, 3, v16")
    a(f"v_lshlrev_b32 v19, 4, v{vL}")
    a(f"v_add_u32 v19, {XB}, v19")
    a(f"s_cmp_eq_u32 s{sW}, 6")
    a("s_movk_i32 s56, 0x198")
    a("s_cselect_b32 s56, 0x3ba, s56")
    a(f"s_cmp_eq_u32 s{sW}, 7")
    a("s_cselect_b32 s56, 0x425c, s56")
    a(f"s_mul_i32 s57, s{sW}, 12")
    a("s_add_u32 s57, s57, 9")
    wo_setup(a, 5, 57, sCT, 52, 58)
    a("s_waitcnt lgkmcnt(0)")
    a("s_barrier")
    st.stamp(a, "B2")
    w7(a, sW, lambda: do_touches(a, opt.get("t4", ""), opt, (226, 227, 228)))
    LU = a.newlabel("Ls_unit"); L3 = a.newlabel("Ls_u3"); LN = a.newlabel("Ls_un")
    a.label(LU)
    a("s_bitcmp1_b32 s56, 3")
    a("s_cselect_b32 s11, 8, 1")
    a("s_and_b32 s9, s56, 15")
    a("s_sub_u32 s9, s9, s11")
    a(f"s_mul_i32 s12, s9, {KCH}")
    a("v_add_u32 v2, s12, v16")
    a(f"s_mul_i32 s12, s9, {USTR}")
    a("v_add_u32 v3, s12, v17")
    a("s_mul_i32 s12, s9, 10240")
    a("v_add_u32 v4, s12, v19")
    for t in range(4): a(wo_piece(5, 52, 58, t, 1))
    a("s_add_u32 s58, s58, 3840")
    a("s_cmp_eq_u32 s11, 1")
    a(f"s_cbranch_scc1 {L3}")
    TP = 24; WN = 48; BX = 96; OP = 128; DA = 144
    def unit(types, d0, nd, nJ, toff, tlen, tbase, xoff):
        au = Auto(a)
        npair = len(types)//2
        rdW = lambda J: [f"ds_read_b128 {V(WN+8*J+4*k,4)}, v3 offset:{512*J+432+16*k}" for k in range(2)]
        def rdT(di): return [f"ds_read_b64 {V(TP+4*(di*npair+(ti>>1))+2*(ti&1),2)}, v2 offset:{2*(toff+tlen*ti+tbase-16*(d0+di))}" for ti in range(len(types))]
        def box(J): return [f"v_mfma_f32_16x16x32_bf16 {V(BX+16*(J&1)+4*ti,4)}, {V(WN+8*J+(0 if stab.W0[ty] == -24 else 4),4)}, {V(BAND+4*ty,4)}, 0" for ti, ty in enumerate(types)]
        def cvt(J): return [f"v_cvt_pk_bf16_f32 v{OP+8*(J&1)+k}, v{BX+16*(J&1)+2*k}, v{BX+16*(J&1)+2*k+1}" for k in range(2*len(types))]
        seen = set()
        def main(J):
            L = []
            for pi in range(npair):
                for di in range(nd):
                    i = J + d0 + di
                    if i > 7: continue
                    acc = DA + 4*(i - d0)
                    c = V(acc, 4) if i in seen else "0"
                    seen.add(i)
                    L.append(f"v_mfma_f32_16x16x32_bf16 {V(acc,4)}, {V(OP+8*(J&1)+4*pi,4)}, {V(TP+4*(di*npair+pi),4)}, {c}")
            return L
        later = [x for di in range(nd) for x in rdT(di)] + [x for J in range(3, nJ) for x in rdW(J)]
        for J in range(3):
            for x in rdW(J): au(x)
        li = 0
        def emit(ms, fill, nread=2):
            nonlocal li
            fi = 0
            for x in ms:
                au(x)
                for _ in range(nread):
                    if li < len(later): au(later[li]); li += 1
                for _ in range(2):
                    if fi < len(fill): au(fill[fi]); fi += 1
            for x in fill[fi:]: au(x)
        emit(box(0), [])
        emit(box(1), [])
        for x in cvt(0): au(x)
        for J in range(nJ):
            emit(main(J), cvt(J+1) if J+1 < nJ else [])
            if J + 2 < nJ: emit(box(J+2), [])
            if J >= 1: au(f"ds_write_b128 v4, {V(DA+4*(J-1),4)} offset:{xoff+1024*(J-1)}")
        au(f"ds_write_b128 v4, {V(DA+4*(nJ-1),4)} offset:{xoff+1024*(nJ-1)}")
        assert li == len(later)
    unit([0,1,2,3], 2, 3, 6, 608, 64, 64, 0)
    w7(a, sW, lambda: do_touches(a, opt.get("t5", ""), opt, (226, 227, 228)))
    a(f"s_branch {LN}")
    a.label(L3)
    unit([4,5], 4, 4, 4, 864, 80, 112, 6144)
    a.label(LN)
    a("s_lshr_b32 s56, s56, 4")
    a(f"s_cbranch_scc1 {LU}")
    a(f"s_sub_u32 s57, s{sW}, 5")
    wo_setup(a, 2, 57, sCT, 52, 56)
    a("s_waitcnt lgkmcnt(0)")
    st.stamp(a, "conv")
    a("s_barrier")
    st.stamp(a, "B3")
    if opt.get("b4", 1): a("s_barrier")
    lp = a.newlabel("Ls_wo")
    a("s_mov_b32 s57, 23")
    a.label(lp)
    a(wo_piece(2, 52, 56, 0, 3))
    a(f"s_add_u32 s56, s56, {960*3}")
    a("s_sub_u32 s57, s57, 1")
    a("s_cmp_lg_u32 s57, 0")
    a(f"s_cbranch_scc1 {lp}")
    a("s_setprio 0")
    a("s_mov_b32 s56, 0")
    a.label(LE)
```

```python
import sys
from common import *
from role_g import role_g
from role_s import role_s, role_s_pro, tables_text
from role_p2 import role_p2
diag = len(sys.argv) > 2 and sys.argv[2] == "diag"
opt = eval(sys.argv[3]) if len(sys.argv) > 3 else {}
NAME = "gated_mix__ssm_conv_s4__linear_attn_block__prompt_kernel"
HDR = open("gated_mix__ssm_conv_s4__linear_attn_block__prompt.s.ref").read().split("; Override launch")[0]
if opt.get('rt'): Stamps.op = 's_memrealtime'
a = Asm(); stg = Stamps(diag); sts = Stamps(diag)
stg.skip = set(opt.get("skipg", ["karg", "done"])); sts.skip = set(opt.get("skips", ["karg", "gather", "conv", "slab", "params"]))
stg.start(a)
if diag: sts.names.append("start"); sts.n = 1
a("s_cmp_ge_u32 s2, 256")
a("s_cbranch_scc1 L_end")
load_kernargs(a)
a("v_lshrrev_b32 v1, 6, v0")
a("v_readfirstlane_b32 s60, v1")
a("v_and_b32 v1, 63, v0")
code_prefetch(a, opt.get("pf1", 9), 3)
touch_setup_w(a)
a("s_and_b32 s3, s2, 128")
a("s_xor_b32 s4, s60, 1")
a("s_or_b32 s3, s3, s4")
a("s_cbranch_scc1 L_nt")
a(f"v_add_u32 v38, {64*3840}, v{TW}")
a("s_waitcnt lgkmcnt(0)")
a(f"global_load_dword v255, v{TW}, s[{P_WQKV}:{P_WQKV+1}]")
a(f"global_load_dword v255, v38, s[{P_WQKV}:{P_WQKV+1}]")
a.label("L_nt")
a("s_lshr_b32 s3, s2, 3")
a("s_and_b32 s62, s2, 1")
a("s_lshl_b32 s62, s62, 2")
a("s_and_b32 s4, s3, 3")
a("s_add_u32 s62, s62, s4")
a("s_cmp_lt_u32 s3, 16")
a("s_cbranch_scc1 L_g")
a("s_and_b32 s61, s2, 7")
a("s_lshl_b32 s61, s61, 4")
a("s_and_b32 s4, s3, 15")
a("s_add_u32 s61, s61, s4")
role_s_pro(a, sts, 61, 60, opt)
a("s_branch L_s")
a.label("L_g")
a("s_and_b32 s61, s2, 6")
a("s_lshl_b32 s61, s61, 1")
a("s_lshr_b32 s4, s3, 2")
a("s_add_u32 s61, s61, s4")
role_g(a, stg, 61, 62, 60, 62, opt)
a("s_branch L_p2")
a.label("L_s")
role_s(a, sts, 61, 62, 60, opt)
a.label("L_p2")
assert stg.n == sts.n, (stg.names, sts.names)
n0 = stg.n
stg.stamp(a, "done")
a("s_and_b32 s61, s2, 6")
a("s_lshl_b32 s61, s61, 2")
a("s_lshr_b32 s4, s2, 5")
a("s_add_u32 s61, s61, s4")
role_p2(a, stg, 61, 62, 60, opt)
if opt.get("amp"):
    a("s_waitcnt vmcnt(0) lgkmcnt(0)")
    stg.stamp(a, "end")
    a("s_waitcnt lgkmcnt(0)")
    wg, nm = opt["amp"]
    names = stg.names if wg < 128 else sts.names + stg.names[n0:]
    k = names.index(nm); e = len(names) - 1
    a(f"s_xor_b32 s4, s2, {wg}"); a("s_or_b32 s4, s4, s60"); a("s_cbranch_scc1 L_end")
    a(f"s_sub_u32 s5, s{70+2*k}, s70"); a("s_lshl_b32 s5, s5, 2"); a("s_min_u32 s5, s5, 20000")
    a.label("L_amp")
    a("s_memrealtime s[6:7]"); a("s_waitcnt lgkmcnt(0)"); a(f"s_sub_u32 s6, s6, s{70+2*e}"); a("s_cmp_lt_u32 s6, s5"); a("s_cbranch_scc1 L_amp")
elif opt.get("dbgout"):
    a("s_waitcnt vmcnt(0) lgkmcnt(0)")
    stg.stamp(a, "end")
    a("s_waitcnt lgkmcnt(0)")
    a("s_and_b32 s4, s2, 127"); a("s_xor_b32 s4, s4, 8"); a("s_or_b32 s4, s4, s60"); a("s_cbranch_scc1 L_end")
    a("s_lshr_b32 s4, s2, 7"); a("s_lshl_b32 s4, s4, 4"); a("s_add_u32 s4, s4, 32"); a("v_mov_b32 v2, s4")
    a("s_mov_b64 exec, 1")
    for k in range(4):
        a(f"s_sub_u32 s5, s{70+2*(2*k+1)}, s70"); a(f"s_sub_u32 s6, s{70+2*(2*k+2)}, s70"); a("s_mul_i32 s5, s5, 10000"); a("s_add_u32 s5, s5, s6")
        a("v_mov_b32 v3, s5"); a(f"global_store_dword v2, v3, s[{P_DBG}:{P_DBG+1}] offset:{4*k}")
    a("s_waitcnt vmcnt(0)")
    print(stg.names, sts.names)
else:
    stg.flush(a, 2, 60)
a.label("L_end")
a("s_endpgm")
txt = HDR
if opt.get("list", diag):
    txt += f"; @launch kernel={NAME} grid=(256,1,1) block=(512,1,1) lds=163840\n"
else:
    txt += "; @launch grid=(256,1,1) block=(512,1,1) lds=163840\n"
txt += '.amdgcn_target "amdgcn-amd-amdhsa--gfx950"\n.text\n' + kernel_text(NAME, a, 256) + tables_text() + "L_code_end:\n"
txt += '.section .rodata,"a"\n' + descriptor(NAME, 256, 100)
if diag:
    txt += "; stampsG: " + ",".join(stg.names) + "|np.arange(128)\n"
    txt += "; stampsS: " + ",".join(sts.names + stg.names[n0:]) + "|np.arange(128,256)\n"
open(sys.argv[1], "w").write(txt)
```

```python
import re

def V(i, n=1):
    return f"v{i}" if n == 1 else f"v[{i}:{i+n-1}]"
def S(i, n=1):
    return f"s{i}" if n == 1 else f"s[{i}:{i+n-1}]"

class Asm:
    def __init__(self):
        self.lines = []
        self.uid = 0
    def __call__(self, text):
        for ln in text.split("\n"):
            ln = ln.strip()
            if ln:
                self.lines.append(ln)
    def label(self, name):
        self.lines.append(name + ":")
    def newlabel(self, base="L"):
        self.uid += 1
        return f"{base}_{self.uid}"
    def comment(self, t):
        self.lines.append("; " + t)

TRANS = ("v_exp_", "v_log_", "v_rcp_", "v_rsq_", "v_sqrt_", "v_sin_", "v_cos_")
_REG = re.compile(r"^-?\|?(?:abs\()?([vsa])(?:(\d+)|\[(\d+):(\d+)\])\)?\|?$")

def regs_of(tok):
    tok = tok.strip()
    if tok in ("vcc",): return {("s", 106), ("s", 107)}
    if tok == "vcc_lo": return {("s", 106)}
    if tok == "vcc_hi": return {("s", 107)}
    if tok == "exec": return {("s", 126), ("s", 127)}
    if tok == "m0": return {("s", 124)}
    m = _REG.match(tok)
    if not m: return set()
    f = m.group(1)
    if m.group(2) is not None:
        return {(f, int(m.group(2)))}
    return {(f, i) for i in range(int(m.group(3)), int(m.group(4)) + 1)}

def split_ops(s):
    out, depth, cur = [], 0, ""
    for ch in s:
        if ch in "[(": depth += 1
        if ch in "])": depth -= 1
        if ch == "," and depth == 0:
            out.append(cur.strip()); cur = ""
        else:
            cur += ch
    if cur.strip(): out.append(cur.strip())
    return out

class Ins:
    def __init__(self, line):
        self.line = line
        body = line.split(";")[0].strip()
        parts = body.split(None, 1)
        self.op = parts[0]
        ops = split_ops(parts[1]) if len(parts) > 1 else []
        if ops:
            last = ops[-1].split()
            self.mods = " ".join(last[1:])
            ops[-1] = last[0]
        else:
            self.mods = ""
        self.ops = ops
        op = self.op
        self.kind = "other"
        self.w = set(); self.r = set(); self.srcc = set(); self.ab = set(); self.passes = 0
        self.states = 1
        self.storedata = set()
        R = [regs_of(o) for o in ops]
        allr = set().union(*R) if R else set()
        if op == "s_nop":
            self.states = int(ops[0], 0) + 1; self.kind = "salu"
        elif op.startswith("v_mfma"):
            self.kind = "mfma"
            self.passes = 8 if "32x32" in op else 4
            self.w = R[0]; self.ab = R[1] | R[2]; self.srcc = R[3]; self.r = self.ab | self.srcc
        elif op.startswith("v_"):
            self.kind = "valu"
            if op.startswith("v_cmp"):
                self.w = set(R[0]); self.r = set().union(*R[1:])
                if op.startswith("v_cmpx"): self.w |= regs_of("exec")
            elif op.startswith(("v_readfirstlane", "v_readlane")):
                self.w = R[0]; self.r = set().union(*R[1:])
            elif op.startswith(("v_permlane", "v_swap")):
                self.w = R[0] | R[1]; self.r = R[0] | R[1]
            elif op.startswith(("v_add_co", "v_sub_co", "v_addc_co", "v_subb_co", "v_mad_u64", "v_div_scale")):
                self.w = R[0] | R[1]; self.r = set().union(*R[2:])
            else:
                self.w = R[0]; self.r = set().union(*R[1:]) if len(R) > 1 else set()
                if op.startswith(("v_fmac", "v_dot2c", "v_writelane", "v_fma_mix")) or "sdwa" in op or "dpp" in op:
                    self.r = self.r | R[0]
        elif op.startswith("ds_"):
            self.kind = "ds"
            if op.startswith(("ds_read", "ds_bpermute", "ds_permute", "ds_swizzle")) or "_rtn" in op:
                self.w = R[0]; self.r = set().union(*R[1:]) if len(R) > 1 else set()
            else:
                self.r = allr
            if "addtid" in op: self.r = self.r | regs_of("m0")
        elif op.startswith(("buffer_", "global_", "flat_")):
            self.kind = "vmem"
            lds = " lds" in (" " + self.mods) or "load_lds" in op
            if "load" in op and not lds:
                self.w = R[0]; self.r = set().union(*R[1:])
            elif lds:
                self.r = allr | regs_of("m0")
            else:
                self.r = allr
                if "atomic" in op and "sc0" in self.mods:
                    self.w = R[0]
                if "store" in op and op.endswith(("x3", "x4")):
                    self.storedata = R[0] if op.startswith("buffer_") else R[1]
        elif op.startswith("s_"):
            self.kind = "salu"
            if op.startswith(("s_cmp", "s_cbranch", "s_branch", "s_waitcnt", "s_barrier", "s_endpgm", "s_sleep", "s_setprio", "s_bitcmp")):
                self.r = allr
            else:
                self.w = set(R[0]) if R else set(); self.r = set().union(*R[1:]) if len(R) > 1 else set()
                if "saveexec" in op: self.w |= regs_of("exec")
        self.trans = op.startswith(TRANS)
        self.dpp = "dpp" in op or "row_" in self.mods or "quad_perm" in self.mods or "wave_" in self.mods

def isv(rs): return {r for r in rs if r[0] in "va"}
def iss(rs): return {r for r in rs if r[0] == "s"}

def required(p, c):
    n = 0
    if p.kind == "valu":
        vw, sw = isv(p.w), iss(p.w)
        if c.kind == "mfma" and vw & c.r: n = max(n, 2)
        if c.kind == "mfma" and sw & regs_of("exec"): n = max(n, 4)
        if c.kind == "valu":
            if p.trans and not c.trans and vw & (c.r): n = max(n, 1)
            if p.trans and c.trans and vw & c.r: n = max(n, 1)
            if c.op.startswith(("v_readfirstlane", "v_readlane")) and vw & c.r: n = max(n, 1)
            if c.op.startswith("v_permlane") and vw & c.r: n = max(n, 2)
            if c.dpp and vw & c.r: n = max(n, 2)
            if sw & c.r: n = max(n, 2)
            if c.op.startswith(("v_readlane", "v_writelane")) and sw & c.r: n = max(n, 4)
            if sw & regs_of("exec") and (c.dpp or c.op.startswith(("v_read", "v_writelane", "v_permlane"))): n = max(n, 5)
            if ("sdwa" in p.op or "mix" in p.op) and vw & (c.r | c.w): n = max(n, 1)
        if p.trans and c.kind in ("ds", "vmem") and vw & c.r: n = max(n, 1)
        if c.kind == "vmem" and sw & c.r: n = max(n, 5)
        if c.kind == "salu" and sw & c.r: n = max(n, 1)
    if p.kind == "salu":
        if ("s", 124) in p.w and c.kind in ("ds", "vmem") and ("s", 124) in c.r: n = max(n, 1)
    if p.kind == "vmem" and p.storedata & c.w:
        n = max(n, 2)
    if p.kind == "mfma":
        P = p.passes
        if c.kind == "mfma":
            if p.w & c.srcc:
                if not (p.w == c.srcc and p.passes == c.passes): n = max(n, P + 2)
            if p.w & c.ab: n = max(n, P + 4)
            if p.w & c.w and not (p.w == c.w and p.passes == c.passes): n = max(n, P + 2)
        elif c.kind in ("valu", "ds", "vmem"):
            if p.w & (c.r | c.w): n = max(n, P + 4)
            if c.kind == "valu" and p.srcc & c.w: n = max(n, P - 1)
    return n

def fix_hazards(lines):
    W = 14
    snaps = {}
    out = None
    for it in range(6):
        out = []
        state = []
        newsnaps = {}
        dead = False
        for ln in lines:
            s = ln.strip()
            if not s or s.startswith((";", ".", "//")) and not s.endswith(":"):
                out.append(ln); continue
            if s.endswith(":"):
                lab = s[:-1]
                if dead: state = []
                dead = False
                state = state + list(newsnaps.get(lab, [])) + list(snaps.get(lab, []))
                out.append(ln); continue
            c = Ins(s)
            need = 0
            for p, d in state:
                need = max(need, required(p, c) - d)
            if need > 0:
                out.append(f"s_nop {need-1}")
                state = [(p, d + need) for p, d in state]
            out.append(ln)
            state = [(p, d + c.states) for p, d in state if d + c.states < W]
            state.append((c, 0))
            if c.op.startswith(("s_cbranch", "s_branch")):
                newsnaps.setdefault(c.ops[0], []).extend(state)
                if c.op == "s_branch": dead = True
            if c.op == "s_endpgm": dead = True
        snaps = newsnaps
    return out

def kernel_text(name, asm, vgpr, sgpr=96, accum=None, align=None):
    L = fix_hazards(asm.lines)
    if align:
        L, stats = align8(L, *align); print("align8: widened, nops, left:", stats)
    body = "\n".join(("" if l.endswith(":") else "    ") + l for l in L)
    return f".globl {name}\n.p2align 8\n.type {name},@function\n{name}:\n{body}\n"

def descriptor(name, vgpr, sgpr=96, accum=None):
    if accum is None: accum = min(256, (vgpr + 3)//4*4)
    return f""".p2align 6
.amdhsa_kernel {name}
  .amdhsa_next_free_vgpr {vgpr}
  .amdhsa_next_free_sgpr {sgpr}
  .amdhsa_accum_offset {accum}
  .amdhsa_group_segment_fixed_size 0
  .amdhsa_kernarg_size 128
  .amdhsa_user_sgpr_count 2
  .amdhsa_user_sgpr_kernarg_segment_ptr 1
  .amdhsa_system_sgpr_workgroup_id_x 1
.end_amdhsa_kernel
"""

class Auto:
    def __init__(self, a):
        self.a = a; self.q = []
    def __call__(self, line):
        for ln in line.split("\n"):
            ln = ln.strip()
            if not ln: continue
            c = Ins(ln)
            use = c.r | (c.w if c.kind != "ds" else c.w)
            last = -1
            for i, d in enumerate(self.q):
                if d & use: last = i
            if last >= 0:
                n = len(self.q) - 1 - last
                n = min(n, 15)
                self.a(f"s_waitcnt lgkmcnt({n})")
                self.q = self.q[len(self.q)-n:] if n else []
            self.a(ln)
            if c.kind == "ds": self.q.append(set(c.w))
    def drain(self):
        if self.q: self.a("s_waitcnt lgkmcnt(0)"); self.q = []

import subprocess, os, tempfile
def inst_sizes(lines):
    src = '.amdgcn_target "amdgcn-amd-amdhsa--gfx950"\n.text\n' + "\n".join(lines) + "\nL_code_end:\nL_tab_src:\nL_tab_band:\nL_tab_kv:\n"
    d = tempfile.mkdtemp()
    open(d + "/a.s", "w").write(src)
    r = subprocess.run(["clang", "-x", "assembler", "-target", "amdgcn-amd-amdhsa", "-mcpu=gfx950", "-c", d + "/a.s", "-o", d + "/a.o"], capture_output=True, text=True)
    assert r.returncode == 0, r.stderr[:2000]
    out = subprocess.run(["llvm-objdump", "-d", "--mcpu=gfx950", d + "/a.o"], capture_output=True, text=True).stdout
    sz = [4*len(m.group(1).split()) for m in re.finditer(r"// [0-9A-F]+: ([0-9A-F ]+)", out)]
    res = []; k = 0
    for l in lines:
        s = l.strip()
        if not s or s.endswith(":") or s.startswith((";", ".")): res.append(None)
        else: res.append(sz[k]); k += 1
    assert k == len(sz), (k, len(sz))
    return res
NOWIDE = ("v_readfirstlane", "v_permlane", "v_swap", "v_fmaak", "v_fmamk", "v_dot2c", "v_nop")
def align8(lines, minrun=2, nopmin=5):
    lines = list(lines); sz = inst_sizes(lines)
    out = []; off = 0; cand = None
    n = len(lines); stats = [0, 0, 0]
    for i, l in enumerate(lines):
        s = sz[i]
        if s is None: out.append(l); continue
        if s == 8 and off % 8 == 4:
            run = 0; valu = 0; j = i
            while j < n and sz[j] in (8, None):
                if sz[j]:
                    run += 1; valu += lines[j].startswith("v_") and not lines[j].startswith("v_mfma")
                j += 1
            if run >= minrun and cand is not None:
                op, rest = out[cand].split(None, 1)
                out[cand] = op + "_e64 " + rest; off += 4; stats[0] += 1
            elif run >= nopmin and 2*valu >= run:
                out.append("s_nop 0"); off += 4; stats[1] += 1
            else: stats[2] += run > 1
        out.append(l); off += s
        if s == 4:
            op = l.split()[0]
            if op.startswith("v_") and not op.startswith(NOWIDE) and not op.endswith(("_e32", "_e64", "_dpp", "_sdwa")): cand = len(out) - 1
        else: cand = None
    return out, stats
```

```python
from asmlib import *
P_U, P_ARE, P_AIM, P_BRE, P_BIM, P_CRE, P_CIM, P_LDT = 16, 18, 20, 22, 24, 26, 28, 30
P_DSK, P_BX, P_WQKV, P_WO, P_GATE, P_OUT, P_DBG, P_WS = 32, 34, 36, 38, 40, 42, 44, 46
WS_KV = 0
WS_CNT = 131072
WS_G = 65536
WS_PQ = 1 << 20
WS_YT = 4 << 20
WS_UT = 10 << 20
WS_STAMP = 8 << 20
LOG2E = "0x3fb8aa3b"
INV2PI = "0.15915494"

def load_kernargs(a):
    a("s_load_dwordx16 s[16:31], s[0:1], 0")
    a("s_load_dwordx16 s[32:47], s[0:1], 64")

def srd(a, d, base, nbytes, off=0):
    if off:
        a(f"s_add_u32 s{d}, s{base}, {off}")
        a(f"s_addc_u32 s{d+1}, s{base+1}, 0")
    else:
        a(f"s_mov_b32 s{d}, s{base}")
        a(f"s_mov_b32 s{d+1}, s{base+1}")
    a(f"s_mov_b32 s{d+2}, {nbytes}")
    a(f"s_mov_b32 s{d+3}, 0x20000")

class Stamps:
    op = "s_memtime"
    def __init__(self, on, first=70):
        self.on = on; self.first = first; self.n = 0; self.names = []; self.skip = set()
    def stamp(self, a, name):
        if not self.on or name in self.skip: return
        assert self.n < 13, self.names
        a(f"{Stamps.op} s[{self.first+2*self.n}:{self.first+2*self.n+1}]")
        self.names.append(name); self.n += 1
    def flush(self, a, slot_sreg, wave_sreg, vt=2):
        if not self.on: return
        a("s_waitcnt vmcnt(0) lgkmcnt(0)")
        a(f"{Stamps.op} s[{self.first+2*self.n}:{self.first+2*self.n+1}]")
        a("s_memrealtime s[62:63]")
        a("s_waitcnt lgkmcnt(0)")
        self.names.append("end"); self.n += 1
        a(f"s_lshl_b32 s61, s{slot_sreg}, 3")
        a(f"s_add_u32 s61, s61, s{wave_sreg}")
        a("s_lshl_b32 s61, s61, 6")
        a(f"s_add_u32 s61, s61, {WS_STAMP}")
        a(f"v_mov_b32 v{vt}, s61")
        a("s_mov_b64 exec, 1")
        for i in range(self.n):
            a(f"v_mov_b32 v{vt+1}, s{self.first+2*i}")
            a(f"global_store_dword v{vt}, v{vt+1}, s[{P_WS}:{P_WS+1}] offset:{4*i}")
        a(f"v_mov_b32 v{vt+1}, s68")
        a(f"global_store_dword v{vt}, v{vt+1}, s[{P_WS}:{P_WS+1}] offset:56")
        a(f"v_mov_b32 v{vt+1}, s62")
        a(f"global_store_dword v{vt}, v{vt+1}, s[{P_WS}:{P_WS+1}] offset:60")
        a("s_waitcnt vmcnt(0)")
    def start(self, a):
        if not self.on: return
        a("s_memrealtime s[68:69]")
        self.stamp(a, "start")

def code_prefetch(a, n, wave):
    if not n: return
    l = a.newlabel("Lpf")
    a(f"s_cmp_lg_u32 s60, {wave}")
    a(f"s_cbranch_scc1 {l}")
    a("s_getpc_b64 s[4:5]")
    a.label(l + "_pc")
    a("s_lshr_b32 s6, s2, 3")
    a("s_lshl_b32 s6, s6, 7")
    a("v_lshl_add_u32 v2, v1, 12, s6")
    a(f"v_min_u32 v2, L_code_end-{l}_pc-4, v2")
    a(f"s_mov_b64 exec, {(1 << n) - 1}")
    a("global_load_dword v255, v2, s[4:5]")
    a("s_mov_b64 exec, -1")
    a.label(l)

WOB = 51200
LCNT = 163836
SPIN = 0x8000

def flags_issue(a, vaddr, vdst):
    a(f"global_load_dword v{vdst}, v{vaddr}, s[{P_DBG}:{P_DBG+1}] sc1")
def flags_wait(a, vaddr, vdst, first=0):
    lp = a.newlabel("Lfl"); lo = a.newlabel("Lfo")
    a(f"s_mov_b32 s13, {SPIN}")
    if first:
        a(f"s_waitcnt vmcnt({first})")
        a(f"v_cmp_eq_u32 vcc, 0, v{vdst}")
        a(f"s_cbranch_vccz {lo}")
    a.label(lp)
    a("s_waitcnt vmcnt(0)")
    a(f"v_cmp_eq_u32 vcc, 0, v{vdst}")
    a(f"s_cbranch_vccz {lo}")
    flags_issue(a, vaddr, vdst)
    a("s_sub_u32 s13, s13, 1")
    a("s_cmp_lg_u32 s13, 0")
    a(f"s_cbranch_scc1 {lp}")
    a.label(lo)
def signal(a, s_n, s_off, s_mask, t, st=None):
    l = a.newlabel("Lsg")
    a(f"v_mov_b32 v{t}, {LCNT}")
    a(f"v_mov_b32 v{t+1}, 1")
    a(f"v_lshl_add_u32 v{t+3}, v1, 11, s{s_off}")
    a("s_waitcnt vmcnt(0)")
    if st: st.stamp(a, "drain")
    a(f"s_cmp_eq_u32 s{s_n}, 0")
    a(f"s_cbranch_scc1 {l}")
    a("s_mov_b64 exec, 1")
    a(f"ds_add_rtn_u32 v{t+2}, v{t}, v{t+1}")
    a("s_waitcnt lgkmcnt(0)")
    a(f"v_cmp_eq_u32 vcc, s{s_n}, v{t+2}")
    a(f"s_cbranch_vccz {l}")
    a(f"s_mov_b32 exec_lo, s{s_mask}")
    a(f"global_atomic_add v{t+3}, v{t+1}, s[{P_WS}:{P_WS+1}] sc1")
    a.label(l)
    a("s_mov_b64 exec, -1")
def peek(vaddr, vdst, vzero):
    return f"global_atomic_add v{vdst}, v{vaddr}, v{vzero}, s[{P_WS}:{P_WS+1}] sc0 sc1"
def poll(a, vaddr, vdst, target):
    lp = a.newlabel("Lpoll")
    a(f"s_mov_b32 s13, {SPIN}")
    a(f"v_mov_b32 v{vdst+1}, 0")
    a("s_mov_b64 exec, 1")
    a.label(lp)
    a(peek(vaddr, vdst, vdst+1))
    a("s_sub_u32 s13, s13, 1")
    a("s_cselect_b32 s12, 0, -1")
    a("s_waitcnt vmcnt(0)")
    a(f"v_cmp_ne_u32 vcc, {target}, v{vdst}")
    a("s_and_b32 s12, s12, vcc_lo")
    a(f"s_cbranch_scc1 {lp}")
    a("s_mov_b64 exec, -1")
TW, TX = 37, 38
def touch_setup_w(a):
    a("s_bfe_u32 s48, s2, 0x40003")
    a("v_min_u32 v64, 59, v1")
    a("v_mul_u32_u24 v65, 52, v64")
    a("v_lshrrev_b32 v65, 8, v65")
    a("v_mul_u32_u24 v66, 640, v65")
    a("v_lshl_add_u32 v66, v64, 7, v66")
    a("s_and_b32 s50, s2, 1")
    a(f"s_mul_i32 s12, s50, {5*64*3840+640}")
    a("s_mul_i32 s13, s48, 15360")
    a("s_add_u32 s13, s13, s12")
    a(f"v_add_u32 v{TW}, s13, v66")
def touch_setup_x(a):
    a("s_mul_i32 s50, s50, 640")
    a("v_and_b32 v64, 31, v1")
    a("v_mul_u32_u24 v64, 1280, v64")
    a("v_lshrrev_b32 v65, 5, v1")
    a("v_lshl_add_u32 v64, v65, 7, v64")
    a("s_and_b32 s12, s2, 6")
    a("s_lshl_b32 s12, s12, 3")
    a("s_add_u32 s12, s12, s48")
    a("s_mul_i32 s51, s12, 40960")
    a("s_add_u32 s12, s51, s50")
    a(f"v_add_u32 v{TX}, s12, v64")
def wo_setup(a, vd, s_idx, s_ct, srd_base, s_m0):
    a(f"v_mul_u32_u24 v{vd}, 26, v1")
    a(f"v_lshrrev_b32 v{vd}, 8, v{vd}")
    a(f"v_mul_u32_u24 v{vd}, 1120, v{vd}")
    a(f"v_lshl_add_u32 v{vd}, v1, 4, v{vd}")
    a(f"s_mul_i32 s8, s{s_idx}, 7680")
    a(f"s_mul_i32 s9, s{s_ct}, 160")
    a("s_add_u32 s8, s8, s9")
    a(f"v_add_u32 v{vd}, s8, v{vd}")
    srd(a, srd_base, P_WO, 819200)
    a(f"s_mul_i32 s{s_m0}, s{s_idx}, 960")
    a(f"s_add_u32 s{s_m0}, s{s_m0}, {WOB}")
def wo_piece(vd, srd_base, s_m0, t, n):
    return (f"s_add_u32 m0, s{s_m0}, {960*n*t}\ns_nop 0\nbuffer_load_dwordx4 v{vd}, s[{srd_base}:{srd_base+3}], 0 offen lds\n"
            f"v_add_u32 v{vd}, {7680*n}, v{vd}")
```

```python
from common import *
XSZ = 16384
SEGK = 10240; SEGV = 20480 + 16
STG = XSZ + 30720 + 32
RSTR = 6912
DUMP = 2 * RSTR

def phi_ops(base, n, vL, tmp, pk=True):
    if pk:
        A = [f"v_pk_fma_f32 {V(tmp+i,2)}, {V(base+i,2)}, {V(vL,2)}, {V(vL,2)} op_sel_hi:[1,0,0] neg_lo:[0,0,1] neg_hi:[0,0,1]" for i in range(0, n, 2)]
        C = [f"v_pk_add_f32 {V(tmp+i,2)}, {V(tmp+i,2)}, {V(vL,2)} op_sel:[0,1] op_sel_hi:[1,1]" for i in range(0, n, 2)]
    else:
        A = [f"v_fma_f32 v{tmp+i}, v{base+i}, v{vL}, -v{vL}" for i in range(n)]
        C = [f"v_add_f32 v{tmp+i}, v{tmp+i}, v{vL+1}" for i in range(n)]
    B = [f"v_exp_f32_e64 v{tmp+i}, v{tmp+i} clamp" for i in range(n)] + [f"v_max_f32 v{tmp+i}, v{tmp+i}, v{base+i}" for i in range(n)]
    return A, B, C

def role_g(a, st, sRB, sG, sW, sCT, opt):
    vT, vL = 0, 1
    LC = a.newlabel("Lg_c"); LE = a.newlabel("Lg_end")
    a(f"v_and_b32 v2, 15, v{vL}")
    a(f"v_lshrrev_b32 v3, 4, v{vL}")
    lq = a.newlabel("Lg_ld")
    a(f"s_cmp_ge_u32 s{sW}, 4")
    a(f"s_cbranch_scc1 {lq}")
    a("s_barrier")
    a(f"s_branch {LC}")
    a.label(lq)

    n0 = st.n
    dX, dW = 18, 20
    a(f"s_mul_i32 s4, s{sRB}, {128*1280}")
    a(f"s_and_b32 s5, s{sW}, 3")
    a(f"v_lshrrev_b32 v28, 3, v{vL}")
    a("v_mul_u32_u24 v28, 1280, v28")
    a("s_lshl_b32 s6, s5, 2")
    a("v_add_u32 v29, s6, v3")
    a(f"v_xor_b32 v29, v29, v{vL}")
    a("v_and_b32 v29, 7, v29")
    a("v_lshl_add_u32 v28, v29, 4, v28")
    a("s_mul_i32 s6, s5, 10240")
    a("s_add_u32 s6, s6, s4")
    a(f"v_add_u32 v{dX}, s6, v28")
    a("s_lshl_b32 s14, s5, 10")
    a(f"s_mul_i32 s7, s{sG}, 160")
    a("s_lshl_b32 s6, s5, 6")
    a("s_movk_i32 s8, 3840")
    for t in range(2):
        a(f"v_add_u32 v28, {'s6' if t == 0 else 256}, v{vL}")
        a("v_mul_u32_u24 v29, 6554, v28")
        a("v_lshrrev_b32 v29, 16, v29")
        a("v_mul_u32_u24 v30, 10, v29")
        a("v_sub_u32 v28, v28, v30")
        a("v_lshl_add_u32 v28, v28, 4, s7")
        a("v_lshrrev_b32 v30, 1, v29")
        a("v_xor_b32 v30, v30, v29")
        a("v_and_b32 v30, 4, v30")
        a("v_mul_u32_u24 v30, 3, v30")
        a("v_xor_b32 v29, v29, v30")
        a(f"v_mad_u32_u24 v{dW+t}, v29, s8, v28")
    a("s_lshr_b32 s6, s5, 1")
    a("s_mul_i32 s6, s6, 1280")
    a("s_and_b32 s7, s5, 1")
    a(f"s_mul_i32 s7, s7, {32*3840}")
    a("s_add_u32 s6, s6, s7")
    a(f"v_add_u32 v{dW+1}, s6, v{dW+1}")
    a("s_lshl_b32 s59, s5, 12")
    a("s_mov_b32 s15, s14"); a("s_and_b32 s56, s2, 1"); a(f"s_mul_i32 s57, s56, {5*64*3840}"); a("s_mul_i32 s56, s56, 640")
    a(f"s_add_u32 s58, s14, {3*STG}")
    a("s_waitcnt lgkmcnt(0)")
    st.stamp(a, "karg")
    srd(a, 48, P_U, 2621440)
    srd(a, 52, P_WQKV, 2457600)
    a("s_barrier")
    def dmaX(t):
        return (f"s_add_u32 m0, s15, {4096*t}\ns_add_u32 s9, s56, {t*32*1280}\n"
                f"buffer_load_dwordx4 v{dX}, s[48:51], s9 offen lds")
    def dmaW(t):
        if t < 6:
            return (f"s_add_u32 m0, s15, {XSZ + 5120*t + (16 if t >= 4 else 0)}\ns_add_u32 s9, s57, {1280*(t >> 1) + 32*3840*(t & 1)}\n"
                    f"buffer_load_dwordx4 v{dW}, s[52:55], s9 offen lds")
        x = (f"s_add_u32 s9, s15, s59\ns_add_u32 m0, s9, {XSZ + 4096 + (20480 + 16 if t == 7 else 0)}\ns_add_u32 s9, s57, {2560 if t == 7 else 0}\n"
             f"buffer_load_dwordx4 v{dW+1}, s[52:55], s9 offen lds")
        if t == 7:
            l = a.newlabel("Lg_sk")
            x = f"s_cmp_ge_u32 s5, 2\ns_cbranch_scc1 {l}\n{x}\n{l}:"
        return x
    PCS = lambda: [dmaX(0), dmaW(0), dmaW(1), dmaX(1), dmaW(2), dmaW(3), dmaX(2), dmaW(4), dmaW(5), dmaX(3), dmaW(6), dmaW(7)]
    def nextstage():
        a("s_add_u32 s56, s56, 128"); a(f"s_add_u32 s57, s57, {64*3840}")
        a("s_cmp_eq_u32 s56, 1280"); a("s_cselect_b32 s56, 0, s56"); a("s_cselect_b32 s57, 0, s57")
        a(f"s_add_u32 s15, s15, {STG}"); a("s_cmp_eq_u32 s15, s58"); a("s_cselect_b32 s15, s14, s15")
    H = opt.get("lh", 6)
    for x in PCS(): a(x)
    nextstage()
    for x in PCS()[:H]: a(x)
    AA = 40
    a(f"s_mul_i32 s6, s{sRB}, {opt.get('arot', 7)}")
    a("s_lshr_b32 s6, s6, 2")
    a("s_add_u32 s6, s6, s5")
    a(f"v_lshlrev_b32 v28, 2, v{vL}")
    for i in range(7):
        a("s_cmp_ge_u32 s6, 28"); a("s_cselect_b32 s7, 28, 0"); a("s_sub_u32 s6, s6, s7")
        a(f"v_lshl_add_u32 v{AA+i}, s6, 8, v28")
        a("s_add_u32 s6, s6, 4")
    st.stamp(a, "pre")
    a(f"s_waitcnt vmcnt({H})")
    a("s_barrier")
    st.stamp(a, "B0")
    a("s_mov_b32 s13, 8")
    LL = a.newlabel("Lg_ll")
    a.label(LL)
    for x in PCS()[H:]: a(x)
    nextstage()
    for x in PCS()[:H]: a(x)
    a(f"s_waitcnt vmcnt({H})")
    a("s_barrier")
    a("s_sub_u32 s13, s13, 1")
    a("s_cmp_lg_u32 s13, 0")
    a(f"s_cbranch_scc1 {LL}")
    for x in PCS()[H:]: a(x)
    GX, GW = 128, 148
    a(f"s_lshl_b32 s7, s{sG}, 4")
    a("s_lshl_b32 s8, s5, 2")
    a("s_add_u32 s7, s7, s8")
    a("s_mul_i32 s8, s7, 1280")
    a("s_add_u32 s8, s8, s4")
    a("v_mul_u32_u24 v28, 1280, v3")
    a("v_lshlrev_b32 v29, 4, v2")
    a("v_add3_u32 v28, v28, v29, s8")
    for i in range(5):
        a(f"global_load_dwordx4 {V(GX+4*i,4)}, v28, s[{P_U}:{P_U+1}] offset:{256*i}")
        a(f"global_load_dwordx4 {V(GW+4*i,4)}, v29, s[{P_GATE}:{P_GATE+1}] offset:{256*i}")
    a(f"v_and_b32 v26, 7, v{vL}")
    a("v_lshlrev_b32 v26, 2, v26")
    flags_issue(a, 26, 27)
    wo_setup(a, dX, 5, sCT, 52, 56)
    a("s_mov_b32 s57, 0")
    def woloop(n):
        lp = a.newlabel("Lg_wo")
        a(f"s_add_u32 s13, s57, {30720*n}")
        a.label(lp)
        a("s_mov_b32 m0, s56")
        a("s_add_u32 s56, s56, 3840")
        a(f"buffer_load_dwordx4 v{dX}, s[52:55], s57 offen lds")
        a("s_add_u32 s57, s57, 30720")
        a("s_cmp_lg_u32 s57, s13")
        a(f"s_cbranch_scc1 {lp}")
    W0 = opt.get("wo0", 0); W1 = opt.get("wo1", 11)
    assert W0 <= 11
    if W0: woloop(W0)
    a(f"s_waitcnt vmcnt({11+W0})")
    a("s_barrier")
    woloop(W1 - W0)
    a("s_barrier")
    GP = opt.get("gp", 27)
    if GP > W1: woloop(GP - W1)
    a(f"s_waitcnt vmcnt({GP})")
    a("v_mov_b32 v30, 0"); a("v_mov_b32 v31, 0")
    for i in range(20): a(f"v_dot2_f32_bf16 v{30+(i&1)}, v{GX+i}, v{GW+i}, v{30+(i&1)}")
    a("s_nop 2")
    a("v_add_f32 v30, v30, v31")
    for sh in (1, 2, 4, 8):
        a(f"v_add_f32_dpp v30, v30, v30 row_shr:{sh} row_mask:0xf bank_mask:0xf")
    a(f"v_mul_f32 v30, 0xbfb8aa3b, v30")
    a("v_exp_f32 v30, v30")
    a("v_add_f32 v30, 1.0, v30")
    a("v_rcp_f32 v30, v30")
    a(f"s_lshl_b32 s8, s{sRB}, 7")
    a("s_add_u32 s8, s8, s7")
    a("s_lshl_b32 s8, s8, 2")
    a(f"s_add_u32 s8, s8, {WS_G}")
    a("v_lshl_add_u32 v31, v3, 2, s8")
    flags_wait(a, 26, 27, GP)
    a("s_mov_b32 exec_lo, 0x80008000"); a("s_mov_b32 exec_hi, 0x80008000")
    a(f"global_store_dword v31, v30, s[{P_WS}:{P_WS+1}] sc1")
    a("s_mov_b64 exec, -1")
    if GP < 27: woloop(27 - GP)
    st.stamp(a, "loop")
    a(f"s_mul_i32 s8, s{sG}, 6720")
    a(f"s_add_u32 s52, s{P_WS}, s8")
    a(f"s_addc_u32 s53, s{P_WS+1}, 0")
    a("s_mov_b32 s54, 6720")
    a("s_mov_b32 s55, 0x20000")
    a("s_setprio 3")
    st.stamp(a, "epi")
    a("s_barrier")
    for i in range(7):
        a(f"ds_read2st64_b32 {V(4+2*i,2)}, v{AA+i} offset0:0 offset1:27")
    for i in range(7):
        a(f"s_waitcnt lgkmcnt({6-i})")
        a(f"v_add_f32 v{4+2*i}, v{4+2*i}, v{5+2*i}")
        if i < opt.get("xat", 7): a(f"buffer_atomic_add_f32 v{4+2*i}, v{AA+i}, s[52:55], 0 offen")
    a("s_setprio 0")
    st.stamp(a, "epi2")
    a(f"s_branch {LE}")

    a.label(LC)
    st.n = n0; st.names = st.names[:n0]
    ACC = 36; QA = ACC + 80; F = [156, 204]
    aA = [4, 5, 6, 7]
    aB, aM, aQ4 = 10, 11, 12
    SC = 14
    a(f"s_and_b32 s5, s{sW}, 1")
    a(f"s_lshr_b32 s6, s{sW}, 1")
    a("v_lshrrev_b32 v24, 1, v2")
    a("v_xor_b32 v24, v24, v3")
    a("v_lshlrev_b32 v24, 4, v24")
    a("v_lshl_add_u32 v24, v2, 7, v24")
    a(f"s_lshl_b32 s8, s{sW}, 12")
    a(f"v_add_u32 v{aA[0]}, s8, v24")
    a(f"v_xor_b32 v{aA[1]}, 64, v{aA[0]}")
    a(f"v_xor_b32 v{aA[2]}, 4096, v{aA[0]}")
    a(f"v_xor_b32 v{aA[3]}, 4096, v{aA[1]}")
    a("v_lshrrev_b32 v25, 1, v3")
    a("v_lshlrev_b32 v25, 4, v25")
    a("v_and_b32 v26, 1, v3")
    a("v_lshl_add_u32 v25, v26, 2, v25")
    a("v_lshrrev_b32 v26, 2, v2")
    a("v_add_u32 v25, v25, v26")
    a("v_mul_u32_u24 v25, 160, v25")
    a("v_and_b32 v26, 3, v2")
    a("v_lshl_add_u32 v25, v26, 3, v25")
    a(f"v_add_u32 v25, {XSZ}, v25")
    a(f"v_lshl_add_u32 v{aQ4}, v26, 5, v25")
    a("s_mul_i32 s8, s5, 80")
    a(f"v_add_u32 v{aB}, s8, v25")
    a("v_cmp_lt_u32 vcc, 1, v26")
    a(f"v_mov_b32 v30, 64")
    a(f"v_mov_b32 v31, {SEGV-SEGK-16}")
    a("v_cndmask_b32 v30, v30, v31, vcc")
    a(f"v_add_u32 v{aM}, v{aB}, v30")
    a(f"v_mov_b32 v8, {LOG2E}")
    a("v_mov_b32 v9, 0x358637bd")
    a("v_mov_b32 v31, 0")
    a(f"v_mov_b32 v30, {LCNT}")
    a("ds_write_b32 v30, v31")
    st.stamp(a, "karg")
    a("v_cmp_gt_u32 s[10:11], 8, v2")
    a("v_cndmask_b32 v30, 0, 1.0, s[10:11]")
    for rt in range(4):
        for ct in range(5):
            for j in range(4):
                src = "1.0" if ct < 2 else ("v30" if ct == 2 else "0")
                a(f"v_mov_b32 v{ACC+20*rt+4*ct+j}, {src}")
    for r in range(40): a(f"v_mov_b32 v{QA+r}, 1.0")
    pairs = [(0,2),(0,3),(1,2),(1,3),(1,4),(2,3),(2,4)]
    a(f"s_mul_i32 s8, s6, {RSTR}")
    a("s_mul_i32 s9, s5, 3360")
    a("s_add_u32 s8, s8, s9")
    a(f"v_lshlrev_b32 v31, 2, v{vL}")
    a(f"v_add_u32 v31, {DUMP}, v31")
    T = 160
    for kt in range(3):
        a(f"v_add_u32 v30, {16*kt}, v2")
        a(f"v_mul_u32_u24 v{T+kt}, 13, v30")
        a(f"v_lshrrev_b32 v{T+kt}, 8, v{T+kt}")
        a(f"v_mul_u32_u24 v{T+4+kt}, 1600, v{T+kt}")
        a(f"v_lshl_add_u32 v{T+4+kt}, v30, 2, v{T+4+kt}")
        a(f"v_add_u32 v{T+4+kt}, s8, v{T+4+kt}")
    for vt in range(2, 5):
        a(f"v_lshl_add_u32 v30, v3, 2, {16*vt-20}")
        a(f"v_mul_u32_u24 v{T+8+vt}, 13, v30")
        a(f"v_lshrrev_b32 v{T+8+vt}, 8, v{T+8+vt}")
        a(f"v_mul_u32_u24 v{T+16+vt}, 20, v{T+8+vt}")
        a(f"v_sub_u32 v{T+16+vt}, v30, v{T+16+vt}")
        a(f"v_mul_u32_u24 v{T+16+vt}, 80, v{T+16+vt}")
        a(f"v_add_u32 v{T+8+vt}, -1, v{T+8+vt}")
    for i, (kt, vt) in enumerate(pairs):
        a(f"v_cmp_eq_u32 vcc, v{T+kt}, v{T+8+vt}")
        a(f"v_add_u32 v30, v{T+4+kt}, v{T+16+vt}")
        a(f"v_cndmask_b32 v{SC+i}, v31, v30, vcc")
    for kt in range(3):
        a(f"v_lshl_add_u32 v30, v3, 2, v{T+kt}")
        a("v_cmp_gt_u32 vcc, 2, v30")
        a(f"v_add_u32 v30, 1600, v{T+4+kt}")
        a(f"v_cndmask_b32 v{SC+7+kt}, v31, v30, vcc")
    bo = [(aB, SEGK), (aB, SEGK+32), (aM, SEGK), (aB, SEGV+16), (aB, SEGV+48), (aB, 0), (aB, 40), (aQ4, 32)]
    def reads(f, ks):
        o = ks*32*160
        A = [f"ds_read_b128 {V(f+4*rt,4)}, v{aA[2*(rt>>1)+ks]} offset:{2048*(rt&1)}" for rt in range(4)]
        B = [f"ds_read_b64_tr_b16 {V(f+16+4*ct+2*h,2)}, v{bo[ct][0]} offset:{o+bo[ct][1]+h*1280}" for ct in range(8) for h in range(2)]
        if opt.get("noread"): return []
        return A[:1] + B[:10] + A[1:] + B[10:]
    def kvm_(f): return [f"v_mfma_f32_16x16x32_bf16 {V(ACC+20*rt+4*ct,4)}, {V(f+4*rt,4)}, {V(f+16+4*ct,4)}, {V(ACC+20*rt+4*ct,4)}" for rt in range(4) for ct in range(5)]
    def qm_(f):
        L = []
        for i in range(5):
            pr_, ct = (i >> 1, 5 + (i & 1)) if i < 4 else (0, 7)
            for u in range(2):
                L.append(f"v_mfma_f32_16x16x32_bf16 {V(QA+8*i+4*u,4)}, {V(f+16+4*ct,4)}, {V(f+8*pr_+4*u,4)}, {V(QA+8*i+4*u,4)}")
        return L
    def mf(f): return (kvm_(f) + qm_(f)) if not opt.get("nomfma") else ["s_nop 0"]*30
    def weave(ms, vs, per=1):
        vi = 0
        for m in ms:
            a(m)
            cost = 0
            while vi < len(vs) and cost < per:
                a(vs[vi]); cost += 2 if "v_exp" in vs[vi] else 1; vi += 1
        for x in vs[vi:]: a(x)
    adv = [f"s_add_u32 s12, s12, 1\ns_cmp_eq_u32 s12, 3\ns_cselect_b32 s12, 0, s12\ns_cselect_b32 s14, {-2*STG}, s15"] + [f"v_add_u32 v{r}, s14, v{r}" for r in aA + [aB, aM, aQ4]]
    a("s_mov_b32 s12, 0"); a("s_mov_b32 s13, 9"); a(f"s_mov_b32 s15, {STG}")
    a(f"s_setprio {opt.get('cprio', 1)}")
    st.stamp(a, "pre")
    a("s_waitcnt lgkmcnt(0)")
    a("s_barrier")
    st.stamp(a, "B0")
    for x in reads(F[0], 0): a(x)
    LL = a.newlabel("Lg_cl")
    a.label(LL)
    a("s_waitcnt lgkmcnt(0)")
    weave(mf(F[0]), reads(F[1], 1) + adv)
    a("s_waitcnt lgkmcnt(0)")
    a("s_barrier")
    if opt.get("itst"):
        for k in range(8): a(f"s_mov_b32 s{st.first+2*(st.n+k)}, s{st.first+2*(st.n+k+1)}")
        st.n += 8; st.names += [f"i{k}" for k in range(8)]
        st.stamp(a, "i8")
    weave(mf(F[1]), reads(F[0], 0) + ["s_sub_u32 s13, s13, 1\ns_cmp_lg_u32 s13, 0"])
    a(f"s_cbranch_scc1 {LL}")
    a("s_waitcnt lgkmcnt(0)")
    TM = 24; ONE = 4
    weave(mf(F[0]), reads(F[1], 1) + [f"v_mov_b32 v{ONE+j}, 0x3f803f80" for j in range(4)])
    a("s_waitcnt lgkmcnt(0)")
    a("s_barrier")
    P = 156
    KD = 36
    def tailops(rt):
        b = ACC + 20*rt
        L = [f"v_cndmask_b32 v{TM+8+j}, v{b+8+j}, v{TM+8+j}, s[10:11]" for j in range(4)]
        for ct in range(5):
            s_ = TM + 4*ct if ct < 3 else b + 4*ct
            d = P + 8*ct + 2*rt
            L += [f"v_cvt_pk_bf16_f32 v{d}, v{s_}, v{s_+1}", f"v_cvt_pk_bf16_f32 v{d+1}, v{s_+2}, v{s_+3}"]
        return L
    def kvm(kp):
        L = []
        for i, (kt, vt) in enumerate(pairs):
            c = "0" if kp == 0 else V(KD+4*i, 4)
            L.append(f"v_mfma_f32_16x16x32_bf16 {V(KD+4*i,4)}, {V(P+8*vt+4*kp,4)}, {V(P+8*kt+4*kp,4)}, {c}")
        for kt in range(3):
            c = "0" if kp == 0 else V(KD+28+4*kt, 4)
            L.append(f"v_mfma_f32_16x16x32_bf16 {V(KD+28+4*kt,4)}, {V(ONE,4)}, {V(P+8*kt+4*kp,4)}, {c}")
        return L
    QT = 204
    NQ = opt.get("qf", 2)
    def qaddr():
        srd(a, 48, P_WS, 2621440, WS_PQ)
        a(f"v_lshlrev_b32 v13, 4, v{vL}")
        for x in [f"s_lshl_b32 s6, s{sRB}, 2", f"s_add_u32 s6, s6, s{sW}", "s_xor_b32 s7, s6, 1", "s_mul_i32 s6, s6, 40960", "s_mul_i32 s7, s7, 40960",
                  f"s_mul_i32 s8, s{sG}, 5120", "s_add_u32 s6, s6, s8", "s_add_u32 s7, s7, s8", "s_add_u32 s8, s6, 4096", "s_lshl_b32 s9, s5, 11",
                  "s_add_u32 s6, s6, s9", "s_add_u32 s7, s7, s9"]: a(x)
    def qfin(i, t):
        return ([f"v_cvt_pk_bf16_f32 v{t+k}, v{t+2*k}, v{t+2*k+1}" for k in range(4)] +
                [f"v_permlane16_swap_b32 v{t}, v{t+2}", f"v_permlane16_swap_b32 v{t+1}, v{t+3}",
                 f"buffer_store_dwordx4 {V(t,4)}, v13, s[48:51], s{6+(i>>1)} offen offset:{1024*(i&1)} sc1"])
    if NQ:
        m = (qm_(F[1]) + kvm_(F[1]))
        for x in m[:6]: a(x)
        qaddr()
        T0 = 180
        A, B, C = phi_ops(QA, 8, 8, T0, pk=False)
        A2, B2, C2 = phi_ops(QA+8, 8, 8, T0+8, pk=False)
        weave(m[6:], A + B + C + qfin(0, T0) + (A2 if NQ > 1 else []), 2)
        st.stamp(a, "loop")
        if NQ > 1:
            for x in B2 + phi_ops(QA+8, 8, 8, T0+8)[2] + qfin(1, T0+8): a(x)
        for i in range(2, NQ):
            for L in phi_ops(QA+8*i, 8, 8, QT+8*i) + (qfin(i, QT+8*i),):
                for x in L: a(x)
        for L in phi_ops(ACC, 12, 8, TM) + (tailops(0),):
            for x in L: a(x)
    else:
        m = mf(F[1])
        for x in m[:8]: a(x)
        qaddr()
        A, B, C = phi_ops(ACC, 12, 8, TM, pk=False)
        weave(m[8:], A + B, 2)
        st.stamp(a, "loop")
        for x in phi_ops(ACC, 12, 8, TM)[2] + tailops(0): a(x)
    for L in phi_ops(ACC+20, 12, 8, TM) + (tailops(1),):
        for x in L: a(x)
    A, B, C = phi_ops(ACC+40, 12, 8, TM)
    for x in A: a(x)
    weave(kvm(0), B, 3)
    for x in C + tailops(2): a(x)
    for L in phi_ops(ACC+60, 12, 8, TM) + (tailops(3),):
        for x in L: a(x)
    n = 8*(5 - NQ)
    A, B, C = phi_ops(QA+8*NQ, n, 8, QT+8*NQ)
    for x in A: a(x)
    rest = list(B[:n])
    pend = []
    for i in range(NQ, 5):
        k = i - NQ
        rest += B[n+8*k:n+8*k+8] + pend + C[4*k:4*k+4] + qfin(i, QT+8*i)[:4]
        pend = qfin(i, QT+8*i)[4:]
    rest += pend
    k1 = min(14, n)
    weave(kvm(1), rest[:k1], 2)
    wr = []
    for i in range(7):
        wr.append(f"ds_write2_b32 v{SC+i}, v{KD+4*i}, v{KD+4*i+1} offset0:0 offset1:20\nds_write2_b32 v{SC+i}, v{KD+4*i+2}, v{KD+4*i+3} offset0:40 offset1:60")
    wr.append("\n".join(f"ds_write_b32 v{SC+7+kt}, v{KD+28+4*kt}" for kt in range(3)))
    k2 = k1 + opt.get("nw", 16)
    weave(wr, rest[k1:k2], opt.get("pw", 4))
    st.stamp(a, "epi")
    a("s_waitcnt lgkmcnt(0)")
    a("s_barrier")
    for x in rest[k2:]: a(x)
    a("s_setprio 0")
    st.stamp(a, "epi2")
    a.label(LE)
    a(f"s_and_b32 s57, s{sRB}, 3")
    a("s_lshl_b32 s57, s57, 8")
    a(f"s_add_u32 s57, s57, {WS_CNT}")
    a("s_mov_b32 s58, -1")
    a("s_mov_b32 s56, 7")
```

```python
from common import *
YB = 0; KVB = 12288; RB = 12288
PL = 2176; TS = 16*PL + 16
def role_p2(a, st, sSB, sCT, sW, opt):
    vT, vL = 0, 1
    SP = opt.get("sigpos", 2)
    def sig(k):
        if SP == k:
            signal(a, 56, 57, 58, 116, st); st.stamp(a, "sig")
    PW = opt.get("pw0", 7)
    a("s_and_b32 s7, s2, 31")
    a("s_lshl_b32 s7, s7, 11")
    a(f"s_add_u32 s63, s7, {WS_CNT}")
    a(f"v_mov_b32 v122, {LCNT-4}")
    a(f"v_lshl_add_u32 v121, v{vL}, 8, s63")
    a("v_mov_b32 v123, 0")
    a("v_mov_b32 v255, 0")
    l = a.newlabel("Lp_n1")
    a(f"s_xor_b32 s7, s{sW}, {PW}")
    a("s_or_b32 s7, s7, s56")
    a(f"s_cbranch_scc1 {l}")
    a("s_mov_b64 exec, 31")
    a(peek(121, 255, 123))
    a("s_mov_b64 exec, -1")
    a.label(l)
    A2 = 56
    for r in range(A2, A2+32): a(f"v_mov_b32 v{r}, 0")
    sig(0)
    a(f"s_and_b32 s4, s{sW}, 1")
    a(f"s_lshr_b32 s5, s{sW}, 1")
    a(f"v_lshlrev_b32 v2, 4, v{vT}")
    a(f"s_lshl_b32 s6, s{sSB}, 1")
    a("s_add_u32 s6, s6, s4")
    a("s_mul_i32 s7, s6, 40960")
    a("s_mul_i32 s8, s5, 10240")
    a("s_add_u32 s7, s7, s8")
    a(f"s_and_b32 s14, s{sCT}, {1 if opt.get('par', 0) else 0}")
    a("s_lshl_b32 s15, s14, 1")
    a("s_sub_u32 s15, 1, s15")
    a("s_mul_i32 s8, s14, 5120")
    a("s_add_u32 s7, s7, s8")
    a(f"s_add_u32 s7, s7, {WS_PQ+2048}")
    a(f"v_lshl_add_u32 v3, v{vL}, 4, s7")
    a("s_mul_i32 s8, s15, 5120")
    a("v_add_u32 v4, s8, v3")
    a(f"v_and_b32 v6, 31, v{vL}")
    a(f"v_lshrrev_b32 v7, 5, v{vL}")
    a("s_lshl_b32 s7, s6, 7")
    a(f"s_add_u32 s7, s7, {WS_G}")
    a("v_lshl_add_u32 v8, v6, 2, s7")
    a(f"v_lshrrev_b32 v10, 3, v{vL}")
    a(f"v_lshrrev_b32 v20, 4, v{vL}")
    a(f"s_lshl_b32 s7, s{sW}, 2")
    a("v_add_u32 v11, s7, v20")
    a(f"v_xor_b32 v11, v11, v{vL}")
    a("v_and_b32 v11, 7, v11")
    a("v_lshlrev_b32 v11, 4, v11")
    a("v_lshl_add_u32 v10, v10, 12, v11")
    a(f"s_mul_i32 s7, s{sCT}, {80*4096}")
    a(f"s_lshl_b32 s8, s{sSB}, 7")
    a("s_add_u32 s7, s7, s8")
    a(f"s_add_u32 s7, s7, {WS_YT}")
    a(f"s_lshl_b32 s8, s{sW}, 15")
    a("s_add_u32 s8, s8, s7")
    a("v_add_u32 v5, s8, v10")
    a("v_add_u32 v9, 0x40000, v5")
    srd(a, 48, P_WS, 53760, WS_KV)
    sig(1)
    a("v_lshrrev_b32 v16, 3, v6")
    a(f"v_and_b32 v21, 3, v{vL}")
    a("v_lshl_add_u32 v16, v16, 2, v21")
    a("v_bfe_u32 v17, v6, 2, 1")
    a("v_lshl_add_u32 v16, v16, 1, v17")
    a("v_min_u32 v16, 20, v16")
    a("v_mul_u32_u24 v16, 40, v16")
    a("s_lshl_b32 s9, s5, 1")
    a("s_add_u32 s9, s9, s14")
    a("s_mul_i32 s7, s9, 3360")
    a("v_add_u32 v14, s7, v16")
    a("v_lshl_add_u32 v13, v7, 4, v14")
    a("s_mul_i32 s7, s15, 3360")
    a("v_add_u32 v220, s7, v13")
    a("v_add_u32 v221, s7, v14")
    a(f"v_bfe_u32 v16, v{vL}, 2, 2")
    a("v_lshl_add_u32 v16, v16, 1, v7")
    a("v_mul_u32_u24 v16, 160, v16")
    a("v_lshl_add_u32 v16, v21, 3, v16")
    a("s_mul_i32 s7, s9, 12800")
    a(f"s_add_u32 s7, s7, {WOB}")
    a("v_add_u32 v16, s7, v16")
    a("v_and_b32 v17, 1, v20")
    a("v_lshl_add_u32 v15, v17, 5, v16")
    a("s_movk_i32 s7, 2560")
    a("v_mad_u32_u24 v252, v17, s7, v16")
    a("s_mul_i32 s7, s15, 12800")
    a("v_add_u32 v222, s7, v15")
    a("v_add_u32 v223, s7, v252")
    a("s_sub_u32 s7, s7, 10240")
    a("v_mul_lo_u32 v253, v17, s7")
    a("v_add_u32 v253, v253, v16")
    a("s_cmp_lt_u32 s5, 2")
    a("s_cselect_b64 vcc, -1, 0")
    a("v_mov_b32 v18, s5")
    a("v_cndmask_b32 v17, v17, v18, vcc")
    a("v_lshl_add_u32 v17, v17, 1, v7")
    a("s_lshl_b32 s7, s4, 2")
    a("v_add_u32 v17, s7, v17")
    a(f"v_and_b32 v18, 15, v{vL}")
    a("v_add_u32 v18, 64, v18")
    a("v_cndmask_b32 v18, v18, v6, vcc")
    a("v_bfe_u32 v16, v18, 1, 3")
    a("v_xor_b32 v16, v16, v17")
    a("v_lshlrev_b32 v16, 4, v16")
    a("v_lshl_add_u32 v10, v18, 7, v16")
    sig(2)
    FA = 224
    a(f"v_lshrrev_b32 v17, 3, v{vT}")
    a(f"v_and_b32 v18, 7, v{vT}")
    a("v_mul_u32_u24 v19, 1280, v17")
    a(f"v_lshl_add_u32 v{FA}, v18, 4, v19")
    a(f"s_and_b32 s7, s{sW}, 3")
    a(f"s_mul_i32 s7, s7, {4*PL}")
    a(f"s_lshr_b32 s8, s{sW}, 2")
    a("s_lshl_b32 s8, s8, 8")
    a("s_add_u32 s7, s7, s8")
    a("v_and_b32 v16, 3, v17")
    a(f"v_mul_u32_u24 v19, {PL}, v16")
    a("v_lshl_add_u32 v19, v7, 7, v19")
    a("v_lshrrev_b32 v16, 2, v18")
    a(f"v_mul_u32_u24 v16, {TS}, v16")
    a("v_add3_u32 v19, v19, v16, s7")
    a(f"v_lshl_add_u32 v{FA+1}, v21, 5, v19")
    a(f"v_bfe_u32 v17, v{vL}, 2, 3")
    a("v_mul_u32_u24 v19, 1280, v17")
    a("v_lshl_add_u32 v19, v21, 3, v19")
    a(f"s_mul_i32 s7, s{sW}, 10240")
    a("s_add_u32 s7, s7, 128")
    a(f"v_add_u32 v{FA+2}, s7, v19")
    a("s_and_b32 s7, s5, 1")
    a(f"s_mul_i32 s7, s7, {4*PL}")
    a("s_add_u32 s7, s7, s8")
    a("s_lshl_b32 s8, s4, 7")
    a("s_add_u32 s7, s7, s8")
    a(f"s_add_u32 s7, s7, {2*TS}")
    a("v_and_b32 v16, 3, v17")
    a(f"v_mul_u32_u24 v19, {PL}, v16")
    a("v_lshrrev_b32 v16, 2, v17")
    a("v_lshl_add_u32 v19, v16, 6, v19")
    a("v_lshl_add_u32 v19, v21, 4, v19")
    a(f"v_add_u32 v{FA+3}, s7, v19")
    KA = 104
    a("s_lshr_b32 s7, s2, 3")
    a("s_mul_i32 s8, s7, 37")
    a("s_lshr_b32 s8, s8, 8")
    a("s_mul_i32 s8, s8, 7")
    a("s_sub_u32 s7, s7, s8")
    a("s_lshl_b32 s7, s7, 13")
    for i in range(7):
        a(f"v_add_u32 v{KA+i}, s7, v2")
        a("s_add_u32 s7, s7, 8192")
        a("s_cmp_eq_u32 s7, 57344")
        a("s_cselect_b32 s7, 0, s7")
    sig(3)
    st.stamp(a, "ready")
    a("s_barrier")
    WB = 228; NW = 6
    ops = []
    for m in range(10):
        ops += [("M", m, 0), ("M", m, 1)]
        if m >= 2 and m % 2 == 0: ops.append(("N", m-2))
    ops.append(("N", 8))
    def wrd(k):
        if k >= len(ops): return []
        o = ops[k]
        m = o[1]
        if o[0] == "M": return [f"ds_read_b64_tr_b16 {V(WB+4*(k%NW)+2*h,2)}, v{15 if m < 5 else 222} offset:{(16*(m%5)+8*h)*160+64*o[2]}" for h in range(2)]
        return [f"ds_read_b64_tr_b16 {V(WB+4*(k%NW)+2*h,2)}, v{252 if m < 4 else (253 if m == 4 else 223)} offset:{(16*(m%5)+8*h)*160+128}" for h in range(2)]
    l = a.newlabel("Lp_n1"); le = a.newlabel("Lp_pe")
    a(f"s_cmp_lg_u32 s{sW}, {PW}")
    a(f"s_cbranch_scc1 {l}")
    a("s_mov_b64 exec, 31")
    a("v_mov_b32 v17, v255")
    a(peek(121, 255, 123))
    a("s_mov_b64 exec, -1")
    a.label(l)
    for k in range(NW):
        for x in wrd(k): a(x)
    a("s_waitcnt lgkmcnt(0)")
    lsk = a.newlabel("Lp_np"); lp = a.newlabel("Lp_poll")
    a(f"s_cmp_lg_u32 s{sW}, {PW}")
    a(f"s_cbranch_scc1 {lsk}")
    a(f"s_mov_b32 s13, {SPIN}")
    a("s_mov_b64 exec, 31")
    a("v_cmp_ne_u32 vcc, 32, v17")
    a("s_and_b32 s12, vcc_lo, 15")
    a(f"s_cbranch_scc0 {le}")
    a.label(lp)
    a(peek(121, 254, 123))
    a("s_waitcnt vmcnt(1)")
    a("v_mov_b32 v17, v255")
    a("v_cmp_ne_u32 vcc, 32, v255")
    a("s_and_b32 s12, vcc_lo, 15")
    a(f"s_cbranch_scc0 {le}")
    a(peek(121, 255, 123))
    a("s_sub_u32 s13, s13, 1")
    a("s_cselect_b32 s12, 0, 15")
    a("s_waitcnt vmcnt(1)")
    a("v_mov_b32 v17, v254")
    a("v_cmp_ne_u32 vcc, 32, v254")
    a("s_and_b32 s12, s12, vcc_lo")
    a(f"s_cbranch_scc1 {lp}")
    a.label(le)
    a("s_mov_b64 exec, 16")
    a("ds_write_b32 v122, v17")
    a("s_mov_b64 exec, -1")
    a("s_waitcnt lgkmcnt(0)")
    a.label(lsk)
    a("s_barrier")
    a("ds_read_b32 v114, v122")
    st.stamp(a, "go")
    KL = 176
    a(f"global_load_dword v12, v8, s[{P_WS}:{P_WS+1}] sc1")
    PT = 0
    for i in range(7):
        a(f"buffer_load_dwordx4 {V(KL+4*i,4)}, v{KA+i}, s[48:51], 0 offen sc1")
        if i == 0 and opt.get("p2bar0", 1): a("s_barrier")
    if opt.get("p2bar", 1): a("s_barrier")
    PQ = 16
    order = [4, 0, 1, 2, 3, 9, 5, 6, 7, 8]
    NPRE = opt.get("npre", 4)
    pql = [f"global_load_dwordx4 {V(PQ+4*i,4)}, v{3+i//5}, s[{P_WS}:{P_WS+1}] offset:{1024*(i%5)-2048} sc1" for i in order]
    for x in pql[:NPRE]: a(x)
    NX = NPRE
    if PT > 1: ptouch(114); NX += 1
    for i in range(7): a(f"v_lshrrev_b32 v{KA+i}, 1, v{KA+i}")
    DG = 88; DG1 = 216
    a(f"s_waitcnt vmcnt({7+NX})")
    a("v_cvt_pk_bf16_f32 v11, v12, v12")
    a("v_and_b32 v12, 0xffff0000, v11")
    a("v_sub_f32 v12, 1.0, v12")
    a("v_and_b32 v11, 0xffff, v11")
    a("v_and_b32 v112, 1, v6")
    a("v_lshlrev_b32 v112, 4, v112")
    a("v_lshlrev_b32 v11, v112, v11")
    a("v_lshrrev_b32 v112, 1, v6")
    a("v_lshlrev_b32 v113, 2, v7")
    a("v_sub_u32 v112, v112, v113")
    a("s_and_b32 s7, s5, 1")
    a("s_lshl_b32 s7, s7, 3")
    a("v_subrev_u32 v113, s7, v112")
    for x in range(4):
        a(f"v_cmp_eq_u32 vcc, {x}, v113")
        a(f"v_cmp_eq_u32 s[10:11], {8+x}, v112")
        a(f"v_cndmask_b32 v{DG+x}, 0, v11, vcc")
        a(f"v_cndmask_b32 v{DG1+x}, 0, v11, s[10:11]")
    for i in range(7):
        a(f"s_waitcnt vmcnt({NX+6-i})")
        a(f"v_cvt_pk_bf16_f32 v{KL+4*i}, v{KL+4*i}, v{KL+4*i+1}")
        a(f"v_cvt_pk_bf16_f32 v{KL+4*i+1}, v{KL+4*i+2}, v{KL+4*i+3}")
        a(f"ds_write_b64 v{KA+i}, {V(KL+4*i,2)} offset:{KVB}")
    a("s_waitcnt lgkmcnt(0)")
    a("v_readfirstlane_b32 s14, v114")
    st.stamp(a, "kv")
    a("s_barrier")
    st.stamp(a, "Ba")
    if opt.get("yprio"):
        l = a.newlabel("Lp_pr"); a(f"s_cmp_lt_u32 s{sW}, 4"); a(f"s_cbranch_scc1 {l}"); a("s_setprio 1"); a.label(l)
    A1 = 92
    OD = [104, 120]
    O = 136
    ACC = 176
    au = Auto(a)
    def rdA1(hh): return [f"ds_read_b64 {V(A1+4*(hh%3),2)}, v{13 if hh < 4 else 220} offset:{KVB+840*(hh&3)}", f"ds_read_b64 {V(A1+4*(hh%3)+2,2)}, v{13 if hh < 4 else 220} offset:{KVB+840*(hh&3)+8}"]
    for x in rdA1(0): au(x)
    a("s_mov_b32 exec_hi, 0")
    for hh in (0, 1, 4, 5): au(f"ds_read_b64 {V(A2+4*hh+2*(hh&1),2)}, v{14 if hh < 4 else 221} offset:{KVB+840*(hh&3)+32}")
    a("s_not_b64 exec, exec")
    for hh in (2, 3, 6, 7): au(f"ds_read_b64 {V(A2+4*hh+2*(hh&1),2)}, v{14 if hh < 4 else 221} offset:{KVB+840*(hh&3)+32}")
    a("s_mov_b64 exec, -1")
    for x in rdA1(1) + rdA1(2): au(x)
    def mm(hh):
        q, j = hh >> 2, hh & 3
        d = OD[hh & 1]
        return [f"v_mfma_f32_32x32x16_bf16 {V(d,16)}, {V(A2+4*hh,4)}, {V(PQ+20*q+16,4)}, 0",
                f"v_mfma_f32_32x32x16_bf16 {V(d,16)}, {V(A1+4*(hh%3),4)}, {V(PQ+20*q+4*j,4)}, {V(d,16)}"]
    def fin(hh):
        d = OD[hh & 1]
        L = [f"v_add_f32 v{d+10}, 0x358637bd, v{d+10}", f"v_rcp_f32 v{d+10}, v{d+10}", f"v_mul_f32 v{d+10}, v{d+10}, v12"]
        for r in range(5):
            L += [f"v_mul_f32 v{d+2*r}, v{d+2*r}, v{d+10}", f"v_mul_f32 v{d+2*r+1}, v{d+2*r+1}, v{d+10}"]
        L += [f"v_cvt_pk_bf16_f32 v{O+5*hh+r}, v{d+2*r}, v{d+2*r+1}" for r in range(5)]
        return L
    def wmm(k):
        o = ops[k]; w = V(WB+4*(k % NW), 4)
        if o[0] == "M":
            _, m, t = o
            L = [f"v_mfma_f32_32x32x16_bf16 {V(ACC+16*t,16)}, {V(O+4*m,4)}, {w}, {'0' if m == 0 else V(ACC+16*t,16)}"]
            post = wrd(k+NW)
            if t == 1 and m & 1: post = post + [f"v_permlane16_swap_b32 v{O+4*m-4+i}, v{O+4*m+i}" for i in range(4)]
            return [(L[0], post)]
        m = o[1]
        L = [f"v_mfma_f32_16x16x32_bf16 {V(ACC+32+4*u,4)}, {V(O+4*(m+u),4)}, {w}, {'0' if m == 0 else V(ACC+32+4*u,4)}" for u in range(2)]
        return [(L[0] + "\n" + L[1], wrd(k+NW))]
    vq = list(order[:NPRE]) + (['t'] if PT > 1 else [])
    rest = [(order[k], pql[k]) for k in range(NPRE, 10)]
    YL = 56
    rest += [("y0", f"global_load_dwordx4 {V(YL,4)}, v5, s[{P_WS}:{P_WS+1}] sc1")]
    def vissue(n):
        for _ in range(n):
            if rest:
                t, x = rest.pop(0); vq.append(t)
                if t == "y0":
                    l = a.newlabel("Lp_yr")
                    a("s_cmp_eq_u32 s14, 16"); a(f"s_cbranch_scc1 {l}")
                    a("s_add_u32 s6, s63, 1024")
                    a(f"v_mov_b32 v{YL}, s6")
                    poll(a, YL, YL+1, 16)
                    a.label(l)
                a(x)
    def vwait(tags):
        last = max(vq.index(t) for t in tags)
        if not opt.get("xnowait"): a(f"s_waitcnt vmcnt({len(vq)-1-last})")
    need = lambda hh: [5*(hh >> 2) + 4, 5*(hh >> 2) + (hh & 3)]
    vissue(opt.get("v0", 0))
    vwait(need(0))
    for x in mm(0): au(x)
    carry = []
    if opt.get("lag", 1): carry += rdA1(3)
    else:
        for x in rdA1(3): au(x)
    kdone = 0
    for hh in range(9):
        ms = []
        if opt.get("hst") and hh in (0, 2, 4, 6, 8): st.stamp(a, f"h{hh}")
        vissue(opt.get('vi', [1, 2, 2, 2, 0, 0, 0, 0, 0])[hh])
        if hh + 1 < 8:
            vwait(need(hh+1))
            ms += [(x, []) for x in mm(hh+1)]
            if hh + 4 < 8: ms[-1] = (ms[-1][0], rdA1(hh+4))
        if hh == 4:
            assert not rest
            l = a.newlabel("Lp_y2")
            a(f"s_cmp_ge_u32 s{sW}, 2"); a(f"s_cbranch_scc1 {l}")
            a(f"global_load_dwordx4 {V(YL+4,4)}, v9, s[{P_WS}:{P_WS+1}] sc1")
            a.label(l)
        if hh == opt.get("hy", 6):
            a("s_waitcnt vmcnt(0)")
            au(f"ds_write_b128 v2, {V(YL,4)} offset:{YB}")
            a(f"s_cmp_lt_u32 s{sW}, 2")
            a("s_cselect_b64 exec, -1, 0")
            au(f"ds_write_b128 v2, {V(YL+4,4)} offset:{YB+8192}")
            a("s_mov_b64 exec, -1")
        if hh == opt.get("hb", 7):
            l = a.newlabel("Lp_yb")
            a(f"s_cmp_lt_u32 s{sW}, 4"); a(f"s_cbranch_scc1 {l}")
            k = max(i for i, d in enumerate(au.q) if not d) if any(not d for d in au.q) else None
            if k is not None: a(f"s_waitcnt lgkmcnt({min(15, len(au.q)-1-k)})")
            a("s_barrier")
            if opt.get("ypr", 1): a("s_setprio 2")
            a.label(l)
        mlim = (10*hh)//8
        while kdone < len(ops) and (ops[kdone][0] == "N" or ops[kdone][1] < mlim):
            ms += wmm(kdone); kdone += 1
        fl = fin(hh) if hh < 8 and not opt.get("xnofin") else []
        if opt.get("xnord"): ms = [(m, [x for x in rd if x.startswith("v_")]) for m, rd in ms]
        if opt.get("xnoswap"): ms = [(m, [x for x in rd if not x.startswith("v_")]) for m, rd in ms]
        if opt.get("xno16"): ms = [(m if "16x16" not in m else "s_nop 0", rd) for m, rd in ms]
        if opt.get("lag", 1):
            ms2 = []
            for m, rd in ms:
                if "16x16" in m:
                    pre = [x for x in carry if x.startswith("v_")]
                    if pre: m = "\n".join(pre + [m]); carry[:] = [x for x in carry if not x.startswith("v_")]
                ms2.append((m, list(carry))); carry[:] = rd
            ms = ms2
        if opt.get("burst"):
            late = []
            for m, rd in ms:
                if "16x16" in m:
                    for x in late: au(x)
                    late = []
                au(m)
                for x in rd:
                    if x.startswith("v_"): late.append(x)
                    else: au(x)
            for x in late + fl: au(x)
            continue
        fi = 0
        for i, (m, rd) in enumerate(ms):
            au(m)
            for x in rd: au(x)
            if i >= 1:
                n = -(-len(fl) // max(1, len(ms) - 1))
                for x in fl[fi:fi+n]: au(x)
                fi += n
        for x in fl[fi:]: au(x)
    assert kdone == len(ops)
    for x in carry: au(x)
    au.drain()
    st.stamp(a, "gemm")
    srd(a, 48, P_OUT, 2621440)
    a(f"s_mul_i32 s7, s{sSB}, {64*1280}")
    a(f"s_mul_i32 s8, s{sCT}, 160")
    a("s_add_u32 s7, s7, s8")
    a(f"s_lshl_b32 s9, s{sW}, 8")
    lsk = a.newlabel("Lp_sk"); l2 = a.newlabel("Lp_y16")
    a("s_cmp_ge_u32 s5, 2"); a(f"s_cbranch_scc1 {l2}")
    a("s_barrier")
    for t in range(2): a(f"ds_read_b128 {V(16+4*t,4)}, v10 offset:{YB+4096*t}")
    for t in range(2):
        a(f"s_waitcnt lgkmcnt({1-t})")
        a(f"v_mfma_f32_32x32x16_bf16 {V(ACC+16*t,16)}, {V(DG,4)}, {V(16+4*t,4)}, {V(ACC+16*t,16)}")
    a(f"s_branch {lsk}")
    a.label(l2)
    a("s_cmp_eq_u32 s5, 3"); a(f"s_cbranch_scc1 {lsk}")
    a(f"ds_read_b128 v[16:19], v10 offset:{YB}")
    for i in range(4): a(f"v_permlane16_swap_b32 v{DG+i}, v{DG1+i}")
    a("s_waitcnt lgkmcnt(0)")
    a(f"v_mfma_f32_16x16x32_bf16 {V(ACC+32,4)}, {V(DG,4)}, v[16:19], {V(ACC+32,4)}")
    a(f"v_mfma_f32_16x16x32_bf16 {V(ACC+36,4)}, {V(DG1,4)}, v[16:19], {V(ACC+36,4)}")
    a.label(lsk)
    for t in range(3):
        if t < 2: a(f"s_add_u32 m0, s9, {RB+t*TS}")
        for r in range(16 if t < 2 else 8):
            a(f"ds_write_addtid_b32 v{ACC+16*t+r} offset:{r*PL + (TS if t == 2 else 0)}")
    a("s_waitcnt lgkmcnt(0)")
    a("s_barrier")
    st.stamp(a, "Bd")
    au = Auto(a)
    R = 16; R2 = 48
    for p in range(4):
        for h in range(2):
            au(f"ds_read_b128 {V(R+8*p+4*h,4)}, v{FA+1} offset:{RB+512*p+16*h}")
    a("s_mov_b32 exec_hi, 0")
    for p in range(4): au(f"ds_read_b128 {V(R2+4*p,4)}, v{FA+3} offset:{RB+512*p}")
    a("s_mov_b32 exec_hi, -1")
    for i in range(0, 8, 2): au(f"v_pk_add_f32 {V(R+i,2)}, {V(R+i,2)}, {V(R+8+i,2)}")
    for i in range(0, 8, 2): au(f"v_pk_add_f32 {V(R+16+i,2)}, {V(R+16+i,2)}, {V(R+24+i,2)}")
    for i in range(0, 8, 2): au(f"v_pk_add_f32 {V(R+i,2)}, {V(R+i,2)}, {V(R+16+i,2)}")
    for i in range(4): au(f"v_cvt_pk_bf16_f32 v{R+i}, v{R+2*i}, v{R+2*i+1}")
    au(f"buffer_store_dwordx4 {V(R,4)}, v{FA}, s[48:51], s7 offen {opt.get('of', '')}")
    for i in (0, 2): au(f"v_pk_add_f32 {V(R2+i,2)}, {V(R2+i,2)}, {V(R2+4+i,2)}")
    for i in (0, 2): au(f"v_pk_add_f32 {V(R2+8+i,2)}, {V(R2+8+i,2)}, {V(R2+12+i,2)}")
    for i in (0, 2): au(f"v_pk_add_f32 {V(R2+i,2)}, {V(R2+i,2)}, {V(R2+8+i,2)}")
    for i in range(2): au(f"v_cvt_pk_bf16_f32 v{R2+i}, v{R2+2*i}, v{R2+2*i+1}")
    a("s_mov_b32 exec_hi, 0")
    au(f"buffer_store_dwordx2 {V(R2,2)}, v{FA+2}, s[48:51], s7 offen {opt.get('of', '')}")
    a("s_mov_b64 exec, -1")
```

```python
from common import *
import stab
TROW = 2064
T_Z = 24 * TROW
DB = 56 * TROW + 1024
KSTR = 2112; KCH = 4 * KSTR
XB = 0
KB = 51200
UB = KB + 5 * KCH
USTR = 4640
SLAB = 143344
UNITS = [4, 512, 6, 1792, 1, 260, 1024, 2, 7, None, 5, 256, 772, 258, 3, 516, 2048, 0, 1536, 768, 1280, 262]
HS, RS, ZW = 33, 69, 767
def unit_row(u):
    k = u >> 1
    return 8*(k >> 2) + 4*(u & 1) + (k & 3)

def tables_text():
    _, addr = stab.cost(UNITS, HS, RS, ZW)
    t = ".p2align 8\nL_tab_band:\n"
    b = stab.band_table().reshape(-1).view("uint32")
    for i in range(0, len(b), 8):
        t += "    .long " + ", ".join(hex(int(x)) for x in b[i:i+8]) + "\n"
    t += "L_tab_src:\n"
    addr = [4*x for x in addr]
    for i in range(0, len(addr), 16):
        t += "    .short " + ", ".join(str(x) for x in addr[i:i+16]) + "\n"
    return t

def cmul(a, t, x, m):
    a(f"v_pk_mul_f32 {V(t,2)}, {V(x,2)}, {V(m,2)} op_sel:[0,0] op_sel_hi:[0,1]")
    a(f"v_pk_fma_f32 {V(t,2)}, {V(x,2)}, {V(m,2)}, {V(t,2)} op_sel:[1,1,0] op_sel_hi:[1,0,1] neg_lo:[0,1,0]")

TO = 39
CNT = {"W": 2, "x": 0, "o": 0}
def do_touches(a, seq, opt, regs=None):
    if opt.get("notouch"): return 0
    w, x, o = regs or (TW, TX, TO)
    n = 0
    for t in seq.split():
        if t == "W":
            a(f"v_add_u32 v{w}, {'s59' if CNT['W'] == 5 else 64*3840}, v{w}")
            a(f"global_load_dword v255, v{w}, s[{P_WQKV}:{P_WQKV+1}]")
        elif t == "x":
            a(f"global_load_dword v255, v{x}, s[{P_U}:{P_U+1}] offset:{(0, 256, 384)[CNT['x']]}")
        elif t == "o":
            a(f"v_min_u32 v{o}, 819196, v{o}")
            a(f"global_load_dword v255, v{o}, s[{P_WO}:{P_WO+1}]"); a(f"v_add_u32 v{o}, 15360, v{o}")
        else:
            a(f"s_waitcnt vmcnt({t})"); continue
        CNT[t] += 1; n += 1
    assert CNT["W"] <= 10 and CNT["x"] <= 3
    return n
def w7(a, sW, fn):
    l = a.newlabel("Ls_w7")
    a(f"s_cmp_lg_u32 s{sW}, 7")
    a(f"s_cbranch_scc1 {l}")
    fn()
    a.label(l)

def slab_issue(a, p0, p1):
    for p in range(p0, p1):
        a(f"s_mov_b32 m0, {SLAB + 1024*p}")
        a(f"s_movk_i32 s9, {10240*(p & 3) + 128*(p >> 2)}")
        a("buffer_load_dwordx4 v18, s[52:55], s9 offen lds")

def role_s_pro(a, st, sJ, sW, opt):
    for r in range(2, 9): a(f"v_mov_b32 v{r}, 0")
    a(f"s_mul_i32 s4, s{sJ}, 1920")
    a(f"s_lshl_b32 s5, s{sW}, 8")
    a("s_add_u32 s4, s4, s5")
    a("v_lshl_add_u32 v42, v1, 1, s4")
    a(f"s_mul_i32 s7, s{sW}, 0xAAAC")
    a("s_lshr_b32 s6, s7, 16")
    a(f"s_mul_i32 s8, s{sJ}, 10")
    a("s_lshl_b32 s9, s6, 1")
    a("s_add_u32 s9, s9, s8")
    a("v_mov_b32 v43, s9")
    a("s_and_b32 s12, s2, 6")
    a("s_lshl_b32 s12, s12, 3")
    a("s_bfe_u32 s13, s2, 0x40003")
    a("s_add_u32 s12, s12, s13")
    a("s_lshl_b32 s12, s12, 6")
    a("s_and_b32 s13, s2, 1")
    a("s_add_u32 s12, s12, s13")
    a("s_mul_i32 s12, s12, 640")
    a("v_lshrrev_b32 v18, 3, v1")
    a("v_mul_u32_u24 v18, 1152, v18")
    a("v_lshl_add_u32 v18, v1, 4, v18")
    a("v_add_u32 v18, s12, v18")
    a("s_waitcnt lgkmcnt(0)")
    st.stamp(a, "karg")
    lz = a.newlabel("Ls_nz")
    a(f"s_and_b32 s14, s{sJ}, 15")
    a(f"s_xor_b32 s9, s{sW}, 7")
    a("s_or_b32 s14, s14, s9")
    a(f"s_cbranch_scc1 {lz}")
    a(f"s_lshl_b32 s9, s{sJ}, 9")
    a(f"s_add_u32 s9, s9, {WS_CNT}")
    a("v_lshl_add_u32 v20, v1, 8, s9")
    a("s_mov_b32 exec_hi, 0")
    a(f"global_store_dword v20, v2, s[{P_WS}:{P_WS+1}] sc1")
    a("s_mov_b32 exec_hi, -1")
    a(f"s_mul_i32 s9, s{sJ}, 420")
    a("s_add_u32 s9, s9, 2880")
    a("v_lshl_add_u32 v20, v1, 4, s9")
    a("s_mov_b32 exec_hi, 0x0fffffff")
    for i in range(7):
        a(f"global_store_dwordx4 v20, v[2:5], s[{P_WS}:{P_WS+1}] offset:{960*i-2880} sc1")
    a("s_mov_b32 exec_hi, -1")
    a.label(lz)
    ploads(a, 2, 42, 43)
    srd(a, 52, P_U, 2621440)
    def slab_loop():
        a("s_setprio 2")
        lp = a.newlabel("Ls_sl")
        a(f"s_mov_b32 s12, {SLAB}")
        a("s_mov_b32 s13, 0")
        a.label(lp)
        for p in range(4):
            a(f"s_add_u32 m0, s12, {1024*p}")
            a(f"s_add_u32 s9, s13, {10240*p}")
            a("buffer_load_dwordx4 v18, s[52:55], s9 offen lds")
        a("s_add_u32 s12, s12, 4096")
        a("s_add_u32 s13, s13, 128")
        a("s_cmp_lg_u32 s13, 640")
        a(f"s_cbranch_scc1 {lp}")
    w7(a, sW, slab_loop)

def ploads(a, base, va, vld):
    PB, PC, PARE, PAIM, PLDT = 2, 4, 6, 7, 8
    a(f"global_load_short_d16_hi v{base+PLDT-2}, v{vld}, s[{P_LDT}:{P_LDT+1}]")
    for reg, p in ((PARE, P_ARE), (PAIM, P_AIM), (PB, P_BRE), (PB+1, P_BIM), (PC, P_CRE), (PC+1, P_CIM)):
        a(f"global_load_short_d16_hi v{base+reg-2}, v{va}, s[{p}:{p+1}]")

def role_s(a, st, sJ, sCT, sW, opt={}):
    vT, vL = 0, 1
    PB, PC, PARE, PAIM, PLDT = 2, 4, 6, 7, 8
    EA = 34
    vTR, vFL = 40, 41
    ACC = 48
    BAND = 200
    u0 = UNITS.index(0)
    lpc = a.newlabel("Ls_pc")
    a("s_getpc_b64 s[64:65]")
    a.label(lpc)
    touches = lambda seq: do_touches(a, seq, opt)
    a(f"s_lshr_b32 s49, s{sJ}, 4")
    def tabloads():
        a(f"v_lshlrev_b32 v46, 2, v{vT}")
        a(f"v_add_u32 v46, L_tab_src-{lpc}, v46")
        a(f"global_load_dwordx2 {V(EA,2)}, v46, s[64:65]")
    def bandloads():
        a(f"v_lshlrev_b32 v46, 4, v{vL}")
        a(f"v_add_u32 v46, L_tab_band-{lpc}+2048, v46")
        for t in range(6):
            a(f"global_load_dwordx4 {V(BAND+4*t,4)}, v46, s[64:65] offset:{1024*t-2048}")
    L7 = a.newlabel("Ls_slab"); LC = a.newlabel("Ls_common")
    touch_setup_x(a)
    a(f"v_add_u32 v{TW}, {64*3840}, v{TW}")
    for r in list(range(10, 18)) + list(range(ACC, ACC+16)): a(f"v_mov_b32 v{r}, 0")
    a("s_add_u32 s7, s7, 0x5556")
    a("s_lshr_b32 s7, s7, 16")
    a("s_min_u32 s7, s7, 4")
    a("s_lshl_b32 s9, s7, 1")
    a("s_add_u32 s9, s9, s8")
    a("v_mov_b32 v44, s9")
    a("v_add_u32 v42, 128, v42")
    a(f"s_lshr_b32 s10, 0x92, s{sW}")
    a("s_and_b32 s10, s10, 1")
    a("s_mul_i32 s13, s48, 51200")
    a("s_add_u32 s13, s13, s50")
    a(f"v_add_u32 v{TO}, s13, v66")
    a("s_lshl_b32 s9, s50, 1")
    a("s_sub_u32 s9, 640, s9")
    a(f"v_add_u32 v{TX}, s9, v{TX}")
    a("s_mul_i32 s59, s50, 3840")
    a(f"s_sub_u32 s59, {64*3840}, s59")
    a(f"v_mov_b32 v46, 0")
    a(f"v_mov_b32 v47, {LCNT}")
    a("ds_write_b32 v47, v46")
    a(f"v_and_b32 v46, 31, v{vL}")
    a(f"v_lshrrev_b32 v47, 5, v{vL}")
    a(f"v_mad_u32_u24 v9, v47, {HS}, v46")
    a(f"v_mul_u32_u24 v46, {TROW}, v46")
    a(f"v_lshl_add_u32 v46, v47, 4, v46")
    a(f"v_add_u32 v{vTR}, s5, v46")
    a(f"s_mul_i32 s9, s{sJ}, 80")
    a(f"s_add_u32 s9, s9, {WS_UT}")
    for k in range(3):
        a(f"v_add_u32 v64, {512*k}, v{vT}")
        a("v_min_u32 v64, 1279, v64")
        a("v_mul_u32_u24 v65, 13108, v64")
        a("v_lshrrev_b32 v65, 16, v65")
        a("v_mul_u32_u24 v67, 10160, v65")
        a("v_lshl_add_u32 v67, v64, 4, v67")
        a(f"v_add_u32 v{24+k}, s9, v67")
        a("v_mul_u32_u24 v67, 5, v65")
        a("v_sub_u32 v64, v64, v67")
        a(f"v_mul_u32_u24 v64, {USTR}, v64")
        a("v_lshl_add_u32 v64, v65, 4, v64")
        a(f"v_add_u32 v{27+k}, {UB+480}, v64")
    a(f"v_and_b32 v30, 7, v{vL}")
    a("v_lshlrev_b32 v31, 13, v30")
    a(f"v_add_u32 v31, {WS_CNT+1280}, v31")
    a("v_lshlrev_b32 v30, 2, v30")
    a("s_mov_b32 s56, 0")
    a(f"s_add_u32 s57, s5, {T_Z}")
    a(f"v_lshrrev_b32 v64, 4, v{vL}")
    a(f"v_bfe_u32 v65, v{vL}, 2, 2")
    a("v_lshl_add_u32 v65, v64, 3, v65")
    a(f"v_and_b32 v67, 3, v{vL}")
    a("v_lshlrev_b32 v67, 3, v67")
    a("v_lshl_add_u32 v65, v65, 7, v67")
    a(f"v_add_u32 v22, {SLAB}, v65")
    a("v_mul_u32_u24 v64, 10240, v64")
    a(f"v_and_b32 v67, 15, v{vL}")
    a("v_lshl_add_u32 v64, v67, 4, v64")
    a("s_lshl_b32 s9, s50, 3")
    a("s_add_u32 s9, s9, s51")
    a(f"s_add_u32 s9, s9, {WS_UT+2048}")
    a("v_add_u32 v19, s9, v64")
    P1 = opt.get("p1", "early")
    def p1loads():
        ploads(a, 10, 42, 44)
        a(f"global_load_short_d16_hi v17, v43, s[{P_DSK}:{P_DSK+1}]")
    a("s_mov_b32 m0, s57")
    a("v_mov_b32 v46, 0x3f80")
    a("ds_write_addtid_b32 v46")
    a(f"s_cmp_eq_u32 s{sW}, 7")
    a(f"s_cbranch_scc1 {L7}")
    if P1 == "early":
        p1loads(); a("s_waitcnt vmcnt(8)")
    else:
        a("s_waitcnt vmcnt(0)")
        if P1 == "start": p1loads()
    a.label(L7)
    a("s_waitcnt vmcnt(20)")
    st.stamp(a, "params")
    Z1, Z8, Z256, DT, WW = 128, 130, 132, 134, 136
    T0 = 140
    def setup(o):
        B, C, AR, AI, LD_ = PB+o, PC+o, PARE+o, PAIM+o, PLDT+o
        sq = lambda t, x: [f"v_mul_f32 v{t}, v{x}, v{x}", f"v_mul_f32 v{t+1}, v{x}, v{x+1}", f"v_fma_f32 v{t}, -v{x+1}, v{x+1}, v{t}", f"v_add_f32 v{t+1}, v{t+1}, v{t+1}"]
        return [f"v_mul_f32 v{DT}, {LOG2E}, v{LD_}", f"v_exp_f32 v{DT}, v{DT}",
            f"v_mul_f32 v{T0}, v{C}, v{B}", f"v_mul_f32 v{T0+1}, v{C}, v{B+1}",
            f"v_cvt_pk_bf16_f32 v{DT}, v{DT}, v{DT}",
            f"v_fma_f32 v{T0}, -v{C+1}, v{B+1}, v{T0}", f"v_and_b32 v{DT}, 0xffff0000, v{DT}", f"v_fmac_f32 v{T0+1}, v{C+1}, v{B}",
            f"v_mul_f32 v{AR}, v{DT}, v{AR}", f"v_mul_f32 v{AI}, v{DT}, v{AI}",
            f"v_mul_f32 v{WW}, v{DT}, v{T0}", f"v_mul_f32 v{WW+1}, v{DT}, v{T0+1}",
            f"v_mul_f32 v{AR}, {LOG2E}, v{AR}", f"v_mul_f32 v{AI}, {INV2PI}, v{AI}",
            f"v_exp_f32 v{T0}, v{AR}", f"v_rndne_f32 v{T0+2}, v{AI}", f"v_sub_f32 v{AI}, v{AI}, v{T0+2}",
            f"v_cos_f32 v{Z1}, v{AI}", f"v_sin_f32 v{Z1+1}, v{AI}",
            f"v_mul_f32 v{AR}, 0x43800000, v{AR}", f"v_mul_f32 v{AI}, 0x43800000, v{AI}",
            f"v_mul_f32 v{Z1}, v{Z1}, v{T0}", f"v_mul_f32 v{Z1+1}, v{Z1+1}, v{T0}",
            f"v_exp_f32 v{T0+2}, v{AR}",
            f"v_cos_f32 v{Z256}, v{AI}", f"v_sin_f32 v{Z256+1}, v{AI}",
            ] + sq(Z8, Z1) + [f"v_mul_f32 v{Z256}, v{Z256}, v{T0+2}", f"v_mul_f32 v{Z256+1}, v{Z256+1}, v{T0+2}"] + sq(T0, Z8) + sq(Z8, T0)
    for x in setup(0): a(x)
    LK = a.newlabel("Ls_kgen")
    a(f"s_cmp_lg_u32 s{sW}, 7")
    a(f"s_cbranch_scc1 {LK}")
    l = a.newlabel("Ls_nf")
    a("s_cmp_lg_u32 s14, 0")
    a(f"s_cbranch_scc1 {l}")
    a("v_mov_b32 v21, 1")
    a("s_lshl_b64 exec, 1, s49")
    a(f"global_store_dword v30, v21, s[{P_DBG}:{P_DBG+1}] sc1")
    a("s_mov_b64 exec, -1")
    a.label(l)
    n = touches(opt.get("tA", "W W"))
    a(f"s_waitcnt vmcnt({n})")
    st.stamp(a, "slab")
    au = Auto(a)
    RG = 64; NR = 12
    def trr(u):
        for h in range(2): au(f"ds_read_b64_tr_b16 {V(RG+4*(u%NR)+2*h,2)}, v22 offset:{512*h+4096*(u>>2)+32*(u&3)}")
    for u in range(6): trr(u)
    for u in range(20):
        if u + 6 < 20: trr(u+6)
        au(f"global_store_dwordx4 v19, {V(RG+4*(u%NR),4)}, s[{P_WS}:{P_WS+1}] offset:{256*u-2048} sc1")
        if u == opt.get("ubar", 19): a("s_barrier")
    a("v_mov_b32 v46, 0")
    a("s_movk_i32 s11, 3072")
    a(f"v_min_u32 v47, 9, v{vL}")
    a(f"v_mul_u32_u24 v47, s11, v47")
    a(f"v_add_u32 v47, {DB+4*ZW}, v47")
    a("ds_write_b32 v47, v46")
    flags_issue(a, 30, 32)
    nB = touches(opt.get("tB", "W W")) + (0 if opt.get("notouch") else len(opt.get("tM", "x").split()))
    a("s_mov_b32 s56, 1")
    def pt7():
        flags_wait(a, 30, 32, nB)
        a("v_mov_b32 v21, 1")
        a("s_bitcmp1_b32 s2, 0")
        a("s_cselect_b32 exec_lo, 0xf0, 15")
        a("s_mov_b32 exec_hi, 0")
        a(f"global_atomic_add v31, v21, s[{P_WS}:{P_WS+1}] sc1")
        a("s_mov_b64 exec, -1")
        tabloads(); bandloads()
        touches(opt.get("tC", "W x"))
    a.label(LK)
    def kst(n):
        if opt.get("kst") is None: return
        l = a.newlabel("Lks")
        a(f"s_cmp_lg_u32 s56, {opt['kst']}"); a(f"s_cbranch_scc1 {l}"); st.stamp(a, n); a.label(l)
    kst("k0")
    CV = 176; FR = 64
    class Pipe:
        def __init__(s): s.pc = None; s.pw = None; s.n = 0; s.m0 = None; s.extra = []
        def step(s, entry):
            w = s.pw
            if s.pc is not None:
                src, off, neg = s.pc
                r = CV + (s.n % 4); s.n += 1
                a(f"v_cvt_pk_bf16_f32 v{r}, v{src}, {'-' if neg else ''}v{src+1}")
                s.pw = (r, off, neg)
            else: s.pw = None
            if w:
                if s.m0 != w[2]:
                    a(f"s_mov_b32 m0, s{5 if w[2] else 57}"); s.m0 = w[2]
                a(f"ds_write_addtid_b32 v{w[0]} offset:{w[1]}")
                if s.extra: a(s.extra.pop(0))
            s.pc = entry
        def drain(s):
            s.step(None); s.step(None)
    p = Pipe()
    uo = lambda pp: unit_row(UNITS.index(pp)) * TROW
    Wreg = {0: WW}
    p.step((WW, uo(0), True))
    for k in range(1, 8):
        Wreg[k] = 144 + 2*k
        cmul(a, Wreg[k], Wreg[k-1], Z1); p.step((Wreg[k], uo(k), True))
    rot = [160, 162, 164, 166]; ri = 0
    for base, cnt in ((0, 8), (4, 3), (2, 1), (6, 1)):
        src = Wreg[base]
        for e in range(1, cnt+1):
            d = rot[ri % 4]; ri += 1
            cmul(a, d, src, Z256); p.step((d, uo(base + 256*e), True)); src = d
    kst("k2")
    if opt.get("tM", "x"): w7(a, sW, lambda: touches(opt.get("tM", "x")))
    if P1 == "mid":
        l = a.newlabel("Ls_mid")
        a("s_cmp_lg_u32 s56, 0"); a(f"s_cbranch_scc1 {l}"); p1loads(); a.label(l)
    p.step((Z8, TROW, False))
    src = Z8
    rdA = [f"ds_read_b128 {V(FR+8*ks,4)}, v{vTR} offset:{32*ks}" for ks in range(8)]
    rdB = [f"ds_read_b128 {V(FR+8*ks+4,4)}, v{vTR} offset:{T_Z+32*ks}" for ks in range(8)]
    HO = opt.get("hoistA", 1)
    for q in range(2, 32):
        d = rot[ri % 4]; ri += 1
        if HO and q >= 5 and (q - 5) % 3 == 0 and rdA: p.extra.append(rdA.pop(0))
        cmul(a, d, src, Z8); p.step((d, q*TROW, False)); src = d
        if q == opt.get("q7", 14): w7(a, sW, pt7)
    p.drain()
    kst("k3")
    if opt.get("tK", "W W x"): w7(a, sW, lambda: touches(opt.get("tK", "W W x")))
    a("s_barrier")
    au = Auto(a)
    if HO: au.q = [set()]*0
    for k in range(8):
        if not HO: au(rdA[k])
        au(rdB[k])
    l = a.newlabel("Ls_r0")
    a("s_cmp_lg_u32 s56, 0")
    a(f"s_cbranch_scc1 {l}")
    a("s_waitcnt vmcnt(0)")
    lo, hi = ("exec_hi", "exec_lo") if u0 & 1 else ("exec_lo", "exec_hi")
    a(f"s_xor_b32 {lo}, s10, 1")
    a(f"s_mov_b32 {hi}, 0")
    a(f"v_mov_b32 v{ACC+(u0>>1)}, v17")
    a("s_mov_b64 exec, -1")
    tabloads()
    a(f"s_cmp_lt_u32 s{sW}, 5")
    a(f"s_cbranch_scc1 {l}")
    bandloads()
    a.label(l)
    kst("k3b")
    a("s_mul_i32 s9, s6, 6144")
    a("s_mul_i32 s11, s10, 3072")
    a("s_add_u32 s9, s9, s11")
    a(f"s_add_u32 s9, s9, {DB}")
    a(f"v_lshl_add_u32 v{vFL}, v9, 2, s9")
    su = setup(8); si = 8
    for x in su[:si]: a(x)
    for ks in range(8):
        au(f"v_mfma_f32_32x32x16_bf16 {V(ACC,16)}, {V(FR+8*ks,4)}, {V(FR+8*ks+4,4)}, {V(ACC,16)}")
        for x in su[si:si+4]: a(x)
        si += 4
    for x in su[si:]: a(x)
    kst("k4")
    lnf = a.newlabel("Ls_noflush")
    a("s_or_b32 s9, s10, s56")
    a(f"s_cbranch_scc0 {lnf}")
    for k in range(11):
        a(f"ds_write_b32 v{vFL}, v{ACC+k} offset:{4*RS*k}")
    for k in range(11):
        a(f"v_mov_b32 v{ACC+k}, 0")
    a.label(lnf)
    a("s_mov_b32 s6, s7")
    a("s_xor_b32 s56, s56, 1")
    a(f"s_cbranch_scc1 {LK}")
    st.stamp(a, "kgen")
    def after7():
        touches(opt.get("tE", ""))
        a("s_lshl_b32 s9, s49, 13")
        a(f"s_add_u32 s9, s9, {WS_CNT+1280}")
        a("v_mov_b32 v20, s9")
        poll(a, 20, 21, 64)
        a("s_setprio 0")
    w7(a, sW, after7)
    a("s_waitcnt vmcnt(0)")
    st.stamp(a, "upoll")
    a(f"v_and_b32 v{EA+2}, 0xffff, v{EA+1}")
    a(f"v_lshrrev_b32 v{EA+1}, 16, v{EA}")
    a(f"v_and_b32 v{EA}, 0xffff, v{EA}")
    for k in range(3): a(f"v_add_u32 v{EA+k}, {DB}, v{EA+k}")
    st.stamp(a, "gather")
    a(f"v_mul_u32_u24 v13, 2185, v{vT}")
    a("v_lshrrev_b32 v13, 16, v13")
    a(f"v_mul_u32_u24 v13, {USTR-480}, v13")
    a(f"v_lshl_add_u32 v13, v{vT}, 4, v13")
    for r in range(20, 24): a(f"v_mov_b32 v{r}, 0")
    a(f"v_and_b32 v14, 15, v{vL}")
    a(f"v_lshrrev_b32 v15, 4, v{vL}")
    a("v_and_b32 v16, 3, v14")
    a("v_sub_u32 v16, 3, v16")
    a(f"v_mul_u32_u24 v16, {KSTR}, v16")
    a("v_lshrrev_b32 v17, 2, v14")
    a("v_sub_u32 v17, 3, v17")
    a("v_lshl_add_u32 v16, v17, 3, v16")
    a(f"v_add_u32 v16, {KB}, v16")
    a(f"v_add_u32 v13, {UB}, v13")
    a("v_lshlrev_b32 v17, 5, v14")
    a("v_and_b32 v18, 1, v15")
    a("v_lshl_add_u32 v18, v18, 9, v17")
    a("v_and_b32 v19, 2, v15")
    a("v_lshl_add_u32 v18, v19, 3, v18")
    a("v_lshl_add_u32 v17, v15, 4, v17")
    a(f"v_add_u32 v17, {UB}, v17")
    a("s_waitcnt lgkmcnt(0)")
    a("s_barrier")
    st.stamp(a, "B1")
    for k in range(3):
        a(f"global_load_dwordx4 {V(128+4*k,4)}, v{24+k}, s[{P_WS}:{P_WS+1}] sc1")
    ER = 64
    for c in range(5):
        for k in range(3):
            a(f"ds_read2st64_b32 {V(ER+6*c+2*k,2)}, v{EA+k} offset0:{24*c} offset1:{24*c+12}")
    a(f"v_cmp_gt_u32 vcc, 150, v{vT}")
    a("s_and_saveexec_b64 s[12:13], vcc")
    a(f"ds_write_b128 v13, v[20:23]")
    a("s_mov_b64 exec, s[12:13]")
    a(f"s_add_u32 m0, s5, {KB}")
    a("s_waitcnt lgkmcnt(1)")
    for c in range(5):
        b = ER + 6*c
        for k in range(3):
            a(f"v_add_f32 v{b+2*k}, v{b+2*k}, v{b+2*k+1}")
        a(f"v_cvt_pk_bf16_f32 v{b+1}, v{b}, v{b+2}")
        a(f"v_cvt_pk_bf16_f32 v{b+3}, v{b+2}, v{b+4}")
        o = c*KCH
        a(f"ds_write_addtid_b32 v{b+1} offset:{o}")
        a(f"ds_write_addtid_b32 v{b+3} offset:{o+KSTR}")
        a(f"ds_write_addtid_b32 v{b+1} offset:{o+2*KSTR-4}")
        a(f"ds_write_addtid_b32 v{b+3} offset:{o+3*KSTR-4}")
    for k in range(3):
        a(f"s_waitcnt vmcnt({2-k})")
        a(f"ds_write_b128 v{27+k}, {V(128+4*k,4)}")
    w7(a, sW, lambda: touches(opt.get("tD", "W o")))
    LD = a.newlabel("Ls_dil"); LE = a.newlabel("Ls_end")
    a(f"s_cmp_ge_u32 s{sW}, 5")
    a(f"s_cbranch_scc1 {LD}")
    n0 = st.n
    vA, vB, vX = 2, 3, 4
    a(f"s_mul_i32 s9, s{sW}, {KCH}")
    a("v_lshl_add_u32 v2, v15, 4, v16")
    a(f"v_add_u32 v{vA}, s9, v2")
    a(f"s_mul_i32 s9, s{sW}, {USTR}")
    a(f"v_add_u32 v{vB}, s9, v17")
    a(f"s_mul_i32 s9, s{sW}, 10240")
    a(f"s_add_u32 s9, s9, {XB}")
    a(f"v_lshl_add_u32 v{vX}, v{vL}, 4, s9")
    srd(a, 52, P_WS, 2621440, WS_YT)
    a(f"s_mul_i32 s9, s{sJ}, 5")
    a(f"s_add_u32 s9, s9, s{sW}")
    a("s_lshl_b32 s56, s9, 12")
    a("s_waitcnt lgkmcnt(0)")
    a("s_barrier")
    st.stamp(a, "B2")
    CA = 24; AF = 56; BF = 128; NB = 12
    au = Auto(a)
    Areg = lambda x: AF + 4*(x + 7)
    def rdA(x):
        off = 64*(9 - x) if x <= 9 else 1120
        return [f"ds_read_b64 {V(Areg(x),2)}, v{vA} offset:{off}", f"ds_read_b64 {V(Areg(x)+2,2)}, v{vA} offset:{off+8}"]
    rdB = lambda m: f"ds_read_b128 {V(BF+4*(m % NB),4)}, v{vB} offset:{64*m}"
    groups = []
    for m in range(64):
        g = []
        if m < 8:
            g += rdA(-m) + rdA(8-m)
            if m == 7: g += rdA(9) + rdA(10)
        g.append(rdB(m)); groups.append(g)
    seen = set()
    def mf(i, x, m):
        c = V(CA+4*i, 4) if i in seen else "0"
        seen.add(i)
        return f"v_mfma_f32_16x16x32_bf16 {V(CA+4*i,4)}, {V(Areg(x),4)}, {V(BF+4*(m % NB),4)}, {c}"
    def fin_pair(i, em):
        b = CA + 4*i
        for k in range(4): em(f"v_cvt_pk_bf16_f32 v{b+k}, v{b+2*k}, v{b+2*k+1}")
        em(f"v_permlane16_swap_b32 v{b}, v{b+2}")
        em(f"v_permlane16_swap_b32 v{b+1}, v{b+3}")
        em(f"buffer_store_dwordx4 {V(b,4)}, v18, s[52:55], s56 offen offset:{512*i} sc1")
    flat = [x for g in groups for x in g]
    gend = []; n = 0
    for g in groups: n += len(g); gend.append(n)
    ni = 0
    for _ in range(gend[2]): au(flat[ni]); ni += 1
    R = 176
    MB1, MB2 = opt.get("mb", (40, 48))
    def addt(i, pk):
        L = []
        for t in ([i-2] + ([i+2] if i >= 4 else [])):
            if pk: L += [f"v_pk_add_f32 {V(CA+4*i+k,2)}, {V(CA+4*i+k,2)}, {V(R+4*t+k,2)}" for k in (0, 2)]
            else: L += [f"v_add_f32 v{CA+4*i+k}, v{CA+4*i+k}, v{R+4*t+k}" for k in range(4)]
        return L
    stores = []
    def finl(i):
        L = []; fin_pair(i, L.append); stores.append(L.pop()); return L
    extra = []
    for m in range(64):
        j, r = m >> 3, m & 7
        if m in (MB1, MB2):
            l = a.newlabel("Ls_mb")
            a(f"s_and_b32 s9, s{sW}, 3")
            a(f"s_cbranch_scc{0 if m == MB1 else 1} {l}")
            a("s_barrier")
            a.label(l)
        if m == 24: extra += finl(0)
        if m == MB2:
            st.stamp(a, "conv")
            extra += [f"ds_read_b128 {V(R+4*t,4)}, v{vX} offset:{1024*t}" for t in (0, 1, 2, 6, 3, 7, 4, 8, 5, 9)]
            extra += addt(2, 0) + addt(3, 0) + finl(2) + addt(4, 0) + addt(5, 0) + finl(4)
            extra += [f"v_add_f32 v{R+4*t+k}, v{R+4*t+k}, v{R+4*t+16+k}" for t in (4, 5) for k in range(4)]
        ms = [mf(j, -r, m)]
        if j < 7: ms.append(mf(j+1, 8-r, m))
        if r == 7 and j < 6: ms.append(mf(j+2, 9, m))
        if r == 7 and j < 4: ms.append(mf(j+4, 10, m))
        lim = gend[min(63, m + NB - 2)]
        for x in ms:
            au(x)
            for _ in range(3 if m < 8 else 1):
                if ni < lim: au(flat[ni]); ni += 1
            for _ in range(2):
                if extra: au(extra.pop(0))
    assert ni == len(flat) and MB2 >= 48
    for x in extra: au(x)
    for x in stores: au(x)
    for i in (6, 7):
        for x in addt(i, 1)[:2]: au(x)
    fin_pair(6, au)
    st.stamp(a, "B3")
    a(f"s_mov_b32 s57, {WS_CNT+1024}")
    a("s_and_b32 s9, s49, 3")
    a("s_lshl_b32 s9, s9, 3")
    a("s_lshr_b32 s11, s49, 2")
    a("s_add_u32 s9, s9, s11")
    a("s_mov_b32 s56, 4")
    a("s_lshl_b32 s58, 0x55, s9")
    a("s_barrier")
    a(f"s_branch {LE}")
    a.label(LD)
    st.n = n0; st.names = st.names[:n0]
    a("s_setprio 1")
    for k, r in enumerate((TW, TX, TO)): a(f"v_mov_b32 v{226+k}, v{r}")
    a("v_lshl_add_u32 v16, v15, 3, v16")
    a(f"v_lshlrev_b32 v19, 4, v{vL}")
    a(f"v_add_u32 v19, {XB}, v19")
    a(f"s_cmp_eq_u32 s{sW}, 6")
    a("s_movk_i32 s56, 0x198")
    a("s_cselect_b32 s56, 0x3ba, s56")
    a(f"s_cmp_eq_u32 s{sW}, 7")
    a("s_cselect_b32 s56, 0x425c, s56")
    a(f"s_mul_i32 s57, s{sW}, 12")
    a("s_add_u32 s57, s57, 9")
    wo_setup(a, 5, 57, sCT, 52, 58)
    a("s_waitcnt lgkmcnt(0)")
    a("s_barrier")
    st.stamp(a, "B2")
    w7(a, sW, lambda: do_touches(a, opt.get("t4", "o o"), opt, (226, 227, 228)))
    LU = a.newlabel("Ls_unit"); L3 = a.newlabel("Ls_u3"); LN = a.newlabel("Ls_un")
    a.label(LU)
    a("s_bitcmp1_b32 s56, 3")
    a("s_cselect_b32 s11, 8, 1")
    a("s_and_b32 s9, s56, 15")
    a("s_sub_u32 s9, s9, s11")
    a(f"s_mul_i32 s12, s9, {KCH}")
    a("v_add_u32 v2, s12, v16")
    a(f"s_mul_i32 s12, s9, {USTR}")
    a("v_add_u32 v3, s12, v17")
    a("s_mul_i32 s12, s9, 10240")
    a("v_add_u32 v4, s12, v19")
    for t in range(4): a(wo_piece(5, 52, 58, t, 1))
    a("s_add_u32 s58, s58, 3840")
    a("s_cmp_eq_u32 s11, 1")
    a(f"s_cbranch_scc1 {L3}")
    TP = 24; WN = 48; BX = 96; OP = 128; DA = 144
    def unit(types, d0, nd, nJ, toff, tlen, tbase, xoff):
        au = Auto(a)
        npair = len(types)//2
        rdW = lambda J: [f"ds_read_b128 {V(WN+8*J+4*k,4)}, v3 offset:{512*J+432+16*k}" for k in range(2)]
        def rdT(di): return [f"ds_read_b64 {V(TP+4*(di*npair+(ti>>1))+2*(ti&1),2)}, v2 offset:{2*(toff+tlen*ti+tbase-16*(d0+di))}" for ti in range(len(types))]
        def box(J): return [f"v_mfma_f32_16x16x32_bf16 {V(BX+16*(J&1)+4*ti,4)}, {V(WN+8*J+(0 if stab.W0[ty] == -24 else 4),4)}, {V(BAND+4*ty,4)}, 0" for ti, ty in enumerate(types)]
        def cvt(J): return [f"v_cvt_pk_bf16_f32 v{OP+8*(J&1)+k}, v{BX+16*(J&1)+2*k}, v{BX+16*(J&1)+2*k+1}" for k in range(2*len(types))]
        seen = set()
        def main(J):
            L = []
            for pi in range(npair):
                for di in range(nd):
                    i = J + d0 + di
                    if i > 7: continue
                    acc = DA + 4*(i - d0)
                    c = V(acc, 4) if i in seen else "0"
                    seen.add(i)
                    L.append(f"v_mfma_f32_16x16x32_bf16 {V(acc,4)}, {V(OP+8*(J&1)+4*pi,4)}, {V(TP+4*(di*npair+pi),4)}, {c}")
            return L
        later = [x for di in range(nd) for x in rdT(di)] + [x for J in range(3, nJ) for x in rdW(J)]
        for J in range(3):
            for x in rdW(J): au(x)
        li = 0
        def emit(ms, fill, nread=2):
            nonlocal li
            fi = 0
            for x in ms:
                au(x)
                for _ in range(nread):
                    if li < len(later): au(later[li]); li += 1
                for _ in range(2):
                    if fi < len(fill): au(fill[fi]); fi += 1
            for x in fill[fi:]: au(x)
        emit(box(0), [])
        emit(box(1), [])
        for x in cvt(0): au(x)
        for J in range(nJ):
            emit(main(J), cvt(J+1) if J+1 < nJ else [])
            if J + 2 < nJ: emit(box(J+2), [])
            if J >= 1: au(f"ds_write_b128 v4, {V(DA+4*(J-1),4)} offset:{xoff+1024*(J-1)}")
        au(f"ds_write_b128 v4, {V(DA+4*(nJ-1),4)} offset:{xoff+1024*(nJ-1)}")
        assert li == len(later)
    unit([0,1,2,3], 2, 3, 6, 608, 64, 64, 0)
    w7(a, sW, lambda: do_touches(a, opt.get("t5", "o"), opt, (226, 227, 228)))
    a(f"s_branch {LN}")
    a.label(L3)
    unit([4,5], 4, 4, 4, 864, 80, 112, 6144)
    a.label(LN)
    a("s_lshr_b32 s56, s56, 4")
    a(f"s_cbranch_scc1 {LU}")
    a(f"s_sub_u32 s57, s{sW}, 5")
    wo_setup(a, 2, 57, sCT, 52, 56)
    a("s_waitcnt lgkmcnt(0)")
    st.stamp(a, "conv")
    a("s_barrier")
    a("s_setprio 0")
    a("s_mov_b32 s57, 0")
    def woloop(n):
        lp = a.newlabel("Ls_wo")
        a(f"s_add_u32 s13, s57, {23040*n}")
        a.label(lp)
        a("s_mov_b32 m0, s56")
        a("s_add_u32 s56, s56, 2880")
        a("buffer_load_dwordx4 v2, s[52:55], s57 offen lds")
        a("s_add_u32 s57, s57, 23040")
        a("s_cmp_lg_u32 s57, s13")
        a(f"s_cbranch_scc1 {lp}")
    woloop(14)
    st.stamp(a, "B3")
    a("s_barrier")
    woloop(9)
    a("s_mov_b32 s56, 0")
    a.label(LE)
```

```python
import sys
from common import *
from role_g import role_g
from role_s import role_s, role_s_pro, tables_text
from role_p2 import role_p2
diag = len(sys.argv) > 2 and sys.argv[2] == "diag"
opt = eval(sys.argv[3]) if len(sys.argv) > 3 else {}
NAME = "gated_mix__ssm_conv_s4__linear_attn_block__prompt_kernel"
HDR = open("gated_mix__ssm_conv_s4__linear_attn_block__prompt.s.ref").read().split("; Override launch")[0]
if opt.get('rt'): Stamps.op = 's_memrealtime'
a = Asm(); stg = Stamps(diag); sts = Stamps(diag)
stg.skip = set(opt.get("skipg", ["karg", "done", "ready"])); sts.skip = set(opt.get("skips", ["karg", "gather", "conv", "slab", "params"]))
stg.start(a)
if diag: sts.names.append("start"); sts.n = 1
a("s_cmp_ge_u32 s2, 256")
a("s_cbranch_scc1 L_end")
load_kernargs(a)
a("v_lshrrev_b32 v1, 6, v0")
a("v_readfirstlane_b32 s60, v1")
a("v_and_b32 v1, 63, v0")
code_prefetch(a, opt.get("pf1", 9), 3)
touch_setup_w(a)
a("s_and_b32 s3, s2, 128")
a("s_xor_b32 s4, s60, 1")
a("s_or_b32 s3, s3, s4")
a("s_cbranch_scc1 L_nt")
a(f"v_add_u32 v38, {64*3840}, v{TW}")
a("s_waitcnt lgkmcnt(0)")
a(f"global_load_dword v255, v{TW}, s[{P_WQKV}:{P_WQKV+1}]")
a(f"global_load_dword v255, v38, s[{P_WQKV}:{P_WQKV+1}]")
a.label("L_nt")
a("s_lshr_b32 s3, s2, 3")
a("s_and_b32 s62, s2, 1")
a("s_lshl_b32 s62, s62, 2")
a("s_and_b32 s4, s3, 3")
a("s_add_u32 s62, s62, s4")
a("s_cmp_lt_u32 s3, 16")
a("s_cbranch_scc1 L_g")
a("s_and_b32 s61, s2, 7")
a("s_lshl_b32 s61, s61, 4")
a("s_and_b32 s4, s3, 15")
a("s_add_u32 s61, s61, s4")
role_s_pro(a, sts, 61, 60, opt)
a("s_branch L_s")
a.label("L_g")
a("s_and_b32 s61, s2, 6")
a("s_lshl_b32 s61, s61, 1")
a("s_lshr_b32 s4, s3, 2")
a("s_add_u32 s61, s61, s4")
role_g(a, stg, 61, 62, 60, 62, opt)
a("s_branch L_p2")
a.label("L_s")
i0 = len(a.lines)
role_s(a, sts, 61, 62, 60, opt)
def sub(pred, rep):
    for i in range(i0, len(a.lines)):
        if pred(a.lines[i]): a.lines[i] = rep
if opt.get("xpk"): sub(lambda l: l.startswith(("v_pk_mul_f32", "v_pk_fma_f32")), "s_nop 0")
if opt.get("xconv"): sub(lambda l: l.startswith("v_mfma_f32_16x16"), "s_nop 7")
if opt.get("xk32"): sub(lambda l: l.startswith("v_mfma_f32_32x32"), "s_nop 7")
a.label("L_p2")
while sts.n < stg.n: sts.n += 1; sts.names.append('-')
assert stg.n == sts.n, (stg.names, sts.names)
n0 = stg.n
stg.stamp(a, "done")
a("s_and_b32 s61, s2, 6")
a("s_lshl_b32 s61, s61, 2")
a("s_lshr_b32 s4, s2, 5")
a("s_add_u32 s61, s61, s4")
role_p2(a, stg, 61, 62, 60, opt)
if opt.get("amp"):
    a("s_waitcnt vmcnt(0) lgkmcnt(0)")
    stg.stamp(a, "end")
    a("s_waitcnt lgkmcnt(0)")
    wg, nm = opt["amp"]
    names = stg.names if wg < 128 else sts.names + stg.names[n0:]
    k = names.index(nm); e = len(names) - 1
    a(f"s_xor_b32 s4, s2, {wg}"); a("s_or_b32 s4, s4, s60"); a("s_cbranch_scc1 L_end")
    a(f"s_sub_u32 s5, s{70+2*k}, s70"); a("s_lshl_b32 s5, s5, 2"); a("s_min_u32 s5, s5, 20000")
    a.label("L_amp")
    a("s_memrealtime s[6:7]"); a("s_waitcnt lgkmcnt(0)"); a(f"s_sub_u32 s6, s6, s{70+2*e}"); a("s_cmp_lt_u32 s6, s5"); a("s_cbranch_scc1 L_amp")
elif opt.get("dbgout"):
    a("s_waitcnt vmcnt(0) lgkmcnt(0)")
    stg.stamp(a, "end")
    a("s_waitcnt lgkmcnt(0)")
    a("s_and_b32 s4, s2, 127"); a("s_xor_b32 s4, s4, 8"); a("s_or_b32 s4, s4, s60"); a("s_cbranch_scc1 L_end")
    a("s_lshr_b32 s4, s2, 7"); a("s_lshl_b32 s4, s4, 4"); a("s_add_u32 s4, s4, 32"); a("v_mov_b32 v2, s4")
    a("s_mov_b64 exec, 1")
    for k in range(4):
        a(f"s_sub_u32 s5, s{70+2*(2*k+1)}, s70"); a(f"s_sub_u32 s6, s{70+2*(2*k+2)}, s70"); a("s_mul_i32 s5, s5, 10000"); a("s_add_u32 s5, s5, s6")
        a("v_mov_b32 v3, s5"); a(f"global_store_dword v2, v3, s[{P_DBG}:{P_DBG+1}] offset:{4*k}")
    a("s_waitcnt vmcnt(0)")
    print(stg.names, sts.names)
else:
    stg.flush(a, 2, 60)
a.label("L_end")
a("s_endpgm")
txt = HDR
if opt.get("list", diag):
    txt += f"; @launch kernel={NAME} grid=(256,1,1) block=(512,1,1) lds=163840\n"
else:
    txt += "; @launch grid=(256,1,1) block=(512,1,1) lds=163840\n"
txt += '.amdgcn_target "amdgcn-amd-amdhsa--gfx950"\n.text\n' + kernel_text(NAME, a, 256, align=opt.get('al', (2, 5))) + tables_text() + "L_code_end:\n"
txt += '.section .rodata,"a"\n' + descriptor(NAME, 256, 100)
if diag:
    txt += "; stampsG: " + ",".join(stg.names) + "|np.arange(128)\n"
    txt += "; stampsS: " + ",".join(sts.names + stg.names[n0:]) + "|np.arange(128,256)\n"
open(sys.argv[1], "w").write(txt)
```

```python
from common import *
XSZ = 16384
SEGK = 10240; SEGV = 20480 + 16
STG = XSZ + 30720 + 32
RSTR = 6912
DUMP = 2 * RSTR

def phi_ops(base, n, vL, tmp, pk=True):
    if pk:
        A = [f"v_pk_fma_f32 {V(tmp+i,2)}, {V(base+i,2)}, {V(vL,2)}, {V(vL,2)} op_sel_hi:[1,0,0] neg_lo:[0,0,1] neg_hi:[0,0,1]" for i in range(0, n, 2)]
        C = [f"v_pk_add_f32 {V(tmp+i,2)}, {V(tmp+i,2)}, {V(vL,2)} op_sel:[0,1] op_sel_hi:[1,1]" for i in range(0, n, 2)]
    else:
        A = [f"v_fma_f32 v{tmp+i}, v{base+i}, v{vL}, -v{vL}" for i in range(n)]
        C = [f"v_add_f32 v{tmp+i}, v{tmp+i}, v{vL+1}" for i in range(n)]
    B = [f"v_exp_f32_e64 v{tmp+i}, v{tmp+i} clamp" for i in range(n)] + [f"v_max_f32 v{tmp+i}, v{tmp+i}, v{base+i}" for i in range(n)]
    return A, B, C

PAIRS = [(0,2),(0,3),(1,2),(1,3),(1,4),(2,3),(2,4)]
KPL = 1040
def kv_table(step):
    T = []
    for idx in range(0, 1680, step):
        h, r = divmod(idx, 420); e, d = divmod(r, 20)
        pr, hh = divmod(h, 2)
        dc = 20*hh + d; kt, col = divmod(dc, 16)
        if e == 20: plane, g = 28 + kt, 0
        else:
            ec = 40 + 20*hh + e; vt, row = divmod(ec, 16)
            plane, g = 4*PAIRS.index((kt, vt)) + (row & 3), row >> 2
        T.append(plane*KPL + pr*256 + (16*g + col)*4)
    return T
def g_tables_text(opt):
    T = kv_table(2 if opt.get("bf") else 1)
    T += [0]*(-len(T) % 256)
    t = "L_tab_kv:\n"
    for i in range(0, len(T), 16): t += "    .short " + ", ".join(map(str, T[i:i+16])) + "\n"
    return t

def role_g(a, st, sRB, sG, sW, sCT, opt):
    vT, vL = 0, 1
    LC = a.newlabel("Lg_c"); LE = a.newlabel("Lg_end")
    a(f"v_and_b32 v2, 15, v{vL}")
    a(f"v_lshrrev_b32 v3, 4, v{vL}")
    lq = a.newlabel("Lg_ld")
    a(f"s_cmp_ge_u32 s{sW}, 4")
    a(f"s_cbranch_scc1 {lq}")
    a("s_barrier")
    a(f"s_branch {LC}")
    a.label(lq)

    n0 = st.n
    dX, dW = 18, 20
    a(f"s_mul_i32 s4, s{sRB}, {128*1280}")
    a(f"s_and_b32 s5, s{sW}, 3")
    a(f"v_lshrrev_b32 v28, 3, v{vL}")
    a("v_mul_u32_u24 v28, 1280, v28")
    a("s_lshl_b32 s6, s5, 2")
    a("v_add_u32 v29, s6, v3")
    a(f"v_xor_b32 v29, v29, v{vL}")
    a("v_and_b32 v29, 7, v29")
    a("v_lshl_add_u32 v28, v29, 4, v28")
    a("s_mul_i32 s6, s5, 10240")
    a("s_add_u32 s6, s6, s4")
    a(f"v_add_u32 v{dX}, s6, v28")
    a("s_lshl_b32 s14, s5, 10")
    a(f"s_mul_i32 s7, s{sG}, 160")
    a("s_lshl_b32 s6, s5, 6")
    a("s_movk_i32 s8, 3840")
    for t in range(2):
        a(f"v_add_u32 v28, {'s6' if t == 0 else 256}, v{vL}")
        a("v_mul_u32_u24 v29, 6554, v28")
        a("v_lshrrev_b32 v29, 16, v29")
        a("v_mul_u32_u24 v30, 10, v29")
        a("v_sub_u32 v28, v28, v30")
        a("v_lshl_add_u32 v28, v28, 4, s7")
        a("v_lshrrev_b32 v30, 1, v29")
        a("v_xor_b32 v30, v30, v29")
        a("v_and_b32 v30, 4, v30")
        a("v_mul_u32_u24 v30, 3, v30")
        a("v_xor_b32 v29, v29, v30")
        a(f"v_mad_u32_u24 v{dW+t}, v29, s8, v28")
    a("s_lshr_b32 s6, s5, 1")
    a("s_mul_i32 s6, s6, 1280")
    a("s_and_b32 s7, s5, 1")
    a(f"s_mul_i32 s7, s7, {32*3840}")
    a("s_add_u32 s6, s6, s7")
    a(f"v_add_u32 v{dW+1}, s6, v{dW+1}")
    a("s_lshl_b32 s59, s5, 12")
    a("s_mov_b32 s15, s14"); a("s_and_b32 s56, s2, 1"); a(f"s_mul_i32 s57, s56, {5*64*3840}"); a("s_mul_i32 s56, s56, 640")
    a(f"s_add_u32 s58, s14, {3*STG}")
    a("s_waitcnt lgkmcnt(0)")
    st.stamp(a, "karg")
    srd(a, 48, P_U, 2621440)
    srd(a, 52, P_WQKV, 2457600)
    a("s_barrier")
    def dmaX(t):
        return (f"s_add_u32 m0, s15, {4096*t}\ns_add_u32 s9, s56, {t*32*1280}\n"
                f"buffer_load_dwordx4 v{dX}, s[48:51], s9 offen lds")
    def dmaW(t):
        if t < 6:
            return (f"s_add_u32 m0, s15, {XSZ + 5120*t + (16 if t >= 4 else 0)}\ns_add_u32 s9, s57, {1280*(t >> 1) + 32*3840*(t & 1)}\n"
                    f"buffer_load_dwordx4 v{dW}, s[52:55], s9 offen lds")
        x = (f"s_add_u32 s9, s15, s59\ns_add_u32 m0, s9, {XSZ + 4096 + (20480 + 16 if t == 7 else 0)}\ns_add_u32 s9, s57, {2560 if t == 7 else 0}\n"
             f"buffer_load_dwordx4 v{dW+1}, s[52:55], s9 offen lds")
        if t == 7:
            l = a.newlabel("Lg_sk")
            x = f"s_cmp_ge_u32 s5, 2\ns_cbranch_scc1 {l}\n{x}\n{l}:"
        return x
    PCS = lambda: [dmaX(0), dmaW(0), dmaW(1), dmaX(1), dmaW(2), dmaW(3), dmaX(2), dmaW(4), dmaW(5), dmaX(3), dmaW(6), dmaW(7)]
    def nextstage():
        a("s_add_u32 s56, s56, 128"); a(f"s_add_u32 s57, s57, {64*3840}")
        a("s_cmp_eq_u32 s56, 1280"); a("s_cselect_b32 s56, 0, s56"); a("s_cselect_b32 s57, 0, s57")
        a(f"s_add_u32 s15, s15, {STG}"); a("s_cmp_eq_u32 s15, s58"); a("s_cselect_b32 s15, s14, s15")
    H = opt.get("lh", 6)
    for x in PCS(): a(x)
    nextstage()
    for x in PCS()[:H]: a(x)
    BF = opt.get("bf", 0); NA = 4 if BF else 7
    AA = 40
    lpc = a.newlabel("Lg_pc")
    a("s_getpc_b64 s[10:11]")
    a.label(lpc)
    a(f"s_mul_i32 s6, s{sRB}, {NA if opt.get('arot', 1) else 0}")
    a("s_lshr_b32 s6, s6, 2")
    a("s_add_u32 s6, s6, s5")
    a(f"v_lshlrev_b32 v28, 2, v{vL}")
    for i in range(NA):
        a(f"s_cmp_ge_u32 s6, {4*NA}"); a(f"s_cselect_b32 s7, {4*NA}, 0"); a("s_sub_u32 s6, s6, s7")
        a(f"v_lshl_add_u32 v{48+i}, s6, 8, v28")
        a(f"v_lshrrev_b32 v{56+i}, 1, v{48+i}")
        a(f"v_add_u32 v{56+i}, L_tab_kv-{lpc}, v{56+i}")
        a("s_add_u32 s6, s6, 4")
    st.stamp(a, "pre")
    a(f"s_waitcnt vmcnt({H})")
    a("s_barrier")
    st.stamp(a, "B0")
    a("s_mov_b32 s13, 8")
    LL = a.newlabel("Lg_ll")
    a.label(LL)
    for x in PCS()[H:]: a(x)
    nextstage()
    for x in PCS()[:H]: a(x)
    a(f"s_waitcnt vmcnt({H})")
    a("s_barrier")
    l = a.newlabel("Lg_nt")
    a("s_cmp_lg_u32 s13, 4")
    a(f"s_cbranch_scc1 {l}")
    for i in range(NA): a(f"global_load_ushort v{AA+i}, v{56+i}, s[10:11]")
    a.label(l)
    a("s_sub_u32 s13, s13, 1")
    a("s_cmp_lg_u32 s13, 0")
    a(f"s_cbranch_scc1 {LL}")
    for x in PCS()[H:]: a(x)
    GX, GW = 128, 148
    a(f"s_lshl_b32 s7, s{sG}, 4")
    a("s_lshl_b32 s8, s5, 2")
    a("s_add_u32 s7, s7, s8")
    a("s_mul_i32 s8, s7, 1280")
    a("s_add_u32 s8, s8, s4")
    a("v_mul_u32_u24 v28, 1280, v3")
    a("v_lshlrev_b32 v29, 4, v2")
    a("v_add3_u32 v28, v28, v29, s8")
    for i in range(5):
        a(f"global_load_dwordx4 {V(GX+4*i,4)}, v28, s[{P_U}:{P_U+1}] offset:{256*i}")
        a(f"global_load_dwordx4 {V(GW+4*i,4)}, v29, s[{P_GATE}:{P_GATE+1}] offset:{256*i}")
    a(f"v_and_b32 v26, 7, v{vL}")
    a("v_lshlrev_b32 v26, 2, v26")
    flags_issue(a, 26, 27)
    wo_setup(a, dX, 5, sCT, 52, 56)
    a("s_mov_b32 s57, 0")
    def woloop(n):
        lp = a.newlabel("Lg_wo")
        a(f"s_add_u32 s13, s57, {30720*n}")
        a.label(lp)
        a("s_mov_b32 m0, s56")
        a("s_add_u32 s56, s56, 3840")
        a(f"buffer_load_dwordx4 v{dX}, s[52:55], s57 offen lds")
        a("s_add_u32 s57, s57, 30720")
        a("s_cmp_lg_u32 s57, s13")
        a(f"s_cbranch_scc1 {lp}")
    W0 = opt.get("wo0", 0); W1 = opt.get("wo1", 11)
    assert W0 <= 11
    if W0: woloop(W0)
    a(f"s_waitcnt vmcnt({11+W0})")
    a("s_barrier")
    woloop(W1 - W0)
    a("s_barrier")
    GP = opt.get("gp", 27)
    if GP > W1: woloop(GP - W1)
    a(f"s_waitcnt vmcnt({GP})")
    def gate():
        a("v_mov_b32 v30, 0"); a("v_mov_b32 v31, 0")
        for i in range(20): a(f"v_dot2_f32_bf16 v{30+(i&1)}, v{GX+i}, v{GW+i}, v{30+(i&1)}")
        a("s_nop 2")
        a("v_add_f32 v30, v30, v31")
        for sh in (1, 2, 4, 8):
            a(f"v_add_f32_dpp v30, v30, v30 row_shr:{sh} row_mask:0xf bank_mask:0xf")
        a(f"v_mul_f32 v30, 0xbfb8aa3b, v30")
        a("v_exp_f32 v30, v30")
        a("v_add_f32 v30, 1.0, v30")
        a("v_rcp_f32 v30, v30")
        a(f"s_lshl_b32 s8, s{sRB}, 7")
        a("s_add_u32 s8, s8, s7")
        a("s_lshl_b32 s8, s8, 2")
        a(f"s_add_u32 s8, s8, {WS_G}")
        a("v_lshl_add_u32 v31, v3, 2, s8")
        a("s_mov_b32 exec_lo, 0x80008000"); a("s_mov_b32 exec_hi, 0x80008000")
        a(f"global_store_dword v31, v30, s[{P_WS}:{P_WS+1}] sc1")
        a("s_mov_b64 exec, -1")
    flags_wait(a, 26, 27, GP)
    GL = opt.get('glate', 0)
    if not GL:
        a(f"s_setprio {opt.get('gprio', 0)}"); gate()
    if GP < 27: woloop(27 - GP)
    st.stamp(a, "loop")
    a(f"s_mul_i32 s8, s{sG}, {3360 if BF else 6720}")
    a(f"s_add_u32 s52, s{P_WS}, s8")
    a(f"s_addc_u32 s53, s{P_WS+1}, 0")
    a(f"s_mov_b32 s54, {3360 if BF else 6720}")
    a("s_mov_b32 s55, 0x20000")
    a("s_setprio 3")
    st.stamp(a, "epi")
    a("s_barrier")
    if BF:
        for i in range(4): a(f"ds_read2_b64 {V(4+4*i,4)}, v{AA+i} offset0:0 offset1:64")
        for i in range(4):
            a(f"s_waitcnt lgkmcnt({3-i})")
            a(f"v_add_f32 v{4+4*i}, v{4+4*i}, v{6+4*i}")
            a(f"v_add_f32 v{5+4*i}, v{5+4*i}, v{7+4*i}")
            a(f"v_cvt_pk_bf16_f32 v{4+4*i}, v{4+4*i}, v{5+4*i}")
            a(f"buffer_atomic_pk_add_bf16 v{4+4*i}, v{48+i}, s[52:55], 0 offen")
    else:
        for i in range(7): a(f"ds_read2_b32 {V(4+2*i,2)}, v{AA+i} offset0:0 offset1:128")
        for i in range(7):
            a(f"s_waitcnt lgkmcnt({6-i})")
            a(f"v_add_f32 v{4+2*i}, v{4+2*i}, v{5+2*i}")
            a(f"buffer_atomic_add_f32 v{4+2*i}, v{48+i}, s[52:55], 0 offen")
    if GL == 1: a("s_setprio 0")
    if GL: gate()
    a("s_setprio 0")
    st.stamp(a, "epi2")
    a(f"s_branch {LE}")

    a.label(LC)
    st.n = n0; st.names = st.names[:n0]
    ACC = 36; QA = ACC + 80; F = [156, 204]
    aA = [4, 5, 6, 7]
    aB, aM, aQ4 = 10, 11, 12
    SC = 14
    a(f"s_and_b32 s5, s{sW}, 1")
    a(f"s_lshr_b32 s6, s{sW}, 1")
    a("v_lshrrev_b32 v24, 1, v2")
    a("v_xor_b32 v24, v24, v3")
    a("v_lshlrev_b32 v24, 4, v24")
    a("v_lshl_add_u32 v24, v2, 7, v24")
    a(f"s_lshl_b32 s8, s{sW}, 12")
    a(f"v_add_u32 v{aA[0]}, s8, v24")
    a(f"v_xor_b32 v{aA[1]}, 64, v{aA[0]}")
    a(f"v_xor_b32 v{aA[2]}, 4096, v{aA[0]}")
    a(f"v_xor_b32 v{aA[3]}, 4096, v{aA[1]}")
    a("v_lshrrev_b32 v25, 1, v3")
    a("v_lshlrev_b32 v25, 4, v25")
    a("v_and_b32 v26, 1, v3")
    a("v_lshl_add_u32 v25, v26, 2, v25")
    a("v_lshrrev_b32 v26, 2, v2")
    a("v_add_u32 v25, v25, v26")
    a("v_mul_u32_u24 v25, 160, v25")
    a("v_and_b32 v26, 3, v2")
    a("v_lshl_add_u32 v25, v26, 3, v25")
    a(f"v_add_u32 v25, {XSZ}, v25")
    a(f"v_lshl_add_u32 v{aQ4}, v26, 5, v25")
    a("s_mul_i32 s8, s5, 80")
    a(f"v_add_u32 v{aB}, s8, v25")
    a("v_cmp_lt_u32 vcc, 1, v26")
    a(f"v_mov_b32 v30, 64")
    a(f"v_mov_b32 v31, {SEGV-SEGK-16}")
    a("v_cndmask_b32 v30, v30, v31, vcc")
    a(f"v_add_u32 v{aM}, v{aB}, v30")
    a(f"v_mov_b32 v8, {LOG2E}")
    a("v_mov_b32 v9, 0x358637bd")
    a("v_mov_b32 v31, 0")
    a(f"v_mov_b32 v30, {LCNT}")
    a("ds_write_b32 v30, v31")
    st.stamp(a, "karg")
    a("v_cmp_gt_u32 s[10:11], 8, v2")
    a("v_cndmask_b32 v30, 0, 1.0, s[10:11]")
    for rt in range(4):
        for ct in range(5):
            for j in range(4):
                src = "1.0" if ct < 2 else ("v30" if ct == 2 else "0")
                a(f"v_mov_b32 v{ACC+20*rt+4*ct+j}, {src}")
    for r in range(40): a(f"v_mov_b32 v{QA+r}, 1.0")
    pairs = PAIRS
    bo = [(aB, SEGK), (aB, SEGK+32), (aM, SEGK), (aB, SEGV+16), (aB, SEGV+48), (aB, 0), (aB, 40), (aQ4, 32)]
    def reads(f, ks):
        o = ks*32*160
        A = [f"ds_read_b128 {V(f+4*rt,4)}, v{aA[2*(rt>>1)+ks]} offset:{2048*(rt&1)}" for rt in range(4)]
        B = [f"ds_read_b64_tr_b16 {V(f+16+4*ct+2*h,2)}, v{bo[ct][0]} offset:{o+bo[ct][1]+h*1280}" for ct in range(8) for h in range(2)]
        if opt.get("noread"): return []
        return A[:1] + B[:10] + A[1:] + B[10:]
    def kvm_(f): return [f"v_mfma_f32_16x16x32_bf16 {V(ACC+20*rt+4*ct,4)}, {V(f+4*rt,4)}, {V(f+16+4*ct,4)}, {V(ACC+20*rt+4*ct,4)}" for rt in range(4) for ct in range(5)]
    def qm_(f):
        L = []
        for i in range(5):
            pr_, ct = (i >> 1, 5 + (i & 1)) if i < 4 else (0, 7)
            for u in range(2):
                L.append(f"v_mfma_f32_16x16x32_bf16 {V(QA+8*i+4*u,4)}, {V(f+16+4*ct,4)}, {V(f+8*pr_+4*u,4)}, {V(QA+8*i+4*u,4)}")
        return L
    def mf(f): return (kvm_(f) + qm_(f)) if not opt.get("nomfma") else ["s_nop 0"]*30
    def weave(ms, vs, per=1):
        vi = 0
        for m in ms:
            a(m)
            cost = 0
            while vi < len(vs) and cost < per:
                a(vs[vi]); cost += 2 if "v_exp" in vs[vi] else 1; vi += 1
        for x in vs[vi:]: a(x)
    adv = [f"s_add_u32 s12, s12, 1\ns_cmp_eq_u32 s12, 3\ns_cselect_b32 s12, 0, s12\ns_cselect_b32 s14, {-2*STG}, s15"] + [f"v_add_u32 v{r}, s14, v{r}" for r in aA + [aB, aM, aQ4]]
    a("s_mov_b32 s12, 0"); a("s_mov_b32 s13, 9"); a(f"s_mov_b32 s15, {STG}")
    a(f"s_setprio {opt.get('cprio', 1)}")
    st.stamp(a, "pre")
    a("s_waitcnt lgkmcnt(0)")
    a("s_barrier")
    st.stamp(a, "B0")
    for x in reads(F[0], 0): a(x)
    LL = a.newlabel("Lg_cl")
    a.label(LL)
    a("s_waitcnt lgkmcnt(0)")
    weave(mf(F[0]), reads(F[1], 1) + adv)
    a("s_waitcnt lgkmcnt(0)")
    a("s_barrier")
    if opt.get("itst"):
        for k in range(8): a(f"s_mov_b32 s{st.first+2*(st.n+k)}, s{st.first+2*(st.n+k+1)}")
        st.n += 8; st.names += [f"i{k}" for k in range(8)]
        st.stamp(a, "i8")
    weave(mf(F[1]), reads(F[0], 0) + ["s_sub_u32 s13, s13, 1\ns_cmp_lg_u32 s13, 0"])
    a(f"s_cbranch_scc1 {LL}")
    a("s_waitcnt lgkmcnt(0)")
    TM = 24; ONE = 4
    weave(mf(F[0]), reads(F[1], 1) + [f"v_mov_b32 v{ONE+j}, 0x3f803f80" for j in range(4)])
    a("s_waitcnt lgkmcnt(0)")
    a("s_barrier")
    P = 156
    KD = 36
    def tailops(rt):
        b = ACC + 20*rt
        L = [f"v_cndmask_b32 v{TM+8+j}, v{b+8+j}, v{TM+8+j}, s[10:11]" for j in range(4)]
        for ct in range(5):
            s_ = TM + 4*ct if ct < 3 else b + 4*ct
            d = P + 8*ct + 2*rt
            L += [f"v_cvt_pk_bf16_f32 v{d}, v{s_}, v{s_+1}", f"v_cvt_pk_bf16_f32 v{d+1}, v{s_+2}, v{s_+3}"]
        return L
    def kvm(kp):
        L = []
        for i, (kt, vt) in enumerate(pairs):
            c = "0" if kp == 0 else V(KD+4*i, 4)
            L.append(f"v_mfma_f32_16x16x32_bf16 {V(KD+4*i,4)}, {V(P+8*vt+4*kp,4)}, {V(P+8*kt+4*kp,4)}, {c}")
        for kt in range(3):
            c = "0" if kp == 0 else V(KD+28+4*kt, 4)
            L.append(f"v_mfma_f32_16x16x32_bf16 {V(KD+28+4*kt,4)}, {V(ONE,4)}, {V(P+8*kt+4*kp,4)}, {c}")
        return L
    QT = 204
    NQ = opt.get("qf", 2)
    def qaddr():
        srd(a, 48, P_WS, 2621440, WS_PQ)
        a(f"v_lshlrev_b32 v13, 4, v{vL}")
        for x in [f"s_lshl_b32 s6, s{sRB}, 2", f"s_add_u32 s6, s6, s{sW}", "s_xor_b32 s7, s6, 1", "s_mul_i32 s6, s6, 40960", "s_mul_i32 s7, s7, 40960",
                  f"s_mul_i32 s8, s{sG}, 5120", "s_add_u32 s6, s6, s8", "s_add_u32 s7, s7, s8", "s_add_u32 s8, s6, 4096", "s_lshl_b32 s9, s5, 11",
                  "s_add_u32 s6, s6, s9", "s_add_u32 s7, s7, s9"]: a(x)
    def qfin(i, t):
        return ([f"v_cvt_pk_bf16_f32 v{t+k}, v{t+2*k}, v{t+2*k+1}" for k in range(4)] +
                [f"v_permlane16_swap_b32 v{t}, v{t+2}", f"v_permlane16_swap_b32 v{t+1}, v{t+3}",
                 f"buffer_store_dwordx4 {V(t,4)}, v13, s[48:51], s{6+(i>>1)} offen offset:{1024*(i&1)} sc1"])
    QS = opt.get("qs", 2); heldq = []
    qfin0 = qfin
    def qfinh(i, t):
        L = qfin0(i, t)
        if QS: heldq.append(L.pop())
        return L
    def relq(k):
        if QS == k:
            for x in heldq: a(x)
    if NQ:
        m = (qm_(F[1]) + kvm_(F[1]))
        for x in m[:6]: a(x)
        qaddr()
        T0 = 196 if QS else 180
        T1 = 188
        A, B, C = phi_ops(QA, 8, 8, T0, pk=False)
        A2, B2, C2 = phi_ops(QA+8, 8, 8, T1, pk=False)
        weave(m[6:], A + B + C + qfinh(0, T0) + (A2 if NQ > 1 else []), 2)
        st.stamp(a, "loop")
        if NQ > 1:
            for x in B2 + phi_ops(QA+8, 8, 8, T1)[2]: a(x)
            if QS:
                for k in range(4): a(f"v_cvt_pk_bf16_f32 v{T0+4+k}, v{T1+2*k}, v{T1+2*k+1}")
                for x in qfinh(1, T0+4)[4:]: a(x)
            else:
                for x in qfin(1, T1): a(x)
        for i in range(2, NQ):
            for L in phi_ops(QA+8*i, 8, 8, QT+8*i) + (qfinh(i, QT+8*i),):
                for x in L: a(x)
        for L in phi_ops(ACC, 12, 8, TM) + (tailops(0),):
            for x in L: a(x)
    else:
        m = mf(F[1])
        for x in m[:8]: a(x)
        qaddr()
        A, B, C = phi_ops(ACC, 12, 8, TM, pk=False)
        weave(m[8:], A + B, 2)
        st.stamp(a, "loop")
        for x in phi_ops(ACC, 12, 8, TM)[2] + tailops(0): a(x)
    relq(1)
    for L in phi_ops(ACC+20, 12, 8, TM) + (tailops(1),):
        for x in L: a(x)
    relq(2)
    A, B, C = phi_ops(ACC+40, 12, 8, TM)
    for x in A: a(x)
    weave(kvm(0), B, 3)
    for x in C + tailops(2): a(x)
    relq(3)
    for L in phi_ops(ACC+60, 12, 8, TM) + (tailops(3),):
        for x in L: a(x)
    n = 8*(5 - NQ)
    A, B, C = phi_ops(QA+8*NQ, n, 8, QT+8*NQ)
    for x in A: a(x)
    rest = list(B[:n])
    pend = []
    for i in range(NQ, 5):
        k = i - NQ
        rest += B[n+8*k:n+8*k+8] + pend + C[4*k:4*k+4] + qfin(i, QT+8*i)[:4]
        pend = qfin(i, QT+8*i)[4:]
    rest += pend
    k1 = min(14, n)
    weave(kvm(1), rest[:k1], 2)
    a(f"s_lshl_b32 m0, s{sW}, 8")
    wr = [f"ds_write_addtid_b32 v{KD+p if p < 28 else KD+28+4*(p-28)} offset:{KPL*p}" for p in range(31)]
    GR = opt.get("gr", 31)
    wr = ["\n".join(wr[k:k+GR]) for k in range(0, 31, GR)]
    k2 = k1 + opt.get("nw", 10)
    weave(wr, rest[k1:k2], opt.get("pw", 4))
    st.stamp(a, "epi")
    a("s_waitcnt lgkmcnt(0)")
    a("s_barrier")
    for x in rest[k2:]: a(x)
    a("s_setprio 0")
    st.stamp(a, "epi2")
    a.label(LE)
    a(f"s_and_b32 s57, s{sRB}, 3")
    a("s_lshl_b32 s57, s57, 8")
    a(f"s_add_u32 s57, s57, {WS_CNT}")
    a("s_mov_b32 s58, -1")
    a("s_mov_b32 s56, 7")
```

```python
from common import *
YB = 0; KVB = 12288; RB = 12288
PL = 2176; TS = 16*PL + 16
def role_p2(a, st, sSB, sCT, sW, opt):
    vT, vL = 0, 1
    SP = opt.get("sigpos", 2)
    def sig(k):
        if SP == k:
            signal(a, 56, 57, 58, 116, st); st.stamp(a, "sig")
    PW = opt.get("pw0", 7)
    a("s_and_b32 s7, s2, 31")
    a("s_lshl_b32 s7, s7, 11")
    a(f"s_add_u32 s63, s7, {WS_CNT}")
    a(f"v_mov_b32 v122, {LCNT-4}")
    a(f"v_lshl_add_u32 v121, v{vL}, 8, s63")
    a("v_mov_b32 v123, 0")
    a("v_mov_b32 v255, 0")
    l = a.newlabel("Lp_n1")
    a(f"s_xor_b32 s7, s{sW}, {PW}")
    a("s_or_b32 s7, s7, s56")
    a(f"s_cbranch_scc1 {l}")
    a("s_mov_b64 exec, 31")
    a(peek(121, 255, 123))
    a("s_mov_b64 exec, -1")
    a.label(l)
    A2 = 56
    for r in range(A2, A2+32): a(f"v_mov_b32 v{r}, 0")
    sig(0)
    a(f"s_and_b32 s4, s{sW}, 1")
    a(f"s_lshr_b32 s5, s{sW}, 1")
    a(f"v_lshlrev_b32 v2, 4, v{vT}")
    a(f"s_lshl_b32 s6, s{sSB}, 1")
    a("s_add_u32 s6, s6, s4")
    a("s_mul_i32 s7, s6, 40960")
    a("s_mul_i32 s8, s5, 10240")
    a("s_add_u32 s7, s7, s8")
    a(f"s_and_b32 s14, s{sCT}, {1 if opt.get('par', 0) else 0}")
    a("s_lshl_b32 s15, s14, 1")
    a("s_sub_u32 s15, 1, s15")
    a("s_mul_i32 s8, s14, 5120")
    a("s_add_u32 s7, s7, s8")
    a(f"s_add_u32 s7, s7, {WS_PQ+2048}")
    a(f"v_lshl_add_u32 v3, v{vL}, 4, s7")
    a("s_mul_i32 s8, s15, 5120")
    a("v_add_u32 v4, s8, v3")
    a(f"v_and_b32 v6, 31, v{vL}")
    a(f"v_lshrrev_b32 v7, 5, v{vL}")
    a("s_lshl_b32 s7, s6, 7")
    a(f"s_add_u32 s7, s7, {WS_G}")
    a("v_lshl_add_u32 v8, v6, 2, s7")
    a(f"v_lshrrev_b32 v10, 3, v{vL}")
    a(f"v_lshrrev_b32 v20, 4, v{vL}")
    a(f"s_lshl_b32 s7, s{sW}, 2")
    a("v_add_u32 v11, s7, v20")
    a(f"v_xor_b32 v11, v11, v{vL}")
    a("v_and_b32 v11, 7, v11")
    a("v_lshlrev_b32 v11, 4, v11")
    a("v_lshl_add_u32 v10, v10, 12, v11")
    a(f"s_mul_i32 s7, s{sCT}, {80*4096}")
    a(f"s_lshl_b32 s8, s{sSB}, 7")
    a("s_add_u32 s7, s7, s8")
    a(f"s_add_u32 s7, s7, {WS_YT}")
    a(f"s_lshl_b32 s8, s{sW}, 15")
    a("s_add_u32 s8, s8, s7")
    a("v_add_u32 v5, s8, v10")
    a("v_add_u32 v9, 0x40000, v5")
    srd(a, 48, P_WS, 26880 if opt.get('bf') else 53760, WS_KV)
    sig(1)
    a("v_lshrrev_b32 v16, 3, v6")
    a(f"v_and_b32 v21, 3, v{vL}")
    a("v_lshl_add_u32 v16, v16, 2, v21")
    a("v_bfe_u32 v17, v6, 2, 1")
    a("v_lshl_add_u32 v16, v16, 1, v17")
    a("v_min_u32 v16, 20, v16")
    a("v_mul_u32_u24 v16, 40, v16")
    a("s_lshl_b32 s9, s5, 1")
    a("s_add_u32 s9, s9, s14")
    a("s_mul_i32 s7, s9, 3360")
    a("v_add_u32 v14, s7, v16")
    a("v_lshl_add_u32 v13, v7, 4, v14")
    a("s_mul_i32 s7, s15, 3360")
    a("v_add_u32 v220, s7, v13")
    a("v_add_u32 v221, s7, v14")
    a(f"v_bfe_u32 v16, v{vL}, 2, 2")
    a("v_lshl_add_u32 v16, v16, 1, v7")
    a("v_mul_u32_u24 v16, 160, v16")
    a("v_lshl_add_u32 v16, v21, 3, v16")
    a("s_mul_i32 s7, s9, 12800")
    a(f"s_add_u32 s7, s7, {WOB}")
    a("v_add_u32 v16, s7, v16")
    a("v_and_b32 v17, 1, v20")
    a("v_lshl_add_u32 v15, v17, 5, v16")
    a("s_movk_i32 s7, 2560")
    a("v_mad_u32_u24 v252, v17, s7, v16")
    a("s_mul_i32 s7, s15, 12800")
    a("v_add_u32 v222, s7, v15")
    a("v_add_u32 v223, s7, v252")
    a("s_sub_u32 s7, s7, 10240")
    a("v_mul_lo_u32 v253, v17, s7")
    a("v_add_u32 v253, v253, v16")
    a("s_cmp_lt_u32 s5, 2")
    a("s_cselect_b64 vcc, -1, 0")
    a("v_mov_b32 v18, s5")
    a("v_cndmask_b32 v17, v17, v18, vcc")
    a("v_lshl_add_u32 v17, v17, 1, v7")
    a("s_lshl_b32 s7, s4, 2")
    a("v_add_u32 v17, s7, v17")
    a(f"v_and_b32 v18, 15, v{vL}")
    a("v_add_u32 v18, 64, v18")
    a("v_cndmask_b32 v18, v18, v6, vcc")
    a("v_bfe_u32 v16, v18, 1, 3")
    a("v_xor_b32 v16, v16, v17")
    a("v_lshlrev_b32 v16, 4, v16")
    a("v_lshl_add_u32 v10, v18, 7, v16")
    sig(2)
    FA = 224
    a(f"v_lshrrev_b32 v17, 3, v{vT}")
    a(f"v_and_b32 v18, 7, v{vT}")
    a("v_mul_u32_u24 v19, 1280, v17")
    a(f"v_lshl_add_u32 v{FA}, v18, 4, v19")
    a(f"s_and_b32 s7, s{sW}, 3")
    a(f"s_mul_i32 s7, s7, {4*PL}")
    a(f"s_lshr_b32 s8, s{sW}, 2")
    a("s_lshl_b32 s8, s8, 8")
    a("s_add_u32 s7, s7, s8")
    a("v_and_b32 v16, 3, v17")
    a(f"v_mul_u32_u24 v19, {PL}, v16")
    a("v_lshl_add_u32 v19, v7, 7, v19")
    a("v_lshrrev_b32 v16, 2, v18")
    a(f"v_mul_u32_u24 v16, {TS}, v16")
    a("v_add3_u32 v19, v19, v16, s7")
    a(f"v_lshl_add_u32 v{FA+1}, v21, 5, v19")
    a(f"v_bfe_u32 v17, v{vL}, 2, 3")
    a("v_mul_u32_u24 v19, 1280, v17")
    a("v_lshl_add_u32 v19, v21, 3, v19")
    a(f"s_mul_i32 s7, s{sW}, 10240")
    a("s_add_u32 s7, s7, 128")
    a(f"v_add_u32 v{FA+2}, s7, v19")
    a("s_and_b32 s7, s5, 1")
    a(f"s_mul_i32 s7, s7, {4*PL}")
    a("s_add_u32 s7, s7, s8")
    a("s_lshl_b32 s8, s4, 7")
    a("s_add_u32 s7, s7, s8")
    a(f"s_add_u32 s7, s7, {2*TS}")
    a("v_and_b32 v16, 3, v17")
    a(f"v_mul_u32_u24 v19, {PL}, v16")
    a("v_lshrrev_b32 v16, 2, v17")
    a("v_lshl_add_u32 v19, v16, 6, v19")
    a("v_lshl_add_u32 v19, v21, 4, v19")
    a(f"v_add_u32 v{FA+3}, s7, v19")
    KA = 104
    BF = opt.get("bf", 0); NK = 4 if BF else 7
    a("s_lshr_b32 s7, s2, 3")
    if BF: a("s_and_b32 s7, s7, 3")
    else:
        a("s_mul_i32 s8, s7, 37")
        a("s_lshr_b32 s8, s8, 8")
        a("s_mul_i32 s8, s8, 7")
        a("s_sub_u32 s7, s7, s8")
    a("s_lshl_b32 s7, s7, 13")
    for i in range(NK):
        a(f"v_add_u32 v{KA+i}, s7, v2")
        if not BF: a(f"v_lshrrev_b32 v{KA+20+i}, 1, v{KA+i}")
        a("s_add_u32 s7, s7, 8192")
        a(f"s_cmp_eq_u32 s7, {8192*NK}")
        a("s_cselect_b32 s7, 0, s7")
    sig(3)
    st.stamp(a, "ready")
    a("s_barrier")
    WB = 228; NW = 6
    ops = []
    for m in range(10):
        ops += [("M", m, 0), ("M", m, 1)]
        if m >= 2 and m % 2 == 0: ops.append(("N", m-2))
    ops.append(("N", 8))
    def wrd(k):
        if k >= len(ops): return []
        o = ops[k]
        m = o[1]
        if o[0] == "M": return [f"ds_read_b64_tr_b16 {V(WB+4*(k%NW)+2*h,2)}, v{15 if m < 5 else 222} offset:{(16*(m%5)+8*h)*160+64*o[2]}" for h in range(2)]
        return [f"ds_read_b64_tr_b16 {V(WB+4*(k%NW)+2*h,2)}, v{252 if m < 4 else (253 if m == 4 else 223)} offset:{(16*(m%5)+8*h)*160+128}" for h in range(2)]
    l = a.newlabel("Lp_n1"); le = a.newlabel("Lp_pe")
    a(f"s_cmp_lg_u32 s{sW}, {PW}")
    a(f"s_cbranch_scc1 {l}")
    a("s_mov_b64 exec, 31")
    a("v_mov_b32 v17, v255")
    a(peek(121, 255, 123))
    a("s_mov_b64 exec, -1")
    a.label(l)
    for k in range(NW):
        for x in wrd(k): a(x)
    a("s_waitcnt lgkmcnt(0)")
    lsk = a.newlabel("Lp_np"); lp = a.newlabel("Lp_poll")
    a(f"s_cmp_lg_u32 s{sW}, {PW}")
    a(f"s_cbranch_scc1 {lsk}")
    a(f"s_mov_b32 s13, {SPIN}")
    a("s_mov_b64 exec, 31")
    a("v_cmp_ne_u32 vcc, 32, v17")
    a("s_and_b32 s12, vcc_lo, 15")
    a(f"s_cbranch_scc0 {le}")
    a.label(lp)
    a(peek(121, 254, 123))
    a("s_waitcnt vmcnt(1)")
    a("v_mov_b32 v17, v255")
    a("v_cmp_ne_u32 vcc, 32, v255")
    a("s_and_b32 s12, vcc_lo, 15")
    a(f"s_cbranch_scc0 {le}")
    a(peek(121, 255, 123))
    a("s_sub_u32 s13, s13, 1")
    a("s_cselect_b32 s12, 0, 15")
    a("s_waitcnt vmcnt(1)")
    a("v_mov_b32 v17, v254")
    a("v_cmp_ne_u32 vcc, 32, v254")
    a("s_and_b32 s12, s12, vcc_lo")
    a(f"s_cbranch_scc1 {lp}")
    a.label(le)
    a("s_mov_b64 exec, 16")
    a("ds_write_b32 v122, v17")
    a("s_mov_b64 exec, -1")
    a("s_waitcnt lgkmcnt(0)")
    a.label(lsk)
    a("s_barrier")
    a("ds_read_b32 v114, v122")
    st.stamp(a, "go")
    KL = 176
    a(f"global_load_dword v12, v8, s[{P_WS}:{P_WS+1}] sc1")
    PT = 0
    PQ = 16
    order = [4, 0, 1, 2, 3, 9, 5, 6, 7, 8]
    NPRE = opt.get("npre", 4)
    pql = [f"global_load_dwordx4 {V(PQ+4*i,4)}, v{3+i//5}, s[{P_WS}:{P_WS+1}] offset:{1024*(i%5)-2048} sc1" for i in order]
    DG = 88; DG1 = 216
    seq = opt.get("kseq", "L|LLL|ppppkkkk" if BF else "L|LLLLLL|ppppkkkkkkk")
    ip = ik = il = 0; iss = []
    for ch in seq:
        if ch == "|": a("s_barrier")
        elif ch == "L":
            a(f"buffer_load_dwordx4 {V(KL+4*il,4)}, v{KA+il}, s[48:51], 0 offen sc1"); iss.append(il); il += 1
        elif ch == "p": a(pql[ip]); ip += 1; iss.append(-1)
        else:
            i = ik; ik += 1
            a(f"s_waitcnt vmcnt({len(iss)-1-iss.index(i)})")
            if BF: a(f"ds_write_b128 v{KA+i}, {V(KL+4*i,4)} offset:{KVB}")
            else:
                a(f"v_cvt_pk_bf16_f32 v{KL+4*i}, v{KL+4*i}, v{KL+4*i+1}")
                a(f"v_cvt_pk_bf16_f32 v{KL+4*i+1}, v{KL+4*i+2}, v{KL+4*i+3}")
                a(f"ds_write_b64 v{KA+20+i}, {V(KL+4*i,2)} offset:{KVB}")
    assert ip == NPRE and ik == NK
    a("v_cvt_pk_bf16_f32 v11, v12, v12")
    a("v_and_b32 v12, 0xffff0000, v11")
    a("v_sub_f32 v12, 1.0, v12")
    diag = (["v_and_b32 v11, 0xffff, v11", "v_and_b32 v24, 1, v6", "v_lshlrev_b32 v24, 4, v24", "v_lshlrev_b32 v11, v24, v11",
             "v_lshrrev_b32 v24, 1, v6", "v_lshlrev_b32 v25, 2, v7", "v_sub_u32 v24, v24, v25"] +
            [f"v_cmp_eq_u32 s[{16+2*x}:{17+2*x}], {x if x < 4 else x+4}, v24" for x in range(8)] +
            [f"v_cndmask_b32 v{DG+x if x < 4 else DG1+x-4}, 0, v11, s[{16+2*x}:{17+2*x}]" for x in range(8)])
    a("s_waitcnt lgkmcnt(0)")
    a("v_readfirstlane_b32 s14, v114")
    st.stamp(a, "kv")
    a("s_barrier")
    st.stamp(a, "Ba")
    if opt.get("prio"): a("s_setprio 3")
    if opt.get("yprio"):
        l = a.newlabel("Lp_pr"); a(f"s_cmp_lt_u32 s{sW}, 4"); a(f"s_cbranch_scc1 {l}"); a("s_setprio 1"); a.label(l)
    A1 = 92
    OD = [104, 120]
    O = 136
    ACC = 176
    au = Auto(a)
    def rdA1(hh): return [f"ds_read_b64 {V(A1+4*(hh%3),2)}, v{13 if hh < 4 else 220} offset:{KVB+840*(hh&3)}", f"ds_read_b64 {V(A1+4*(hh%3)+2,2)}, v{13 if hh < 4 else 220} offset:{KVB+840*(hh&3)+8}"]
    for x in rdA1(0): au(x)
    a("s_mov_b32 exec_hi, 0")
    for hh in (0, 1, 4, 5): au(f"ds_read_b64 {V(A2+4*hh+2*(hh&1),2)}, v{14 if hh < 4 else 221} offset:{KVB+840*(hh&3)+32}")
    a("s_not_b64 exec, exec")
    for hh in (2, 3, 6, 7): au(f"ds_read_b64 {V(A2+4*hh+2*(hh&1),2)}, v{14 if hh < 4 else 221} offset:{KVB+840*(hh&3)+32}")
    a("s_mov_b64 exec, -1")
    for x in rdA1(1) + rdA1(2): au(x)
    def mm(hh):
        q, j = hh >> 2, hh & 3
        d = OD[hh & 1]
        return [f"v_mfma_f32_32x32x16_bf16 {V(d,16)}, {V(A2+4*hh,4)}, {V(PQ+20*q+16,4)}, 0",
                f"v_mfma_f32_32x32x16_bf16 {V(d,16)}, {V(A1+4*(hh%3),4)}, {V(PQ+20*q+4*j,4)}, {V(d,16)}"]
    def fin(hh):
        d = OD[hh & 1]
        L = [f"v_add_f32 v{d+10}, 0x358637bd, v{d+10}", f"v_rcp_f32 v{d+10}, v{d+10}", f"v_mul_f32 v{d+10}, v{d+10}, v12"]
        for r in range(5):
            L += [f"v_mul_f32 v{d+2*r}, v{d+2*r}, v{d+10}", f"v_mul_f32 v{d+2*r+1}, v{d+2*r+1}, v{d+10}"]
        L += [f"v_cvt_pk_bf16_f32 v{O+5*hh+r}, v{d+2*r}, v{d+2*r+1}" for r in range(5)]
        return L
    def wmm(k):
        o = ops[k]; w = V(WB+4*(k % NW), 4)
        if o[0] == "M":
            _, m, t = o
            L = [f"v_mfma_f32_32x32x16_bf16 {V(ACC+16*t,16)}, {V(O+4*m,4)}, {w}, {'0' if m == 0 else V(ACC+16*t,16)}"]
            post = wrd(k+NW)
            if t == 1 and m & 1: post = post + [f"v_permlane16_swap_b32 v{O+4*m-4+i}, v{O+4*m+i}" for i in range(4)]
            return [(L[0], post)]
        m = o[1]
        L = [f"v_mfma_f32_16x16x32_bf16 {V(ACC+32+4*u,4)}, {V(O+4*(m+u),4)}, {w}, {'0' if m == 0 else V(ACC+32+4*u,4)}" for u in range(2)]
        return [(L[0] + "\n" + L[1], wrd(k+NW))]
    vq = list(order[:NPRE]) + (['t'] if PT > 1 else [])
    rest = [(order[k], pql[k]) for k in range(NPRE, 10)]
    YL = 56
    rest += [("y0", f"global_load_dwordx4 {V(YL,4)}, v5, s[{P_WS}:{P_WS+1}] sc1")]
    def vissue(n):
        for _ in range(n):
            if rest:
                t, x = rest.pop(0); vq.append(t)
                if t == "y0":
                    l = a.newlabel("Lp_yr")
                    a("s_cmp_eq_u32 s14, 16"); a(f"s_cbranch_scc1 {l}")
                    a("s_add_u32 s6, s63, 1024")
                    a(f"v_mov_b32 v{YL}, s6")
                    poll(a, YL, YL+1, 16)
                    a.label(l)
                a(x)
    def vwait(tags):
        last = max(vq.index(t) for t in tags)
        if not opt.get("xnowait"): a(f"s_waitcnt vmcnt({len(vq)-1-last})")
    need = lambda hh: [5*(hh >> 2) + 4, 5*(hh >> 2) + (hh & 3)]
    vissue(opt.get("v0", 0))
    vwait(need(0))
    for x in mm(0): au(x)
    carry = []
    if opt.get("lag", 0): carry += rdA1(3)
    else:
        for x in rdA1(3): au(x)
    kdone = 0
    for hh in range(9):
        ms = []
        if hh in opt.get("prio", {}): a(f"s_setprio {opt['prio'][hh]}")
        if opt.get("hst") and hh in (0, 2, 4, 6, 8): st.stamp(a, f"h{hh}")
        vissue(opt.get('vi', [1, 2, 2, 2, 0, 0, 0, 0, 0])[hh])
        if hh + 1 < 8:
            vwait(need(hh+1))
            ms += [(x, []) for x in mm(hh+1)]
            if hh + 4 < 8: ms[-1] = (ms[-1][0], rdA1(hh+4))
        if hh == 4:
            assert not rest
            l = a.newlabel("Lp_y2")
            a(f"s_cmp_ge_u32 s{sW}, 2"); a(f"s_cbranch_scc1 {l}")
            a(f"global_load_dwordx4 {V(YL+4,4)}, v9, s[{P_WS}:{P_WS+1}] sc1")
            a.label(l)
        if hh == opt.get("hy", 6):
            a("s_waitcnt vmcnt(0)")
            au(f"ds_write_b128 v2, {V(YL,4)} offset:{YB}")
            a(f"s_cmp_lt_u32 s{sW}, 2")
            a("s_cselect_b64 exec, -1, 0")
            au(f"ds_write_b128 v2, {V(YL+4,4)} offset:{YB+8192}")
            a("s_mov_b64 exec, -1")
        if hh == opt.get("hb", 7):
            l = a.newlabel("Lp_yb")
            a(f"s_cmp_lt_u32 s{sW}, 4"); a(f"s_cbranch_scc1 {l}")
            k = max(i for i, d in enumerate(au.q) if not d) if any(not d for d in au.q) else None
            if k is not None: a(f"s_waitcnt lgkmcnt({min(15, len(au.q)-1-k)})")
            a("s_barrier")
            if opt.get("ypr", 1): a("s_setprio 2")
            a.label(l)
        mlim = (10*hh)//8
        quota = opt.get("quota", [9,9,9,9,3,3,2,9,9])[hh]
        mains = []
        while kdone < len(ops) and (ops[kdone][0] == "N" or ops[kdone][1] < mlim) and quota:
            mains += wmm(kdone); kdone += 1; quota -= 1
        if opt.get("split") and len(ms) == 2 and mains:
            ms = [ms[0], mains[0], ms[1]] + mains[1:]
        else: ms += mains
        fl = fin(hh) if hh < 8 else diag
        if opt.get("xnord"): ms = [(m, [x for x in rd if x.startswith("v_")]) for m, rd in ms]
        if opt.get("xnoswap"): ms = [(m, [x for x in rd if not x.startswith("v_")]) for m, rd in ms]
        if opt.get("xno16"): ms = [(m if "16x16" not in m else "s_nop 0", rd) for m, rd in ms]
        if opt.get("lag", 0):
            ms2 = []
            for m, rd in ms:
                if "16x16" in m:
                    pre = [x for x in carry if x.startswith("v_")]
                    if pre: m = "\n".join(pre + [m]); carry[:] = [x for x in carry if not x.startswith("v_")]
                ms2.append((m, list(carry))); carry[:] = rd
            ms = ms2
        if opt.get("burst"):
            late = []
            for m, rd in ms:
                if "16x16" in m:
                    for x in late: au(x)
                    late = []
                au(m)
                for x in rd:
                    if x.startswith("v_"): late.append(x)
                    else: au(x)
            for x in late + fl: au(x)
            continue
        fi = 0
        for i, (m, rd) in enumerate(ms):
            au(m)
            for x in rd: au(x)
            F0 = opt.get("f0", 0) if hh else 1
            if i >= F0:
                n = -(-len(fl) // max(1, len(ms) - F0))
                for x in fl[fi:fi+n]: au(x)
                fi += n
        for x in fl[fi:]: au(x)
    assert kdone == len(ops)
    for x in carry: au(x)
    au.drain()
    st.stamp(a, "gemm")
    srd(a, 48, P_OUT, 2621440)
    a(f"s_mul_i32 s7, s{sSB}, {64*1280}")
    a(f"s_mul_i32 s8, s{sCT}, 160")
    a("s_add_u32 s7, s7, s8")
    a(f"s_lshl_b32 s9, s{sW}, 8")
    lsk = a.newlabel("Lp_sk"); l2 = a.newlabel("Lp_y16")
    if opt.get("hb", 7) > 8: a("s_barrier")
    a("s_cmp_ge_u32 s5, 2"); a(f"s_cbranch_scc1 {l2}")
    if opt.get("hb", 7) <= 8: a("s_barrier")
    for t in range(2): a(f"ds_read_b128 {V(16+4*t,4)}, v10 offset:{YB+4096*t}")
    a("s_cmp_eq_u32 s5, 1")
    a("s_cselect_b64 vcc, -1, 0")
    for x in range(4): a(f"v_cndmask_b32_e64 v{DG+x}, v{DG+x}, v{DG1+x}, vcc")
    for t in range(2):
        a(f"s_waitcnt lgkmcnt({1-t})")
        a(f"v_mfma_f32_32x32x16_bf16 {V(ACC+16*t,16)}, {V(DG,4)}, {V(16+4*t,4)}, {V(ACC+16*t,16)}")
    a(f"s_branch {lsk}")
    a.label(l2)
    a("s_cmp_eq_u32 s5, 3"); a(f"s_cbranch_scc1 {lsk}")
    a(f"ds_read_b128 v[16:19], v10 offset:{YB}")
    for i in range(4): a(f"v_permlane16_swap_b32 v{DG+i}, v{DG1+i}")
    a("s_waitcnt lgkmcnt(0)")
    a(f"v_mfma_f32_16x16x32_bf16 {V(ACC+32,4)}, {V(DG,4)}, v[16:19], {V(ACC+32,4)}")
    a(f"v_mfma_f32_16x16x32_bf16 {V(ACC+36,4)}, {V(DG1,4)}, v[16:19], {V(ACC+36,4)}")
    a.label(lsk)
    for t in range(3):
        if t < 2: a(f"s_add_u32 m0, s9, {RB+t*TS}")
        for r in range(16 if t < 2 else 8):
            a(f"ds_write_addtid_b32 v{ACC+16*t+r} offset:{r*PL + (TS if t == 2 else 0)}")
    a("s_waitcnt lgkmcnt(0)")
    a("s_barrier")
    st.stamp(a, "Bd")
    au = Auto(a)
    R = 16; R2 = 48
    for p in range(4):
        for h in range(2):
            au(f"ds_read_b128 {V(R+8*p+4*h,4)}, v{FA+1} offset:{RB+512*p+16*h}")
    a("s_mov_b32 exec_hi, 0")
    for p in range(4): au(f"ds_read_b128 {V(R2+4*p,4)}, v{FA+3} offset:{RB+512*p}")
    a("s_mov_b32 exec_hi, -1")
    for i in range(0, 8, 2): au(f"v_pk_add_f32 {V(R+i,2)}, {V(R+i,2)}, {V(R+8+i,2)}")
    for i in range(0, 8, 2): au(f"v_pk_add_f32 {V(R+16+i,2)}, {V(R+16+i,2)}, {V(R+24+i,2)}")
    for i in range(0, 8, 2): au(f"v_pk_add_f32 {V(R+i,2)}, {V(R+i,2)}, {V(R+16+i,2)}")
    for i in range(4): au(f"v_cvt_pk_bf16_f32 v{R+i}, v{R+2*i}, v{R+2*i+1}")
    au(f"buffer_store_dwordx4 {V(R,4)}, v{FA}, s[48:51], s7 offen {opt.get('of', '')}")
    for i in (0, 2): au(f"v_pk_add_f32 {V(R2+i,2)}, {V(R2+i,2)}, {V(R2+4+i,2)}")
    for i in (0, 2): au(f"v_pk_add_f32 {V(R2+8+i,2)}, {V(R2+8+i,2)}, {V(R2+12+i,2)}")
    for i in (0, 2): au(f"v_pk_add_f32 {V(R2+i,2)}, {V(R2+i,2)}, {V(R2+8+i,2)}")
    for i in range(2): au(f"v_cvt_pk_bf16_f32 v{R2+i}, v{R2+2*i}, v{R2+2*i+1}")
    a("s_mov_b32 exec_hi, 0")
    au(f"buffer_store_dwordx2 {V(R2,2)}, v{FA+2}, s[48:51], s7 offen {opt.get('of', '')}")
    a("s_mov_b64 exec, -1")
```

```python
from common import *
import stab
TROW = 2064
T_Z = 24 * TROW
DB = 56 * TROW + 1024
KSTR = 2112; KCH = 4 * KSTR
XB = 0
KB = 51200
UB = KB + 5 * KCH
USTR = 4640
SLAB = 143344
UNITS = [4, 512, 6, 1792, 1, 260, 1024, 2, 7, None, 5, 256, 772, 258, 3, 516, 2048, 0, 1536, 768, 1280, 262]
HS, RS, ZW = 33, 69, 767
def unit_row(u):
    k = u >> 1
    return 8*(k >> 2) + 4*(u & 1) + (k & 3)

def tables_text():
    _, addr = stab.cost(UNITS, HS, RS, ZW)
    t = ".p2align 8\nL_tab_band:\n"
    b = stab.band_table().reshape(-1).view("uint32")
    for i in range(0, len(b), 8):
        t += "    .long " + ", ".join(hex(int(x)) for x in b[i:i+8]) + "\n"
    t += "L_tab_src:\n"
    addr = [4*x for x in addr]
    for i in range(0, len(addr), 16):
        t += "    .short " + ", ".join(str(x) for x in addr[i:i+16]) + "\n"
    return t

def cmul(a, t, x, m):
    a(f"v_pk_mul_f32 {V(t,2)}, {V(x,2)}, {V(m,2)} op_sel:[0,0] op_sel_hi:[0,1]")
    a(f"v_pk_fma_f32 {V(t,2)}, {V(x,2)}, {V(m,2)}, {V(t,2)} op_sel:[1,1,0] op_sel_hi:[1,0,1] neg_lo:[0,1,0]")

TO = 39
CNT = {"W": 2, "x": 0, "o": 0}
def do_touches(a, seq, opt, regs=None):
    if opt.get("notouch"): return 0
    w, x, o = regs or (TW, TX, TO)
    n = 0
    for t in seq.split():
        if t == "W":
            a(f"v_add_u32 v{w}, {'s59' if CNT['W'] == 5 else 64*3840}, v{w}")
            a(f"global_load_dword v255, v{w}, s[{P_WQKV}:{P_WQKV+1}]")
        elif t == "x":
            a(f"global_load_dword v255, v{x}, s[{P_U}:{P_U+1}] offset:{(0, 256, 384)[CNT['x']]}")
        elif t == "o":
            a(f"v_min_u32 v{o}, 819196, v{o}")
            a(f"global_load_dword v255, v{o}, s[{P_WO}:{P_WO+1}]"); a(f"v_add_u32 v{o}, 15360, v{o}")
        else:
            a(f"s_waitcnt vmcnt({t})"); continue
        CNT[t] += 1; n += 1
    assert CNT["W"] <= 10 and CNT["x"] <= 3
    return n
def w7(a, sW, fn):
    l = a.newlabel("Ls_w7")
    a(f"s_cmp_lg_u32 s{sW}, 7")
    a(f"s_cbranch_scc1 {l}")
    fn()
    a.label(l)

def slab_issue(a, p0, p1):
    for p in range(p0, p1):
        a(f"s_mov_b32 m0, {SLAB + 1024*p}")
        a(f"s_movk_i32 s9, {10240*(p & 3) + 128*(p >> 2)}")
        a("buffer_load_dwordx4 v18, s[52:55], s9 offen lds")

def role_s_pro(a, st, sJ, sW, opt):
    for r in range(2, 9): a(f"v_mov_b32 v{r}, 0")
    a(f"s_mul_i32 s4, s{sJ}, 1920")
    a(f"s_lshl_b32 s5, s{sW}, 8")
    a("s_add_u32 s4, s4, s5")
    a("v_lshl_add_u32 v42, v1, 1, s4")
    a(f"s_mul_i32 s7, s{sW}, 0xAAAC")
    a("s_lshr_b32 s6, s7, 16")
    a(f"s_mul_i32 s8, s{sJ}, 10")
    a("s_lshl_b32 s9, s6, 1")
    a("s_add_u32 s9, s9, s8")
    a("v_mov_b32 v43, s9")
    a("s_and_b32 s12, s2, 6")
    a("s_lshl_b32 s12, s12, 3")
    a("s_bfe_u32 s13, s2, 0x40003")
    a("s_add_u32 s12, s12, s13")
    a("s_lshl_b32 s12, s12, 6")
    a("s_and_b32 s13, s2, 1")
    a("s_add_u32 s12, s12, s13")
    a("s_mul_i32 s12, s12, 640")
    a("v_lshrrev_b32 v18, 3, v1")
    a("v_mul_u32_u24 v18, 1152, v18")
    a("v_lshl_add_u32 v18, v1, 4, v18")
    a("v_add_u32 v18, s12, v18")
    if not opt.get("slate"): role_s_issue(a, st, sJ, sW, opt)

def role_s_issue(a, st, sJ, sW, opt):
    a("s_waitcnt lgkmcnt(0)")
    st.stamp(a, "karg")
    lz = a.newlabel("Ls_nz")
    a(f"s_and_b32 s14, s{sJ}, 15")
    a(f"s_xor_b32 s9, s{sW}, 7")
    a("s_or_b32 s14, s14, s9")
    a(f"s_cbranch_scc1 {lz}")
    a(f"s_lshl_b32 s9, s{sJ}, 9")
    a(f"s_add_u32 s9, s9, {WS_CNT}")
    a("v_lshl_add_u32 v20, v1, 8, s9")
    a("s_mov_b32 exec_hi, 0")
    a(f"global_store_dword v20, v2, s[{P_WS}:{P_WS+1}] sc1")
    a("s_mov_b32 exec_hi, -1")
    a(f"s_mul_i32 s9, s{sJ}, 420")
    a("s_add_u32 s9, s9, 2880")
    a("v_lshl_add_u32 v20, v1, 4, s9")
    a("s_mov_b32 exec_hi, 0x0fffffff")
    for i in range(7):
        a(f"global_store_dwordx4 v20, v[2:5], s[{P_WS}:{P_WS+1}] offset:{960*i-2880} sc1")
    a("s_mov_b32 exec_hi, -1")
    a.label(lz)
    ploads(a, 2, 42, 43)
    srd(a, 52, P_U, 2621440)
    if opt.get("gt", "W") == "W": a(f"v_add_u32 v{TW}, {64*3840}, v{TW}")
    else: CNT["W"] = 1
    def slab_loop():
        a("s_setprio 2")
        lp = a.newlabel("Ls_sl")
        a(f"s_mov_b32 s12, {SLAB}")
        a("s_mov_b32 s13, 0")
        a.label(lp)
        for p in range(4):
            a(f"s_add_u32 m0, s12, {1024*p}")
            a(f"s_add_u32 s9, s13, {10240*p}")
            a("buffer_load_dwordx4 v18, s[52:55], s9 offen lds")
        a("s_add_u32 s12, s12, 4096")
        a("s_add_u32 s13, s13, 128")
        if opt.get("t0"):
            l2 = a.newlabel("Ls_t0")
            a(f"s_cmp_lg_u32 s13, {128*opt.get('t0at', 2)}")
            a(f"s_cbranch_scc1 {l2}")
            do_touches(a, opt["t0"], opt)
            a.label(l2)
        a("s_cmp_lg_u32 s13, 640")
        a(f"s_cbranch_scc1 {lp}")
    w7(a, sW, slab_loop)

def ploads(a, base, va, vld):
    PB, PC, PARE, PAIM, PLDT = 2, 4, 6, 7, 8
    a(f"global_load_short_d16_hi v{base+PLDT-2}, v{vld}, s[{P_LDT}:{P_LDT+1}]")
    for reg, p in ((PARE, P_ARE), (PAIM, P_AIM), (PB, P_BRE), (PB+1, P_BIM), (PC, P_CRE), (PC+1, P_CIM)):
        a(f"global_load_short_d16_hi v{base+reg-2}, v{va}, s[{p}:{p+1}]")

def role_s(a, st, sJ, sCT, sW, opt={}):
    vT, vL = 0, 1
    PB, PC, PARE, PAIM, PLDT = 2, 4, 6, 7, 8
    EA = 34
    vTR, vFL = 40, 41
    ACC = 48
    BAND = 200
    u0 = UNITS.index(0)
    lpc = a.newlabel("Ls_pc")
    a("s_getpc_b64 s[64:65]")
    a.label(lpc)
    touches = lambda seq: do_touches(a, seq, opt)
    a(f"s_lshr_b32 s49, s{sJ}, 4")
    def tabloads():
        a(f"v_lshlrev_b32 v46, 2, v{vT}")
        a(f"v_add_u32 v46, L_tab_src-{lpc}, v46")
        a(f"global_load_dwordx2 {V(EA,2)}, v46, s[64:65]")
    def bandloads():
        a(f"v_lshlrev_b32 v46, 4, v{vL}")
        a(f"v_add_u32 v46, L_tab_band-{lpc}+2048, v46")
        for t in range(6):
            a(f"global_load_dwordx4 {V(BAND+4*t,4)}, v46, s[64:65] offset:{1024*t-2048}")
    L7 = a.newlabel("Ls_slab"); LC = a.newlabel("Ls_common")
    touch_setup_x(a)
    for r in list(range(10, 18)) + list(range(ACC, ACC+16)): a(f"v_mov_b32 v{r}, 0")
    if opt.get("slate"): role_s_issue(a, st, sJ, sW, opt)
    a("s_add_u32 s7, s7, 0x5556")
    a("s_lshr_b32 s7, s7, 16")
    a("s_min_u32 s7, s7, 4")
    a("s_lshl_b32 s9, s7, 1")
    a("s_add_u32 s9, s9, s8")
    a("v_mov_b32 v44, s9")
    a("v_add_u32 v42, 128, v42")
    a(f"s_lshr_b32 s10, 0x92, s{sW}")
    a("s_and_b32 s10, s10, 1")
    a("s_mul_i32 s13, s48, 51200")
    a("s_add_u32 s13, s13, s50")
    a(f"v_add_u32 v{TO}, s13, v66")
    a("s_lshl_b32 s9, s50, 1")
    a("s_sub_u32 s9, 640, s9")
    a(f"v_add_u32 v{TX}, s9, v{TX}")
    a("s_mul_i32 s59, s50, 3840")
    a(f"s_sub_u32 s59, {64*3840}, s59")
    a(f"v_mov_b32 v46, 0")
    a(f"v_mov_b32 v47, {LCNT}")
    a("ds_write_b32 v47, v46")
    a(f"v_and_b32 v46, 31, v{vL}")
    a(f"v_lshrrev_b32 v47, 5, v{vL}")
    a(f"v_mad_u32_u24 v9, v47, {HS}, v46")
    a(f"v_mul_u32_u24 v46, {TROW}, v46")
    a(f"v_lshl_add_u32 v46, v47, 4, v46")
    a(f"v_add_u32 v{vTR}, s5, v46")
    a(f"s_mul_i32 s9, s{sJ}, 80")
    a(f"s_add_u32 s9, s9, {WS_UT}")
    for k in range(3):
        a(f"v_add_u32 v64, {512*k}, v{vT}")
        a("v_min_u32 v64, 1279, v64")
        a("v_mul_u32_u24 v65, 13108, v64")
        a("v_lshrrev_b32 v65, 16, v65")
        a("v_mul_u32_u24 v67, 10160, v65")
        a("v_lshl_add_u32 v67, v64, 4, v67")
        a(f"v_add_u32 v{24+k}, s9, v67")
        a("v_mul_u32_u24 v67, 5, v65")
        a("v_sub_u32 v64, v64, v67")
        a(f"v_mul_u32_u24 v64, {USTR}, v64")
        a("v_lshl_add_u32 v64, v65, 4, v64")
        a(f"v_add_u32 v{27+k}, {UB+480}, v64")
    a(f"v_and_b32 v30, 7, v{vL}")
    a("v_lshlrev_b32 v31, 13, v30")
    a(f"v_add_u32 v31, {WS_CNT+1280}, v31")
    a("v_lshlrev_b32 v30, 2, v30")
    a("s_mov_b32 s56, 0")
    a(f"s_add_u32 s57, s5, {T_Z}")
    a(f"v_lshrrev_b32 v64, 4, v{vL}")
    a(f"v_bfe_u32 v65, v{vL}, 2, 2")
    a("v_lshl_add_u32 v65, v64, 3, v65")
    a(f"v_and_b32 v67, 3, v{vL}")
    a("v_lshlrev_b32 v67, 3, v67")
    a("v_lshl_add_u32 v65, v65, 7, v67")
    a(f"v_add_u32 v22, {SLAB}, v65")
    a("v_mul_u32_u24 v64, 10240, v64")
    a(f"v_and_b32 v67, 15, v{vL}")
    a("v_lshl_add_u32 v64, v67, 4, v64")
    a("s_lshl_b32 s9, s50, 3")
    a("s_add_u32 s9, s9, s51")
    a(f"s_add_u32 s9, s9, {WS_UT+2048}")
    a("v_add_u32 v19, s9, v64")
    P1 = opt.get("p1", "early")
    def p1loads():
        ploads(a, 10, 42, 44)
        a(f"global_load_short_d16_hi v17, v43, s[{P_DSK}:{P_DSK+1}]")
    a("s_mov_b32 m0, s57")
    a("v_mov_b32 v46, 0x3f80")
    a("ds_write_addtid_b32 v46")
    a(f"s_cmp_eq_u32 s{sW}, 7")
    a(f"s_cbranch_scc1 {L7}")
    if P1 == "early":
        p1loads(); a("s_waitcnt vmcnt(8)")
    else:
        a("s_waitcnt vmcnt(0)")
        if P1 == "start": p1loads()
    a.label(L7)
    a(f"s_waitcnt vmcnt({20 + len(opt.get('t0', '').split())})")
    st.stamp(a, "params")
    Z1, Z8, Z256, DT, WW = 128, 130, 132, 134, 136
    T0 = 140
    def setup(o):
        B, C, AR, AI, LD_ = PB+o, PC+o, PARE+o, PAIM+o, PLDT+o
        sq = lambda t, x: [f"v_mul_f32 v{t}, v{x}, v{x}", f"v_mul_f32 v{t+1}, v{x}, v{x+1}", f"v_fma_f32 v{t}, -v{x+1}, v{x+1}, v{t}", f"v_add_f32 v{t+1}, v{t+1}, v{t+1}"]
        return [f"v_mul_f32 v{DT}, {LOG2E}, v{LD_}", f"v_exp_f32 v{DT}, v{DT}",
            f"v_mul_f32 v{T0}, v{C}, v{B}", f"v_mul_f32 v{T0+1}, v{C}, v{B+1}",
            f"v_cvt_pk_bf16_f32 v{DT}, v{DT}, v{DT}",
            f"v_fma_f32 v{T0}, -v{C+1}, v{B+1}, v{T0}", f"v_and_b32 v{DT}, 0xffff0000, v{DT}", f"v_fmac_f32 v{T0+1}, v{C+1}, v{B}",
            f"v_mul_f32 v{AR}, v{DT}, v{AR}", f"v_mul_f32 v{AI}, v{DT}, v{AI}",
            f"v_mul_f32 v{WW}, v{DT}, v{T0}", f"v_mul_f32 v{WW+1}, v{DT}, v{T0+1}",
            f"v_mul_f32 v{AR}, {LOG2E}, v{AR}", f"v_mul_f32 v{AI}, {INV2PI}, v{AI}",
            f"v_exp_f32 v{T0}, v{AR}", f"v_rndne_f32 v{T0+2}, v{AI}", f"v_sub_f32 v{AI}, v{AI}, v{T0+2}",
            f"v_cos_f32 v{Z1}, v{AI}", f"v_sin_f32 v{Z1+1}, v{AI}",
            f"v_mul_f32 v{AR}, 0x43800000, v{AR}", f"v_mul_f32 v{AI}, 0x43800000, v{AI}",
            f"v_mul_f32 v{Z1}, v{Z1}, v{T0}", f"v_mul_f32 v{Z1+1}, v{Z1+1}, v{T0}",
            f"v_exp_f32 v{T0+2}, v{AR}",
            f"v_cos_f32 v{Z256}, v{AI}", f"v_sin_f32 v{Z256+1}, v{AI}",
            ] + sq(Z8, Z1) + [f"v_mul_f32 v{Z256}, v{Z256}, v{T0+2}", f"v_mul_f32 v{Z256+1}, v{Z256+1}, v{T0+2}"] + sq(T0, Z8) + sq(Z8, T0)
    for x in setup(0): a(x)
    LK = a.newlabel("Ls_kgen")
    a(f"s_cmp_lg_u32 s{sW}, 7")
    a(f"s_cbranch_scc1 {LK}")
    l = a.newlabel("Ls_nf")
    a("s_cmp_lg_u32 s14, 0")
    a(f"s_cbranch_scc1 {l}")
    a("v_mov_b32 v21, 1")
    a("s_lshl_b64 exec, 1, s49")
    a(f"global_store_dword v30, v21, s[{P_DBG}:{P_DBG+1}] sc1")
    a("s_mov_b64 exec, -1")
    a.label(l)
    n = touches(opt.get("tA", "W W"))
    a(f"s_waitcnt vmcnt({n})")
    st.stamp(a, "slab")
    au = Auto(a)
    RG = 64; NR = 12
    def trr(u):
        for h in range(2): au(f"ds_read_b64_tr_b16 {V(RG+4*(u%NR)+2*h,2)}, v22 offset:{512*h+4096*(u>>2)+32*(u&3)}")
    for u in range(6): trr(u)
    for u in range(20):
        if u + 6 < 20: trr(u+6)
        au(f"global_store_dwordx4 v19, {V(RG+4*(u%NR),4)}, s[{P_WS}:{P_WS+1}] offset:{256*u-2048} sc1")
        if u == opt.get("ubar", 19): a("s_barrier")
    a("v_mov_b32 v46, 0")
    a("s_movk_i32 s11, 3072")
    a(f"v_min_u32 v47, 9, v{vL}")
    a(f"v_mul_u32_u24 v47, s11, v47")
    a(f"v_add_u32 v47, {DB+4*ZW}, v47")
    a("ds_write_b32 v47, v46")
    flags_issue(a, 30, 32)
    nB = touches(opt.get("tB", "W W")) + (0 if opt.get("notouch") else len(opt.get("tM", "x").split()))
    a("s_mov_b32 s56, 1")
    def pt7():
        flags_wait(a, 30, 32, nB)
        a("v_mov_b32 v21, 1")
        a("s_bitcmp1_b32 s2, 0")
        a("s_cselect_b32 exec_lo, 0xf0, 15")
        a("s_mov_b32 exec_hi, 0")
        a(f"global_atomic_add v31, v21, s[{P_WS}:{P_WS+1}] sc1")
        a("s_mov_b64 exec, -1")
        tabloads(); bandloads()
        touches(opt.get("tC", "W x"))
    a.label(LK)
    def kst(n):
        if opt.get("kst") is None: return
        l = a.newlabel("Lks")
        a(f"s_cmp_lg_u32 s56, {opt['kst']}"); a(f"s_cbranch_scc1 {l}"); st.stamp(a, n); a.label(l)
    kst("k0")
    CV = 176; FR = 64
    class Pipe:
        def __init__(s): s.pc = None; s.pw = None; s.n = 0; s.m0 = None; s.extra = []
        def step(s, entry):
            w = s.pw
            if s.pc is not None:
                src, off, neg = s.pc
                r = CV + (s.n % 4); s.n += 1
                a(f"v_cvt_pk_bf16_f32 v{r}, v{src}, {'-' if neg else ''}v{src+1}")
                s.pw = (r, off, neg)
            else: s.pw = None
            if w:
                if s.m0 != w[2]:
                    a(f"s_mov_b32 m0, s{5 if w[2] else 57}"); s.m0 = w[2]
                a(f"ds_write_addtid_b32 v{w[0]} offset:{w[1]}")
                if s.extra: a(s.extra.pop(0))
            s.pc = entry
        def drain(s):
            s.step(None); s.step(None)
    p = Pipe()
    uo = lambda pp: unit_row(UNITS.index(pp)) * TROW
    Wreg = {0: WW}
    p.step((WW, uo(0), True))
    for k in range(1, 8):
        Wreg[k] = 144 + 2*k
        cmul(a, Wreg[k], Wreg[k-1], Z1); p.step((Wreg[k], uo(k), True))
    rot = [160, 162, 164, 166]; ri = 0
    for base, cnt in ((0, 8), (4, 3), (2, 1), (6, 1)):
        src = Wreg[base]
        for e in range(1, cnt+1):
            d = rot[ri % 4]; ri += 1
            cmul(a, d, src, Z256); p.step((d, uo(base + 256*e), True)); src = d
    kst("k2")
    if opt.get("tM", "x"): w7(a, sW, lambda: touches(opt.get("tM", "x")))
    if P1 == "mid":
        l = a.newlabel("Ls_mid")
        a("s_cmp_lg_u32 s56, 0"); a(f"s_cbranch_scc1 {l}"); p1loads(); a.label(l)
    p.step((Z8, TROW, False))
    src = Z8
    rdA = [f"ds_read_b128 {V(FR+8*ks,4)}, v{vTR} offset:{32*ks}" for ks in range(8)]
    rdB = [f"ds_read_b128 {V(FR+8*ks+4,4)}, v{vTR} offset:{T_Z+32*ks}" for ks in range(8)]
    HO = opt.get("hoistA", 1)
    for q in range(2, 32):
        d = rot[ri % 4]; ri += 1
        if HO and q >= 5 and (q - 5) % 3 == 0 and rdA: p.extra.append(rdA.pop(0))
        cmul(a, d, src, Z8); p.step((d, q*TROW, False)); src = d
        if q == opt.get("q7", 14): w7(a, sW, pt7)
    p.drain()
    kst("k3")
    if opt.get("tK", "W W x"): w7(a, sW, lambda: touches(opt.get("tK", "W W x")))
    a("s_barrier")
    au = Auto(a)
    if HO: au.q = [set()]*0
    for k in range(8):
        if not HO: au(rdA[k])
        au(rdB[k])
    l = a.newlabel("Ls_r0")
    a("s_cmp_lg_u32 s56, 0")
    a(f"s_cbranch_scc1 {l}")
    a("s_waitcnt vmcnt(0)")
    lo, hi = ("exec_hi", "exec_lo") if u0 & 1 else ("exec_lo", "exec_hi")
    a(f"s_xor_b32 {lo}, s10, 1")
    a(f"s_mov_b32 {hi}, 0")
    a(f"v_mov_b32 v{ACC+(u0>>1)}, v17")
    a("s_mov_b64 exec, -1")
    tabloads()
    a(f"s_cmp_lt_u32 s{sW}, 5")
    a(f"s_cbranch_scc1 {l}")
    bandloads()
    a.label(l)
    kst("k3b")
    a("s_mul_i32 s9, s6, 6144")
    a("s_mul_i32 s11, s10, 3072")
    a("s_add_u32 s9, s9, s11")
    a(f"s_add_u32 s9, s9, {DB}")
    a(f"v_lshl_add_u32 v{vFL}, v9, 2, s9")
    su = setup(8); si = 8
    for x in su[:si]: a(x)
    for ks in range(8):
        au(f"v_mfma_f32_32x32x16_bf16 {V(ACC,16)}, {V(FR+8*ks,4)}, {V(FR+8*ks+4,4)}, {V(ACC,16)}")
        for x in su[si:si+4]: a(x)
        si += 4
    for x in su[si:]: a(x)
    kst("k4")
    lnf = a.newlabel("Ls_noflush")
    a("s_or_b32 s9, s10, s56")
    a(f"s_cbranch_scc0 {lnf}")
    for k in range(11):
        a(f"ds_write_b32 v{vFL}, v{ACC+k} offset:{4*RS*k}")
    for k in range(11):
        a(f"v_mov_b32 v{ACC+k}, 0")
    a.label(lnf)
    a("s_mov_b32 s6, s7")
    a("s_xor_b32 s56, s56, 1")
    a(f"s_cbranch_scc1 {LK}")
    st.stamp(a, "kgen")
    def after7():
        touches(opt.get("tE", ""))
        a("s_lshl_b32 s9, s49, 13")
        a(f"s_add_u32 s9, s9, {WS_CNT+1280}")
        a("v_mov_b32 v20, s9")
        poll(a, 20, 21, 64)
        a("s_setprio 0")
    w7(a, sW, after7)
    a("s_waitcnt vmcnt(0)")
    st.stamp(a, "upoll")
    a(f"v_and_b32 v{EA+2}, 0xffff, v{EA+1}")
    a(f"v_lshrrev_b32 v{EA+1}, 16, v{EA}")
    a(f"v_and_b32 v{EA}, 0xffff, v{EA}")
    for k in range(3): a(f"v_add_u32 v{EA+k}, {DB}, v{EA+k}")
    st.stamp(a, "gather")
    a(f"v_mul_u32_u24 v13, 2185, v{vT}")
    a("v_lshrrev_b32 v13, 16, v13")
    a(f"v_mul_u32_u24 v13, {USTR-480}, v13")
    a(f"v_lshl_add_u32 v13, v{vT}, 4, v13")
    for r in range(20, 24): a(f"v_mov_b32 v{r}, 0")
    a(f"v_and_b32 v14, 15, v{vL}")
    a(f"v_lshrrev_b32 v15, 4, v{vL}")
    a("v_and_b32 v16, 3, v14")
    a("v_sub_u32 v16, 3, v16")
    a(f"v_mul_u32_u24 v16, {KSTR}, v16")
    a("v_lshrrev_b32 v17, 2, v14")
    a("v_sub_u32 v17, 3, v17")
    a("v_lshl_add_u32 v16, v17, 3, v16")
    a(f"v_add_u32 v16, {KB}, v16")
    a(f"v_add_u32 v13, {UB}, v13")
    a("v_lshlrev_b32 v17, 5, v14")
    a("v_and_b32 v18, 1, v15")
    a("v_lshl_add_u32 v18, v18, 9, v17")
    a("v_and_b32 v19, 2, v15")
    a("v_lshl_add_u32 v18, v19, 3, v18")
    a("v_lshl_add_u32 v17, v15, 4, v17")
    a(f"v_add_u32 v17, {UB}, v17")
    a("s_waitcnt lgkmcnt(0)")
    a("s_barrier")
    st.stamp(a, "B1")
    for k in range(3):
        a(f"global_load_dwordx4 {V(128+4*k,4)}, v{24+k}, s[{P_WS}:{P_WS+1}] sc1")
    ER = 64
    for c in range(5):
        for k in range(3):
            a(f"ds_read2st64_b32 {V(ER+6*c+2*k,2)}, v{EA+k} offset0:{24*c} offset1:{24*c+12}")
    a(f"v_cmp_gt_u32 vcc, 150, v{vT}")
    a("s_and_saveexec_b64 s[12:13], vcc")
    a(f"ds_write_b128 v13, v[20:23]")
    a("s_mov_b64 exec, s[12:13]")
    a(f"s_add_u32 m0, s5, {KB}")
    a("s_waitcnt lgkmcnt(1)")
    for c in range(5):
        b = ER + 6*c
        for k in range(3):
            a(f"v_add_f32 v{b+2*k}, v{b+2*k}, v{b+2*k+1}")
        a(f"v_cvt_pk_bf16_f32 v{b+1}, v{b}, v{b+2}")
        a(f"v_cvt_pk_bf16_f32 v{b+3}, v{b+2}, v{b+4}")
        o = c*KCH
        a(f"ds_write_addtid_b32 v{b+1} offset:{o}")
        a(f"ds_write_addtid_b32 v{b+3} offset:{o+KSTR}")
        a(f"ds_write_addtid_b32 v{b+1} offset:{o+2*KSTR-4}")
        a(f"ds_write_addtid_b32 v{b+3} offset:{o+3*KSTR-4}")
    for k in range(3):
        a(f"s_waitcnt vmcnt({2-k})")
        a(f"ds_write_b128 v{27+k}, {V(128+4*k,4)}")
    w7(a, sW, lambda: touches(opt.get("tD", "W o")))
    LD = a.newlabel("Ls_dil"); LE = a.newlabel("Ls_end")
    a(f"s_cmp_ge_u32 s{sW}, 5")
    a(f"s_cbranch_scc1 {LD}")
    n0 = st.n
    vA, vB, vX = 2, 3, 4
    a(f"s_mul_i32 s9, s{sW}, {KCH}")
    a("v_lshl_add_u32 v2, v15, 4, v16")
    a(f"v_add_u32 v{vA}, s9, v2")
    a(f"s_mul_i32 s9, s{sW}, {USTR}")
    a(f"v_add_u32 v{vB}, s9, v17")
    a(f"s_mul_i32 s9, s{sW}, 10240")
    a(f"s_add_u32 s9, s9, {XB}")
    a(f"v_lshl_add_u32 v{vX}, v{vL}, 4, s9")
    srd(a, 52, P_WS, 2621440, WS_YT)
    a(f"s_mul_i32 s9, s{sJ}, 5")
    a(f"s_add_u32 s9, s9, s{sW}")
    a("s_lshl_b32 s56, s9, 12")
    a("s_waitcnt lgkmcnt(0)")
    a("s_barrier")
    st.stamp(a, "B2")
    CA = 24; AF = 56; BF = 128; NB = 12
    au = Auto(a)
    Areg = lambda x: AF + 4*(x + 7)
    def rdA(x):
        off = 64*(9 - x) if x <= 9 else 1120
        return [f"ds_read_b64 {V(Areg(x),2)}, v{vA} offset:{off}", f"ds_read_b64 {V(Areg(x)+2,2)}, v{vA} offset:{off+8}"]
    rdB = lambda m: f"ds_read_b128 {V(BF+4*(m % NB),4)}, v{vB} offset:{64*m}"
    groups = []
    for m in range(64):
        g = []
        if m < 8:
            g += rdA(-m) + rdA(8-m)
            if m == 7: g += rdA(9) + rdA(10)
        g.append(rdB(m)); groups.append(g)
    seen = set()
    def mf(i, x, m):
        c = V(CA+4*i, 4) if i in seen else "0"
        seen.add(i)
        return f"v_mfma_f32_16x16x32_bf16 {V(CA+4*i,4)}, {V(Areg(x),4)}, {V(BF+4*(m % NB),4)}, {c}"
    def fin_pair(i, em):
        b = CA + 4*i
        for k in range(4): em(f"v_cvt_pk_bf16_f32 v{b+k}, v{b+2*k}, v{b+2*k+1}")
        em(f"v_permlane16_swap_b32 v{b}, v{b+2}")
        em(f"v_permlane16_swap_b32 v{b+1}, v{b+3}")
        em(f"buffer_store_dwordx4 {V(b,4)}, v18, s[52:55], s56 offen offset:{512*i} sc1")
    flat = [x for g in groups for x in g]
    gend = []; n = 0
    for g in groups: n += len(g); gend.append(n)
    ni = 0
    for _ in range(gend[2]): au(flat[ni]); ni += 1
    R = 176
    MB1, MB2 = opt.get("mb", (40, 48))
    def addt(i, pk):
        L = []
        for t in ([i-2] + ([i+2] if i >= 4 else [])):
            if pk: L += [f"v_pk_add_f32 {V(CA+4*i+k,2)}, {V(CA+4*i+k,2)}, {V(R+4*t+k,2)}" for k in (0, 2)]
            else: L += [f"v_add_f32 v{CA+4*i+k}, v{CA+4*i+k}, v{R+4*t+k}" for k in range(4)]
        return L
    stores = []
    def finl(i):
        L = []; fin_pair(i, L.append); stores.append(L.pop()); return L
    extra = []
    for m in range(64):
        j, r = m >> 3, m & 7
        if m in (MB1, MB2):
            l = a.newlabel("Ls_mb")
            a(f"s_and_b32 s9, s{sW}, 3")
            a(f"s_cbranch_scc{0 if m == MB1 else 1} {l}")
            a("s_barrier")
            a.label(l)
        if m == 24: extra += finl(0)
        if m == MB2:
            st.stamp(a, "conv")
            extra += [f"ds_read_b128 {V(R+4*t,4)}, v{vX} offset:{1024*t}" for t in (0, 1, 2, 6, 3, 7, 4, 8, 5, 9)]
            extra += addt(2, 0) + addt(3, 0) + finl(2) + addt(4, 0) + addt(5, 0) + finl(4)
            extra += [f"v_add_f32 v{R+4*t+k}, v{R+4*t+k}, v{R+4*t+16+k}" for t in (4, 5) for k in range(4)]
        ms = [mf(j, -r, m)]
        if j < 7: ms.append(mf(j+1, 8-r, m))
        if r == 7 and j < 6: ms.append(mf(j+2, 9, m))
        if r == 7 and j < 4: ms.append(mf(j+4, 10, m))
        lim = gend[min(63, m + NB - 2)]
        for x in ms:
            au(x)
            for _ in range(3 if m < 8 else 1):
                if ni < lim: au(flat[ni]); ni += 1
            for _ in range(2):
                if extra: au(extra.pop(0))
    assert ni == len(flat) and MB2 >= 48
    for x in extra: au(x)
    for x in stores: au(x)
    for i in (6, 7):
        for x in addt(i, 1)[:2]: au(x)
    fin_pair(6, au)
    st.stamp(a, "B3")
    a(f"s_mov_b32 s57, {WS_CNT+1024}")
    a("s_and_b32 s9, s49, 3")
    a("s_lshl_b32 s9, s9, 3")
    a("s_lshr_b32 s11, s49, 2")
    a("s_add_u32 s9, s9, s11")
    a("s_mov_b32 s56, 4")
    a("s_lshl_b32 s58, 0x55, s9")
    a("s_barrier")
    a(f"s_branch {LE}")
    a.label(LD)
    st.n = n0; st.names = st.names[:n0]
    a("s_setprio 1")
    for k, r in enumerate((TW, TX, TO)): a(f"v_mov_b32 v{226+k}, v{r}")
    a("v_lshl_add_u32 v16, v15, 3, v16")
    a(f"v_lshlrev_b32 v19, 4, v{vL}")
    a(f"v_add_u32 v19, {XB}, v19")
    a(f"s_cmp_eq_u32 s{sW}, 6")
    a("s_movk_i32 s56, 0x198")
    a("s_cselect_b32 s56, 0x3ba, s56")
    a(f"s_cmp_eq_u32 s{sW}, 7")
    a("s_cselect_b32 s56, 0x425c, s56")
    a(f"s_mul_i32 s57, s{sW}, 12")
    a("s_add_u32 s57, s57, 9")
    wo_setup(a, 5, 57, sCT, 52, 58)
    a("s_waitcnt lgkmcnt(0)")
    a("s_barrier")
    st.stamp(a, "B2")
    w7(a, sW, lambda: do_touches(a, opt.get("t4", "o o"), opt, (226, 227, 228)))
    LU = a.newlabel("Ls_unit"); L3 = a.newlabel("Ls_u3"); LN = a.newlabel("Ls_un")
    a.label(LU)
    a("s_bitcmp1_b32 s56, 3")
    a("s_cselect_b32 s11, 8, 1")
    a("s_and_b32 s9, s56, 15")
    a("s_sub_u32 s9, s9, s11")
    a(f"s_mul_i32 s12, s9, {KCH}")
    a("v_add_u32 v2, s12, v16")
    a(f"s_mul_i32 s12, s9, {USTR}")
    a("v_add_u32 v3, s12, v17")
    a("s_mul_i32 s12, s9, 10240")
    a("v_add_u32 v4, s12, v19")
    for t in range(4): a(wo_piece(5, 52, 58, t, 1))
    a("s_add_u32 s58, s58, 3840")
    a("s_cmp_eq_u32 s11, 1")
    a(f"s_cbranch_scc1 {L3}")
    TP = 24; WN = 48; BX = 96; OP = 128; DA = 144
    def unit(types, d0, nd, nJ, toff, tlen, tbase, xoff):
        au = Auto(a)
        npair = len(types)//2
        rdW = lambda J: [f"ds_read_b128 {V(WN+8*J+4*k,4)}, v3 offset:{512*J+432+16*k}" for k in range(2)]
        def rdT(di): return [f"ds_read_b64 {V(TP+4*(di*npair+(ti>>1))+2*(ti&1),2)}, v2 offset:{2*(toff+tlen*ti+tbase-16*(d0+di))}" for ti in range(len(types))]
        def box(J): return [f"v_mfma_f32_16x16x32_bf16 {V(BX+16*(J&1)+4*ti,4)}, {V(WN+8*J+(0 if stab.W0[ty] == -24 else 4),4)}, {V(BAND+4*ty,4)}, 0" for ti, ty in enumerate(types)]
        def cvt(J): return [f"v_cvt_pk_bf16_f32 v{OP+8*(J&1)+k}, v{BX+16*(J&1)+2*k}, v{BX+16*(J&1)+2*k+1}" for k in range(2*len(types))]
        seen = set()
        def main(J):
            L = []
            for pi in range(npair):
                for di in range(nd):
                    i = J + d0 + di
                    if i > 7: continue
                    acc = DA + 4*(i - d0)
                    c = V(acc, 4) if i in seen else "0"
                    seen.add(i)
                    L.append(f"v_mfma_f32_16x16x32_bf16 {V(acc,4)}, {V(OP+8*(J&1)+4*pi,4)}, {V(TP+4*(di*npair+pi),4)}, {c}")
            return L
        later = [x for di in range(nd) for x in rdT(di)] + [x for J in range(3, nJ) for x in rdW(J)]
        for J in range(3):
            for x in rdW(J): au(x)
        li = 0
        def emit(ms, fill, nread=2):
            nonlocal li
            fi = 0
            for x in ms:
                au(x)
                for _ in range(nread):
                    if li < len(later): au(later[li]); li += 1
                for _ in range(2):
                    if fi < len(fill): au(fill[fi]); fi += 1
            for x in fill[fi:]: au(x)
        emit(box(0), [])
        emit(box(1), [])
        for x in cvt(0): au(x)
        for J in range(nJ):
            emit(main(J), cvt(J+1) if J+1 < nJ else [])
            if J + 2 < nJ: emit(box(J+2), [])
            if J >= 1: au(f"ds_write_b128 v4, {V(DA+4*(J-1),4)} offset:{xoff+1024*(J-1)}")
        au(f"ds_write_b128 v4, {V(DA+4*(nJ-1),4)} offset:{xoff+1024*(nJ-1)}")
        assert li == len(later)
    unit([0,1,2,3], 2, 3, 6, 608, 64, 64, 0)
    w7(a, sW, lambda: do_touches(a, opt.get("t5", "o"), opt, (226, 227, 228)))
    a(f"s_branch {LN}")
    a.label(L3)
    unit([4,5], 4, 4, 4, 864, 80, 112, 6144)
    a.label(LN)
    a("s_lshr_b32 s56, s56, 4")
    a(f"s_cbranch_scc1 {LU}")
    a(f"s_sub_u32 s57, s{sW}, 5")
    wo_setup(a, 2, 57, sCT, 52, 56)
    a("s_waitcnt lgkmcnt(0)")
    st.stamp(a, "conv")
    a("s_barrier")
    a("s_setprio 0")
    a("s_mov_b32 s57, 0")
    def woloop(n):
        lp = a.newlabel("Ls_wo")
        a(f"s_add_u32 s13, s57, {23040*n}")
        a.label(lp)
        a("s_mov_b32 m0, s56")
        a("s_add_u32 s56, s56, 2880")
        a("buffer_load_dwordx4 v2, s[52:55], s57 offen lds")
        a("s_add_u32 s57, s57, 23040")
        a("s_cmp_lg_u32 s57, s13")
        a(f"s_cbranch_scc1 {lp}")
    woloop(14)
    st.stamp(a, "B3")
    a("s_barrier")
    woloop(9)
    a("s_mov_b32 s56, 0")
    a.label(LE)
```

```python
import sys
from common import *
from role_g import role_g, g_tables_text
from role_s import role_s, role_s_pro, tables_text
from role_p2 import role_p2
diag = len(sys.argv) > 2 and sys.argv[2] == "diag"
opt = eval(sys.argv[3]) if len(sys.argv) > 3 else {}
NAME = "gated_mix__ssm_conv_s4__linear_attn_block__prompt_kernel"
HDR = open("gated_mix__ssm_conv_s4__linear_attn_block__prompt.s.ref").read().split("; Override launch")[0]
if opt.get('rt'): Stamps.op = 's_memrealtime'
a = Asm(); stg = Stamps(diag); sts = Stamps(diag)
stg.skip = set(opt.get("skipg", ["karg", "done", "ready"])); sts.skip = set(opt.get("skips", ["karg", "gather", "conv", "slab", "params"]))
stg.start(a)
if diag: sts.names.append("start"); sts.n = 1
a("s_cmp_ge_u32 s2, 256")
a("s_cbranch_scc1 L_end")
load_kernargs(a)
RBIT = opt.get("rbit")
if RBIT:
    a(f"s_lshr_b32 s3, s2, {7-RBIT}")
    a("s_xor_b32 s3, s3, s2")
    a(f"s_and_b32 s3, s3, {1 << RBIT}")
    a(f"s_mul_i32 s3, s3, {1 + (1 << (7-RBIT))}")
    a("s_xor_b32 s2, s2, s3")
a("v_lshrrev_b32 v1, 6, v0")
a("v_readfirstlane_b32 s60, v1")
a("v_and_b32 v1, 63, v0")
code_prefetch(a, opt.get("pf1", 10), 3)
touch_setup_w(a)
a("s_and_b32 s3, s2, 128")
a("s_xor_b32 s4, s60, 1")
a("s_or_b32 s3, s3, s4")
a("s_cbranch_scc1 L_nt")
if opt.get("gt", "W") == "W": a(f"v_add_u32 v38, {64*3840}, v{TW}")
else: touch_setup_x(a)
a("s_waitcnt lgkmcnt(0)")
a(f"global_load_dword v255, v{TW}, s[{P_WQKV}:{P_WQKV+1}]")
pp = P_WQKV if opt.get("gt", "W") == "W" else P_U
a(f"global_load_dword v255, v38, s[{pp}:{pp+1}]")
a.label("L_nt")
a("s_lshr_b32 s3, s2, 3")
a("s_and_b32 s62, s2, 1")
a("s_lshl_b32 s62, s62, 2")
a("s_and_b32 s4, s3, 3")
a("s_add_u32 s62, s62, s4")
a("s_cmp_lt_u32 s3, 16")
a("s_cbranch_scc1 L_g")
a("s_and_b32 s61, s2, 7")
a("s_lshl_b32 s61, s61, 4")
a("s_and_b32 s4, s3, 15")
a("s_add_u32 s61, s61, s4")
role_s_pro(a, sts, 61, 60, opt)
a("s_branch L_s")
a.label("L_g")
a("s_and_b32 s61, s2, 6")
a("s_lshl_b32 s61, s61, 1")
a("s_lshr_b32 s4, s3, 2")
a("s_add_u32 s61, s61, s4")
role_g(a, stg, 61, 62, 60, 62, opt)
a("s_branch L_p2")
a.label("L_s")
i0 = len(a.lines)
role_s(a, sts, 61, 62, 60, opt)
def sub(pred, rep):
    for i in range(i0, len(a.lines)):
        if pred(a.lines[i]): a.lines[i] = rep
if opt.get("xpk"): sub(lambda l: l.startswith(("v_pk_mul_f32", "v_pk_fma_f32")), "s_nop 0")
if opt.get("xconv"): sub(lambda l: l.startswith("v_mfma_f32_16x16"), "s_nop 7")
if opt.get("xk32"): sub(lambda l: l.startswith("v_mfma_f32_32x32"), "s_nop 7")
a.label("L_p2")
while sts.n < stg.n: sts.n += 1; sts.names.append('-')
assert stg.n == sts.n, (stg.names, sts.names)
n0 = stg.n
stg.stamp(a, "done")
a("s_and_b32 s61, s2, 6")
a("s_lshl_b32 s61, s61, 2")
a("s_lshr_b32 s4, s2, 5")
a("s_add_u32 s61, s61, s4")
role_p2(a, stg, 61, 62, 60, opt)
if opt.get("amp"):
    a("s_waitcnt vmcnt(0) lgkmcnt(0)")
    stg.stamp(a, "end")
    a("s_waitcnt lgkmcnt(0)")
    wg, nm = opt["amp"]
    names = stg.names if wg < 128 else sts.names + stg.names[n0:]
    k = names.index(nm); e = len(names) - 1
    a(f"s_xor_b32 s4, s2, {wg}"); a("s_or_b32 s4, s4, s60"); a("s_cbranch_scc1 L_end")
    a(f"s_sub_u32 s5, s{70+2*k}, s70"); a("s_lshl_b32 s5, s5, 2"); a("s_min_u32 s5, s5, 20000")
    a.label("L_amp")
    a("s_memrealtime s[6:7]"); a("s_waitcnt lgkmcnt(0)"); a(f"s_sub_u32 s6, s6, s{70+2*e}"); a("s_cmp_lt_u32 s6, s5"); a("s_cbranch_scc1 L_amp")
elif opt.get("dbgout"):
    a("s_waitcnt vmcnt(0) lgkmcnt(0)")
    stg.stamp(a, "end")
    a("s_waitcnt lgkmcnt(0)")
    a("s_and_b32 s4, s2, 127"); a("s_xor_b32 s4, s4, 8"); a("s_or_b32 s4, s4, s60"); a("s_cbranch_scc1 L_end")
    a("s_lshr_b32 s4, s2, 7"); a("s_lshl_b32 s4, s4, 4"); a("s_add_u32 s4, s4, 32"); a("v_mov_b32 v2, s4")
    a("s_mov_b64 exec, 1")
    for k in range(4):
        a(f"s_sub_u32 s5, s{70+2*(2*k+1)}, s70"); a(f"s_sub_u32 s6, s{70+2*(2*k+2)}, s70"); a("s_mul_i32 s5, s5, 10000"); a("s_add_u32 s5, s5, s6")
        a("v_mov_b32 v3, s5"); a(f"global_store_dword v2, v3, s[{P_DBG}:{P_DBG+1}] offset:{4*k}")
    a("s_waitcnt vmcnt(0)")
    print(stg.names, sts.names)
else:
    stg.flush(a, 2, 60)
a.label("L_end")
a("s_endpgm")
txt = HDR
if opt.get("list", diag):
    txt += f"; @launch kernel={NAME} grid=(256,1,1) block=(512,1,1) lds=163840\n"
else:
    txt += "; @launch grid=(256,1,1) block=(512,1,1) lds=163840\n"
txt += '.amdgcn_target "amdgcn-amd-amdhsa--gfx950"\n.text\n' + kernel_text(NAME, a, 256, align=opt.get('al', (2, 5))) + tables_text() + g_tables_text(opt) + "L_code_end:\n"
txt += '.section .rodata,"a"\n' + descriptor(NAME, 256, 100)
if diag:
    txt += "; stampsG: " + ",".join(stg.names) + "|np.arange(128)\n"
    txt += "; stampsS: " + ",".join(sts.names + stg.names[n0:]) + "|np.arange(128,256)\n"
open(sys.argv[1], "w").write(txt)
```
